```python
import torch

def _softmax(x, axis=-1):
    return torch.softmax(x, dim=axis)
def _gelu(x):
    return torch.nn.functional.gelu(x, approximate="tanh")
def _silu(x):
    return torch.nn.functional.silu(x)
def _sigmoid(x):
    return torch.sigmoid(x)
def _layernorm(x, axis=-1, eps=1e-5):
    m = x.mean(dim=axis, keepdim=True)
    v = x.var(dim=axis, keepdim=True, unbiased=False)
    return (x - m) / torch.sqrt(v + eps)
def _scatter_add(tgt, idx, src, axis=0):
    return tgt.clone().index_add_(axis, idx, src)
def _segment_sum(src, seg, n):
    out = torch.zeros((n,) + src.shape[1:], dtype=src.dtype)
    return out.index_add_(0, seg, src)
def _pad(x, pw):
    flat = tuple(v for pair in reversed(pw) for v in pair)
    return torch.nn.functional.pad(x, flat)

kernel_name = 'concat_heads__gqa_block_cached__mha_block_cached__near_ridge'

def setup_inputs():

    _w = (lambda a: (lambda t: t.to(torch.bfloat16) if t.is_floating_point() else t)(torch.as_tensor(a)))
    def _A_setup():
        B, Sq, D = 8, 32, 1024
        Hq, Hkv, Sk, Dh = 32, 4, 1024, 128
        assert Hq % Hkv == 0, (Hq, Hkv)
        return {
            "x": _w((lambda *s: torch.randn(*s, dtype=torch.bfloat16) * 0.8)(B, Sq, D)),
            "k_cache": _w((lambda *s: torch.randn(*s, dtype=torch.bfloat16) * 0.8)(B, Hkv, Sk, Dh)),
            "v_cache": _w((lambda *s: torch.randn(*s, dtype=torch.bfloat16) * 0.05)(B, Hkv, Sk, Dh)),
            "wq": _w((lambda *s: torch.randn(*s, dtype=torch.bfloat16) * 0.8)(D, Hq * Dh) * (D ** -0.5)),
            "wo": _w((lambda *s: torch.randn(*s, dtype=torch.bfloat16) * 0.05)(Hq * Dh, D) * ((Hq * Dh) ** -0.5)),
        }
    _A_in = _A_setup()

    def _B_setup():
        B, Sq, D = 8, 32, 1024
        H, Sk, Dh = 32, 1024, 128
        return {
            "x": _w((lambda *s: torch.randn(*s, dtype=torch.bfloat16) * 0.8)(B, Sq, D)),
            "k_cache": _w((lambda *s: torch.randn(*s, dtype=torch.bfloat16) * 0.8)(B, H, Sk, Dh)),
            "v_cache": _w((lambda *s: torch.randn(*s, dtype=torch.bfloat16) * 0.05)(B, H, Sk, Dh)),
            "wq": _w((lambda *s: torch.randn(*s, dtype=torch.bfloat16) * 0.8)(D, H * Dh) * (D ** -0.5)),
            "wo": _w((lambda *s: torch.randn(*s, dtype=torch.bfloat16) * 0.05)(H * Dh, D) * ((H * Dh) ** -0.5)),
        }
    _B_in = _B_setup()

    return {
        "A_x": _A_in["x"],
        "A_k_cache": _A_in["k_cache"],
        "A_v_cache": _A_in["v_cache"],
        "A_wq": _A_in["wq"],
        "A_wo": _A_in["wo"],
        "B_x": _B_in["x"],
        "B_k_cache": _B_in["k_cache"],
        "B_v_cache": _B_in["v_cache"],
        "B_wq": _B_in["wq"],
        "B_wo": _B_in["wo"],
    }

def reference(A_x, A_k_cache, A_v_cache, A_wq, A_wo, B_x, B_k_cache, B_v_cache, B_wq, B_wo):
    def _A_ref(x, k_cache, v_cache, wq, wo):
        B, Sq, D = x.shape
        Hq, Dh = 32, 128
        Hkv = k_cache.shape[1]
        rep = Hq // Hkv
        q = (lambda x, *d: x.permute(*d))((x @ wq).reshape(B, Sq, Hq, Dh), 0, 2, 1, 3)
        k = (lambda x, n, axis: torch.repeat_interleave(x, n, dim=axis))(k_cache, rep, axis=1)
        v = (lambda x, n, axis: torch.repeat_interleave(x, n, dim=axis))(v_cache, rep, axis=1)
        scores = torch.einsum("bhqd,bhkd->bhqk", q, k) * (Dh ** -0.5)
        p = _softmax(scores, axis=-1)
        o = torch.einsum("bhqk,bhkd->bhqd", p, v)
        return (lambda x, *d: x.permute(*d))(o, 0, 2, 1, 3).reshape(B, Sq, Hq * Dh) @ wo

    def _B_ref(x, k_cache, v_cache, wq, wo):
        B, Sq, D = x.shape
        H, Dh = 32, 128
        q = (lambda x, *d: x.permute(*d))((x @ wq).reshape(B, Sq, H, Dh), 0, 2, 1, 3)
        scores = torch.einsum("bhqd,bhkd->bhqk", q, k_cache) * (Dh ** -0.5)
        p = _softmax(scores, axis=-1)
        o = torch.einsum("bhqk,bhkd->bhqd", p, v_cache)
        return (lambda x, *d: x.permute(*d))(o, 0, 2, 1, 3).reshape(B, Sq, H * Dh) @ wo

    a = _A_ref(A_x, A_k_cache, A_v_cache, A_wq, A_wo)
    b = _B_ref(B_x, B_k_cache, B_v_cache, B_wq, B_wo)
    return torch.concatenate([a, b], axis=-1)
```

```python
import re

def vr(a, n=1):
    return f"v{a}" if n == 1 else f"v[{a}:{a+n-1}]"
def sr(a, n=1):
    return f"s{a}" if n == 1 else f"s[{a}:{a+n-1}]"

_REG = re.compile(r"(?<![\w.])([vs])(?:(\d+)|\[(\d+):(\d+)\])(?![\w])")
def regs_of(op):
    out = []
    for m in _REG.finditer(op):
        k = m.group(1)
        if m.group(2) is not None:
            out.append((k, int(m.group(2))))
        else:
            out += [(k, i) for i in range(int(m.group(3)), int(m.group(4)) + 1)]
    if re.search(r"\bvcc\b", op): out.append(("s", "vcc"))
    if re.search(r"\bm0\b", op): out.append(("s", "m0"))
    if re.search(r"\bexec\b", op): out.append(("s", "exec"))
    return out

TRANS = ("v_exp_f32", "v_log_f32", "v_rcp_f32", "v_rsq_f32", "v_sqrt_f32")

class Asm:
    def __init__(self):
        self.lines = []
        self.reset_hazards()
        self.vm = []
        self.nops = 0
    def reset_hazards(self):
        self.t = 0
        self.valu_w = {}
        self.trans_w = {}
        self.mfma_w = {}
        self.mfma_c = {}
        self.valu_sw = {}
        self.salu_m0 = -100
        self.store_d = {}
        self.exec_w = -100
    def raw(self, s):
        self.lines.append(s)
    def comment(self, s):
        self.lines.append("; " + s)
    def label(self, name, fence=True):
        self.lines.append(name + ":")
    def nop(self, n):
        while n > 0:
            k = min(n, 16)
            self.lines.append(f"s_nop {k-1}")
            self.t += k; n -= k; self.nops += 1
    def fence(self):
        need = 0
        for r, (t, p) in self.mfma_w.items(): need = max(need, t + self._mw(p) + 1 - self.t)
        for r, (t, p) in self.mfma_c.items(): need = max(need, t + self._mc(p) + 1 - self.t)
        need = max(need, 5 if (self.valu_w or self.valu_sw) else 0)
        self.nop(need)
        self.reset_keep_t()
    def reset_keep_t(self):
        t = self.t; self.reset_hazards(); self.t = t
    @staticmethod
    def _mw(p): return {4: 8, 8: 12}[p]
    @staticmethod
    def _mc(p): return {4: 3, 8: 7}[p]
    def __call__(self, s, tag=None):
        for line in s.split("\n"):
            line = line.strip()
            if line:
                self._emit(line, tag)
    def _emit(self, line, tag):
        code = line.split(";")[0].strip()
        if not code:
            self.lines.append(line); return
        if code.endswith(":"):
            self.lines.append(line); return
        parts = code.split(None, 1)
        mn = parts[0]; ops = [o.strip() for o in parts[1].split(",")] if len(parts) > 1 else []
        is_mfma = mn.startswith("v_mfma")
        is_valu = mn.startswith("v_") and not is_mfma
        is_ds = mn.startswith("ds_")
        is_vmem = mn.startswith(("buffer_", "global_"))
        is_salu = mn.startswith("s_")
        dst, src = [], []
        if is_mfma:
            dst = regs_of(ops[0]); src = regs_of(ops[1]) + regs_of(ops[2]); srcc = regs_of(ops[3])
        elif is_valu:
            if mn.startswith("v_permlane32_swap") or mn.startswith("v_permlane16_swap") or mn.startswith("v_swap"):
                dst = regs_of(ops[0]) + regs_of(ops[1]); src = list(dst)
            elif mn.startswith("v_cmp"):
                dst = regs_of(ops[0]); src = sum((regs_of(o) for o in ops[1:]), [])
            elif "_co_" in mn:
                dst = regs_of(ops[0]) + regs_of(ops[1]); src = sum((regs_of(o) for o in ops[2:]), [])
            else:
                dst = regs_of(ops[0]); src = sum((regs_of(o) for o in ops[1:]), [])
                if mn.startswith(("v_fmac", "v_pk_fmac", "v_writelane")): src += dst
        elif is_ds:
            if mn.startswith("ds_read") or mn.startswith("ds_bpermute"):
                dst = regs_of(ops[0]); src = sum((regs_of(o) for o in ops[1:]), [])
            else:
                src = sum((regs_of(o) for o in ops), [])
        elif is_vmem:
            lds = re.search(r"\blds\b", code) is not None
            if "load" in mn and not lds:
                dst = regs_of(ops[0]); src = sum((regs_of(o) for o in ops[1:]), [])
            elif "atomic" in mn and re.search(r"\bsc0\b", code):
                if mn.startswith("global"):
                    dst = regs_of(ops[0]); src = sum((regs_of(o) for o in ops[1:]), [])
                else:
                    dst = regs_of(ops[0]); src = sum((regs_of(o) for o in ops), [])
            else:
                src = sum((regs_of(o) for o in ops), [])
            if lds: src.append(("s", "m0"))
        elif is_salu:
            if mn.startswith(("s_cmp", "s_waitcnt", "s_nop", "s_barrier", "s_branch", "s_cbranch", "s_endpgm", "s_sleep", "s_setprio", "s_setpc", "s_bitcmp")):
                src = sum((regs_of(o) for o in ops), [])
            else:
                dst = regs_of(ops[0]) if ops else []; src = sum((regs_of(o) for o in ops[1:]), [])
        need = 0
        def req(t0, dist):
            nonlocal need
            need = max(need, t0 + dist + 1 - self.t)
        vsrc = [r for k, r in src if k == "v"]; vdst = [r for k, r in dst if k == "v"]
        ssrc = [r for k, r in src if k == "s"]
        if is_mfma:
            passes = 8 if "32x32" in mn else 4
            c = [r for k, r in srcc if k == "v"]
            for r in vsrc + c:
                if r in self.valu_w: req(self.valu_w[r], 2)
            for r in vsrc:
                if r in self.mfma_w: req(self.mfma_w[r][0], self._mw(self.mfma_w[r][1]))
            for r in c + vdst:
                if r in self.mfma_w:
                    t0, p = self.mfma_w[r]
                    same = getattr(self, "mfma_last", {}).get(r) == (tuple(c), passes)
                    if not same: req(t0, {4: 6, 8: 10}[p])
            req(self.exec_w, 4)
        else:
            for r in vsrc + vdst:
                if r in self.mfma_w: req(self.mfma_w[r][0], self._mw(self.mfma_w[r][1]))
            if is_valu:
                for r in vdst:
                    if r in self.mfma_c: req(self.mfma_c[r][0], self._mc(self.mfma_c[r][1]))
                    if r in self.store_d: req(self.store_d[r], 2)
                if mn not in TRANS and not mn.startswith(TRANS):
                    for r in vsrc:
                        if r in self.trans_w: req(self.trans_w[r], 1)
                if mn.startswith(("v_permlane",)) or "dpp" in code or "row_" in code or "quad_perm" in code:
                    for r in vsrc:
                        if r in self.valu_w: req(self.valu_w[r], 2)
                if mn.startswith(("v_readlane", "v_readfirstlane")):
                    for r in vsrc:
                        if r in self.valu_w: req(self.valu_w[r], 1)
                for r in ssrc:
                    if r in self.valu_sw: req(self.valu_sw[r], 2)
            if is_ds or is_vmem:
                for r in vdst:
                    if r in self.store_d: req(self.store_d[r], 1)
                    if r in self.mfma_c: req(self.mfma_c[r][0], self._mc(self.mfma_c[r][1]))
                for r in vsrc:
                    if r in self.trans_w: req(self.trans_w[r], 1)
            if is_vmem:
                for r in ssrc:
                    if r in self.valu_sw: req(self.valu_sw[r], 5)
                if "m0" in ssrc: req(self.salu_m0, 1)
        if need > 0:
            self.nop(need)
        self.lines.append(line)
        t = self.t
        if mn == "s_nop":
            self.t += int(ops[0]) + 1
            return
        self.t += 1
        if is_mfma:
            if not hasattr(self, "mfma_last"): self.mfma_last = {}
            for r in vdst:
                self.mfma_w[r] = (t, passes); self.valu_w.pop(r, None); self.trans_w.pop(r, None)
                self.mfma_last[r] = (tuple(vdst), passes)
            for r in c: self.mfma_c[r] = (t, passes)
        elif is_valu:
            for r in vdst:
                self.valu_w[r] = t; self.mfma_w.pop(r, None)
                if mn.startswith(TRANS): self.trans_w[r] = t
                else: self.trans_w.pop(r, None)
            for k, r in dst:
                if k == "s": self.valu_sw[r] = t
            if mn.startswith("v_cmpx"): self.exec_w = t
        elif is_salu:
            for k, r in dst:
                if k == "s":
                    self.valu_sw.pop(r, None)
                    if r == "m0": self.salu_m0 = t
        else:
            for r in vdst:
                self.valu_w.pop(r, None); self.trans_w.pop(r, None); self.mfma_w.pop(r, None)
        if is_vmem:
            if ("store" in mn and ("x4" in mn or "x3" in mn)):
                dreg = regs_of(ops[0]) if mn.startswith("buffer") else regs_of(ops[1])
                for k, r in dreg:
                    if k == "v": self.store_d[r] = t
            self.vm.append(tag)
    def wait_vm(self, tag, lgkm=None):
        idx = max(i for i, x in enumerate(self.vm) if x == tag)
        n = len(self.vm) - 1 - idx
        assert n <= 63, n
        self(f"s_waitcnt vmcnt({n})" + (f" lgkmcnt({lgkm})" if lgkm is not None else ""))
        self.vm = self.vm[idx+1:]
    def has_vm(self, tag):
        return tag in self.vm
    def wait_vm_all(self):
        self("s_waitcnt vmcnt(0)"); self.vm = []
    def text(self):
        return "\n".join(self.lines) + "\n"
```

```python
import sys, math
from collections import deque
from asmlib import Asm, vr, sr

NAME = "concat_heads__gqa_block_cached__mha_block_cached__near_ridge"
HDR = open("cdna_kernels/" + NAME + ".s.ref").read().split("; Override launch")[0]

SRD = dict(xA=8, kA=12, vA=16, wqA=20, woA=24, xB=28, kB=32, vB=36, wqB=40, woB=44, out=48, dbg=52, ws=56)
SIZE = dict(xA=1<<19, kA=1<<23, vA=1<<23, wqA=1<<23, woA=1<<23, xB=1<<19, kB=1<<26, vB=1<<26, wqB=1<<23, woB=1<<23,
            out=1<<20, dbg=256, ws=1<<28)
ORDER = ["xA", "kA", "vA", "wqA", "woA", "xB", "kB", "vB", "wqB", "woB", "out", "dbg", "ws"]
sW = 3; sRB = 60; sT = 61; sT2 = 62; sT3 = 63
sX = 4; sJJ = 5; sBB = 6; sHB = 7
KA = 64
sP = 64
vL = 0
vD256 = 1; vD2048 = 5; vD8192 = 9
vN = 13
vT = 17; vTq = 21
vL16 = 25
vM = 26; vS = 28
vF = 30
vB1 = 62
vB2 = 126
vX0 = 254; vX1 = 255
SPARE = 131072
QX = SPARE
ML = SPARE + 16384
WS_O = 0
WS_FLAG = 4 << 20
WS_TS = 8 << 20
SCALE = math.log2(math.e) / math.sqrt(128.0)

def f2u(x):
    import struct
    return struct.unpack("<I", struct.pack("<f", x))[0]

class Gen:
    def __init__(self, cfg):
        self.cfg = cfg
        self.a = Asm()
        self.lbl = 0
    def newlabel(self, p="L"):
        self.lbl += 1
        return f"{p}_{self.lbl}"
    def start_role(self):
        self.q = deque(); self.nissued = 0; self.nqueued = 0
        self.busy = [False]*4
        self.a.vm = []
        self.nstamp = 0
    def queue(self, fn):
        i = self.nqueued; self.nqueued += 1
        self.q.append((i, fn)); return i
    def issue(self, maxn=4):
        n = 0
        while self.q and n < maxn:
            i, fn = self.q[0]
            s = i % 4
            if self.busy[s]: break
            self.q.popleft(); self.busy[s] = True
            fn(s, ("sub", i)); n += 1
        return n
    def free(self, i):
        self.busy[i % 4] = False
    def dma(self, buf, vset, slot, tag, flags):
        a = self.a
        a(f"s_add_u32 m0, s{sRB}, {slot*4096}")
        for i in range(4):
            a(f"buffer_load_dwordx4 v{vset+i}, {sr(SRD[buf],4)}, s{sT} offen offset:{1024*i} {flags} lds", tag)
    def wait_sub(self, i):
        if ("sub", i) not in self.a.vm:
            assert i < self.nqueued and all(j != i for j, _ in self.q), f"sub {i} not issued"
            return
        self.a.wait_vm(("sub", i))
    def stamp(self, k):
        if not self.cfg.get("stamps"): return
        a = self.a
        a(f"s_memrealtime s[90:91]\ns_waitcnt lgkmcnt(0)")
        a(f"s_lshl_b32 s92, s2, 3\ns_add_u32 s92, s92, s{sW}\ns_lshl_b32 s92, s92, 7\ns_add_u32 s92, s92, {WS_TS + 8*k}")
        a(f"v_mov_b32 v{vX0}, s90\nv_mov_b32 v{vX1}, s91")
        a(f"s_mov_b64 exec, 1\nbuffer_store_dwordx2 v[{vX0}:{vX1}], off, {sr(SRD['ws'],4)}, s92\ns_mov_b64 exec, -1", ("stamp", k))
        a("s_nop 1")
    def t_block(self, i, taddr, mf):
        a = self.a; slot = i % 4; F = vF + 16*(i & 1)
        self.wait_sub(i)
        for ks in range(2):
            for ct in range(2):
                for u in range(2):
                    a(f"ds_read_b64_tr_b16 {vr(F + 8*ks + 4*ct + 2*u, 2)}, v{taddr + 2*ct + u} offset:{slot*4096 + ks*2048}")
        k = 0
        for ks in range(2):
            for ct in range(2):
                k += 1
                a(f"s_waitcnt lgkmcnt({8 - 2*k})")
                mf(ks, ct, F + 8*ks + 4*ct)
        self.free(i)
    def mfma(self, d, A, B, zero=False):
        self.a(f"v_mfma_f32_32x32x16_bf16 {vr(d,16)}, {vr(A,4)}, {vr(B,4)}, {'0' if zero else vr(d,16)}")
    def pack(self, dst, src, n):
        for k in range(n):
            self.a(f"v_cvt_pk_bf16_f32 v{dst+k}, v{src+2*k}, v{src+2*k+1}")
    def queue_qproj(self, n, xb, wb, sBat, sHead, sRot, sChx, p):
        a = self.a; fl = self.cfg["fl_w"]
        if n == 1:
            a(f"s_lshl_b32 s{p}, s{sBat}, 16\ns_lshl_b32 s{sT}, s{sW}, 8\ns_add_u32 s{p}, s{p}, s{sT}")
            a(f"s_lshl_b32 s{p+1}, s{sW}, 20\ns_lshl_b32 s{sT}, s{sHead}, 8\ns_add_u32 s{p+1}, s{p+1}, s{sT}")
            ng = 4
        else:
            a(f"s_and_b32 s{sT2}, s{sW}, 3\ns_lshl_b32 s{p}, s{sBat}, 16\ns_lshl_b32 s{sT}, s{sT2}, 9\ns_add_u32 s{p}, s{p}, s{sT}")
            a(f"s_lshr_b32 s{sT}, s{sW}, 2\ns_add_u32 s{sT}, s{sT}, s{sHead}\ns_lshl_b32 s{sT}, s{sT}, 8\ns_lshl_b32 s{p+1}, s{sT2}, 21\ns_add_u32 s{p+1}, s{p+1}, s{sT}")
            ng = 8
        xs = []
        for k in range(ng // 2):
            def fx(slot, tag, k=k):
                if n == 1:
                    a(f"s_add_u32 s{sT}, s{p}, {128*k}")
                else:
                    a(f"s_add_u32 s{sT}, s{sRot}, {2*k}\ns_and_b32 s{sT}, s{sT}, 7\ns_lshl_b32 s{sT}, s{sT}, 6\ns_add_u32 s{sT}, s{sT}, s{p}")
                self.dma(xb, vD2048, slot, tag, self.cfg["fl_x"])
            xs.append(self.queue(fx))
        wsub = []
        for g in range(ng):
            for ch in range(2):
                def fw(slot, tag, g=g, ch=ch):
                    a(f"s_add_u32 s{sT}, s{sRot}, {g}\ns_and_b32 s{sT}, s{sT}, {ng-1}\ns_lshl_b32 s{sT}, s{sT}, 18\ns_add_u32 s{sT}, s{sT}, s{p+1}")
                    if n == 1:
                        a(f"s_xor_b32 s{sT2}, s{sChx}, {ch}\ns_lshl_b32 s{sT2}, s{sT2}, 7\ns_add_u32 s{sT}, s{sT}, s{sT2}")
                    elif ch:
                        a(f"s_add_u32 s{sT}, s{sT}, 128")
                    self.dma(wb, vD8192, slot, tag, fl)
                wsub.append(self.queue(fw))
        return xs, wsub
    def run_qproj(self, n, subs, sRot, sChx, after_first_barrier=None):
        a = self.a; xs, wsub = subs; ng = 4*n
        X = vB1; ACC = vB2
        self.issue()
        if n == 1:
            self.wait_sub(xs[1])
            s0 = xs[0] % 4
            for g in range(4):
                a(f"s_add_u32 s{sT}, s{sRot}, {g}\ns_and_b32 s{sT2}, s{sT}, 1\ns_lshl_b32 s{sT2}, s{sT2}, 6\ns_bfe_u32 s{sT}, s{sT}, 0x10001")
                a(f"s_add_u32 s{sT}, s{sT}, {s0}\ns_lshl_b32 s{sT}, s{sT}, 12\ns_add_u32 s{sT}, s{sT}, s{sT2}")
                for ks in range(2):
                    a(f"v_xor_b32 v{vF+2*g+ks}, s{sT}, v{vN+ks}")
            for g in range(4):
                for ks in range(2):
                    a(f"ds_read_b128 {vr(X + 8*g + 4*ks, 4)}, v{vF+2*g+ks}")
            a("s_waitcnt lgkmcnt(0)")
            self.free(xs[0]); self.free(xs[1]); self.issue()
        else:
            for k in range(4):
                self.wait_sub(xs[k])
                for s in range(4):
                    a(f"ds_read_b128 {vr(X + 16*k + 4*s, 4)}, v{vN+s} offset:{(xs[k]%4)*4096}")
                a("s_waitcnt lgkmcnt(0)")
                self.free(xs[k]); self.issue()
        last = len(wsub) - 1
        for t, i in enumerate(wsub):
            g, ch = t >> 1, t & 1
            self.t_block(i, vTq, lambda ks, ct, A: self.mfma(ACC + 16*(2*ch+ct), A, X + 8*g + 4*ks, zero=(g == 0 and ks == 0)))
            if t >= last - 1:
                self.busy[i % 4] = True
            else:
                self.issue()
        rs = wsub[last-1] % 4
        assert rs in (0, 2)
        PK = vB2 + 64
        self.pack(PK, ACC, 32)
        if n == 1:
            a(f"s_lshl_b32 s{sT}, s{sChx}, 12\ns_add_u32 s{sT}, s{sT}, s{sRB}\nv_add_u32 v{vX0}, s{sT}, v{vL16}\nv_xor_b32 v{vX1}, 0x1000, v{vX0}")
            for f in range(8):
                a(f"ds_write_b128 v{vX0 if f < 4 else vX1}, {vr(PK+4*f,4)} offset:{rs*4096 + (f&3)*1024}")
        else:
            a(f"v_add_u32 v{vX0}, s{sRB}, v{vL16}")
            for f in range(8):
                a(f"ds_write_b128 v{vX0}, {vr(PK+4*f,4)} offset:{rs*4096 + f*1024}")
        a("s_waitcnt lgkmcnt(0)\ns_barrier")
        if after_first_barrier: after_first_barrier()
        R = vB2; SUM = vB2 + 32
        if n == 1:
            a(f"s_lshl_b32 s{sT}, s{sW}, 10\nv_add_u32 v{vX0}, s{sT}, v{vL16}\nv_add_u32 v{vX1}, 0x10000, v{vX0}")
            for p in range(8):
                a(f"ds_read_b128 {vr(R+4*p,4)}, v{vX0 if p < 4 else vX1} offset:{(p&3)*16384 + rs*4096}")
            groups = [list(range(8))]
        else:
            a(f"s_lshr_b32 s{sT}, s{sW}, 2\ns_lshl_b32 s{sT}, s{sT}, 16\ns_and_b32 s{sT2}, s{sW}, 3\ns_lshl_b32 s{sT2}, s{sT2}, 11\ns_add_u32 s{sT}, s{sT}, s{sT2}")
            a(f"v_add_u32 v{vX0}, s{sT}, v{vL16}")
            for e in range(2):
                for p in range(4):
                    a(f"ds_read_b128 {vr(R+16*e+4*p,4)}, v{vX0} offset:{p*16384 + rs*4096 + e*1024}")
            groups = [[0,1,2,3], [4,5,6,7]]
        a(f"s_mov_b32 s{sT3}, {f2u(SCALE):#x}\ns_mov_b32 s{sT2}, 0xffff0000")
        cnt = 8
        for e, grp in enumerate(groups):
            S_ = SUM + 8*e
            for k, p in enumerate(grp):
                cnt -= 1
                a(f"s_waitcnt lgkmcnt({cnt})")
                for j in range(4):
                    r = R + 4*p + j
                    if k == 0:
                        a(f"v_lshlrev_b32 v{S_+2*j}, 16, v{r}\nv_and_b32 v{S_+2*j+1}, s{sT2}, v{r}")
                    else:
                        a(f"v_lshlrev_b32 v{vX1}, 16, v{r}\nv_and_b32 v{r}, s{sT2}, v{r}\nv_add_f32 v{S_+2*j}, v{S_+2*j}, v{vX1}\nv_add_f32 v{S_+2*j+1}, v{S_+2*j+1}, v{r}")
            for j in range(8):
                a(f"v_mul_f32 v{S_+j}, s{sT3}, v{S_+j}")
            self.pack(SUM + 16 + 4*e, S_, 4)
        a(f"s_lshl_b32 s{sT}, s{sW}, {10 if n == 1 else 11}\ns_add_u32 s{sT}, s{sT}, {QX}\nv_add_u32 v{vX0}, s{sT}, v{vL16}")
        for e in range(len(groups)):
            a(f"ds_write_b128 v{vX0}, {vr(SUM+16+4*e,4)} offset:{e*1024}")
        a("s_waitcnt lgkmcnt(0)\ns_barrier")
        self.busy[rs] = self.busy[rs+1] = False
        self.issue()
        a(f"v_add_u32 v{vX0}, {QX}, v{vL16}")
        for f in range(8*n):
            if f == 12: a("s_waitcnt lgkmcnt(4)")
            a(f"ds_read_b128 {vr(vB1+4*f,4)}, v{vX0} offset:{f*1024}")
        a("s_waitcnt lgkmcnt(0)")
    def queue_attn(self, kb, vb, sUnit, sRot, p, fl):
        a = self.a
        a(f"s_lshl_b32 s{p}, s{sUnit}, 18\ns_lshl_b32 s{sT}, s{sW}, 13\ns_add_u32 s{p}, s{p}, s{sT}")
        out = []
        for buf in (kb, vb):
            l = []
            for i in range(4):
                for dh in range(2):
                    def f(slot, tag, i=i, dh=dh, buf=buf):
                        if sRot is None:
                            a(f"s_add_u32 s{sT}, s{p}, {i*65536 + dh*128}")
                        else:
                            a(f"s_add_u32 s{sT}, s{sRot}, {i}\ns_and_b32 s{sT}, s{sT}, 3\ns_lshl_b32 s{sT}, s{sT}, 16\ns_add_u32 s{sT}, s{sT}, s{p}")
                            if dh: a(f"s_add_u32 s{sT}, s{sT}, 128")
                        self.dma(buf, vD256, slot, tag, fl)
                    l.append(self.queue(f))
            out.append(l)
        return out
    def softmax(self, hh):
        a = self.a; S_ = vB2 + 64*hh; P = vB1 + 32*hh; m = vM + hh; l = vS + hh
        T = vF
        for c in range(4):
            b = S_ + 16*c
            a(f"v_max3_f32 v{T+c}, v{b}, v{b+1}, v{b+2}")
        for k in range(6):
            for c in range(4):
                b = S_ + 16*c + 3 + 2*k
                a(f"v_max3_f32 v{T+c}, v{T+c}, v{b}, v{b+1}")
        for c in range(4):
            a(f"v_max_f32 v{T+c}, v{T+c}, v{S_+16*c+15}")
        a(f"v_max3_f32 v{T}, v{T}, v{T+1}, v{T+2}\nv_max_f32 v{m}, v{T}, v{T+3}\nv_mov_b32 v{T}, v{m}")
        a(f"v_permlane32_swap_b32 v{m}, v{T}\nv_max_f32 v{m}, v{m}, v{T}")
        for k in range(0, 64, 8):
            for j in range(8): a(f"v_sub_f32 v{S_+k+j}, v{S_+k+j}, v{m}")
            for j in range(8): a(f"v_exp_f32 v{S_+k+j}, v{S_+k+j}")
            for j in range(8):
                c = j & 3
                if k == 0 and j < 4: a(f"v_mov_b32 v{T+c}, v{S_+k+j}")
                else: a(f"v_add_f32 v{T+c}, v{T+c}, v{S_+k+j}")
            self.pack(P + k//2, S_ + k, 4)
        a(f"v_add_f32 v{T}, v{T}, v{T+1}\nv_add_f32 v{T+2}, v{T+2}, v{T+3}\nv_add_f32 v{l}, v{T}, v{T+2}\nv_mov_b32 v{T}, v{l}")
        a(f"v_permlane32_swap_b32 v{l}, v{T}\nv_add_f32 v{l}, v{l}, v{T}")
    def run_attn(self, n, subs, sOunit, sFlag, final=False):
        a = self.a; ks_, vs_ = subs
        self.issue()
        for t, i in enumerate(ks_):
            ti, dh = t >> 1, t & 1; slot = i % 4; F = vF + 16*(i & 1)
            self.wait_sub(i)
            for s in range(4):
                a(f"ds_read_b128 {vr(F+4*s,4)}, v{vN+s} offset:{slot*4096}")
            for s in range(4):
                a(f"s_waitcnt lgkmcnt({3-s})")
                for hh in range(n):
                    self.mfma(vB2 + 64*hh + 16*ti, F+4*s, vB1 + 32*hh + 16*dh + 4*s, zero=(dh == 0 and s == 0))
            self.free(i); self.issue()
        self.stamp(2 if n == 2 else 8)
        for hh in range(n):
            self.softmax(hh)
        a(f"v_and_b32 v{vX0}, 31, v{vL}\nv_lshlrev_b32 v{vX0}, 3, v{vX0}\ns_lshl_b32 s{sT}, s{sW}, 8\ns_add_u32 s{sT}, s{sT}, {ML}\nv_add_u32 v{vX1}, s{sT}, v{vX0}")
        for hh in range(n):
            a(f"v_mov_b32 v{vF}, v{vM+hh}\nv_mov_b32 v{vF+1}, v{vS+hh}\nds_write_b64 v{vX1}, {vr(vF,2)} offset:{hh*2048}\ns_waitcnt lgkmcnt(0)")
        self.stamp(3 if n == 2 else 9)
        last = len(vs_) - 1
        for t, i in enumerate(vs_):
            ti, dh = t >> 1, t & 1
            def mf(ks, ct, A):
                for hh in range(n):
                    self.mfma(vB2 + 64*hh + 16*(2*dh+ct), A, vB1 + 32*hh + 8*ti + 4*ks, zero=(ti == 0 and ks == 0))
            self.t_block(i, vT, mf)
            if t >= last - (2*n - 1):
                self.busy[i % 4] = True
            else:
                self.issue()
        self.stamp(4 if n == 2 else 10)
        rs = vs_[last - (2*n - 1)] % 4
        a(f"v_add_u32 v{vX0}, s{sRB}, v{vL16}")
        for hh in range(n):
            PK = vB1 + 32*hh
            self.pack(PK, vB2 + 64*hh, 32)
            for f in range(8):
                a(f"ds_write_b128 v{vX0}, {vr(PK+4*f,4)} offset:{((rs+2*hh)%4)*4096 + f*1024}")
        a("s_waitcnt lgkmcnt(0)\ns_barrier")
        a(f"s_lshl_b32 s{sT}, s{sW}, 10\nv_add_u32 v{vX0}, s{sT}, v{vL16}\nv_add_u32 v{vX1}, 0x10000, v{vX0}")
        a(f"v_and_b32 v{vF}, 31, v{vL}\nv_lshlrev_b32 v{vF}, 3, v{vF}\nv_add_u32 v{vF}, {ML}, v{vF}")
        a(f"s_mov_b32 s{sT2}, 0xffff0000")
        for hh in range(n):
            MLR = vB1 + 32*hh; R = vB2 + 64*hh
            for p in range(8):
                a(f"ds_read_b64 {vr(MLR+2*p,2)}, v{vF} offset:{hh*2048 + p*256}")
            for p in range(8):
                if p == 4: a("s_waitcnt lgkmcnt(4)")
                a(f"ds_read_b128 {vr(R+4*p,4)}, v{vX0 if p < 4 else vX1} offset:{(p&3)*16384 + ((rs+2*hh)%4)*4096}")
            G_ = MLR + 16; SUM = R + 32; T = R + 48
            a(f"v_max3_f32 v{T}, v{MLR}, v{MLR+2}, v{MLR+4}\nv_max3_f32 v{T+1}, v{MLR+6}, v{MLR+8}, v{MLR+10}\nv_max3_f32 v{T}, v{T}, v{MLR+12}, v{MLR+14}\nv_max_f32 v{T}, v{T}, v{T+1}")
            for p in range(8): a(f"v_sub_f32 v{G_+p}, v{MLR+2*p}, v{T}")
            for p in range(8): a(f"v_exp_f32 v{G_+p}, v{G_+p}")
            a(f"v_mul_f32 v{T}, v{G_}, v{MLR+1}\nv_mul_f32 v{T+1}, v{G_+1}, v{MLR+3}")
            for p in range(2, 8): a(f"v_fmac_f32 v{T+(p&1)}, v{G_+p}, v{MLR+2*p+1}")
            a(f"v_add_f32 v{T}, v{T}, v{T+1}\nv_rcp_f32 v{T}, v{T}")
            for p in range(8): a(f"v_mul_f32 v{G_+p}, v{G_+p}, v{T}")
            for p in range(8):
                a(f"s_waitcnt lgkmcnt({7-p})")
                for j in range(4):
                    r = R + 4*p + j
                    a(f"v_lshlrev_b32 v{T+2+j}, 16, v{r}\nv_and_b32 v{r}, s{sT2}, v{r}")
                for j in range(4):
                    r = R + 4*p + j
                    op = "v_mul_f32" if p == 0 else "v_fmac_f32"
                    a(f"{op} v{SUM+2*j}, v{G_+p}, v{T+2+j}\n{op} v{SUM+2*j+1}, v{G_+p}, v{r}")
            self.pack(SUM + 8, SUM, 4)
            a(f"s_lshl_b32 s{sT}, s{sW}, 10\ns_add_u32 s{sT}, s{sT}, s{sOunit}")
            if hh: a(f"s_add_u32 s{sT}, s{sT}, 8192")
            a(f"buffer_store_dwordx4 {vr(SUM+8,4)}, v{vL16}, {sr(SRD['ws'],4)}, s{sT} offen sc1", ("ostore", hh))
        if not final:
            a("s_barrier")
            for k in range(2*n): self.busy[(rs + k) % 4] = False
            self.issue()
        a.wait_vm(("ostore", n-1))
        a(f"v_mov_b32 v{vX0}, 1\ns_mov_b64 exec, 1")
        for hh in range(n):
            a(f"buffer_store_dword v{vX0}, off, {sr(SRD['ws'],4)}, s{sFlag} offset:{32*hh} sc1", "flag")
        a("s_mov_b64 exec, -1")
    def queue_wo(self, wb, nsub, head0, sRot, p, sCt):
        a = self.a
        a(f"s_lshl_b32 s{p}, s{sW}, 20\ns_lshl_b32 s{sT}, s{sCt}, 7\ns_add_u32 s{p}, s{p}, s{sT}")
        if head0: a(f"s_add_u32 s{p}, s{p}, {head0*128*2048}")
        l = []
        for t in range(nsub):
            def f(slot, tag, t=t):
                a(f"s_add_u32 s{sT}, s{sRot}, {t}\ns_and_b32 s{sT}, s{sT}, {nsub-1}\ns_lshl_b32 s{sT}, s{sT}, 16\ns_add_u32 s{sT}, s{sT}, s{p}")
                self.dma(wb, vD2048, slot, tag, self.cfg["fl_wo"])
            l.append(self.queue(f))
        return l
    def poll(self, sOff, lanes_lo, lanes_n):
        a = self.a; L = self.newlabel("L_poll"); D = self.newlabel("L_pdone")
        a(f"v_and_b32 v{vX0}, {lanes_n-1}, v{vL}\nv_lshlrev_b32 v{vX0}, 2, v{vX0}\ns_mov_b32 s{sT2}, 0")
        a.fence()
        a.label(L)
        a(f"buffer_load_dword v{vX1}, v{vX0}, {sr(SRD['ws'],4)}, s{sOff} offen offset:{lanes_lo*4} sc1", "poll")
        a("s_waitcnt vmcnt(0)"); a.vm = []
        a(f"v_cmp_ne_u32 vcc, 1, v{vX1}\ns_add_u32 s{sT2}, s{sT2}, 1\ns_nop 2\ns_cbranch_vccz {D}")
        a(f"s_cmp_lt_u32 s{sT2}, {self.cfg['spin']}\ns_cbranch_scc0 {D}\ns_sleep 2\ns_branch {L}")
        a.label(D)
    def poll_cleared(self):
        a = self.a; L = self.newlabel("L_pollc"); D = self.newlabel("L_pcdone")
        a(f"s_mov_b32 s{sT2}, 0")
        a.fence()
        a.label(L)
        a(f"buffer_load_dword v{vX1}, off, {sr(SRD['dbg'],4)}, 0 sc1", "poll")
        a("s_waitcnt vmcnt(0)"); a.vm = []
        a(f"v_cmp_gt_u32 vcc, 0x100, v{vX1}\ns_add_u32 s{sT2}, s{sT2}, 1\ns_nop 2\ns_cbranch_vccz {D}")
        a(f"s_cmp_lt_u32 s{sT2}, {self.cfg['spin']}\ns_cbranch_scc0 {D}\ns_sleep 2\ns_branch {L}")
        a.label(D)
    def load_o(self, dst, nsub, sBase, sRot, tagp):
        a = self.a
        for t in range(nsub):
            a(f"s_add_u32 s{sT}, s{sRot}, {t}\ns_and_b32 s{sT}, s{sT}, {nsub-1}\ns_lshl_b32 s{sT}, s{sT}, 11\ns_add_u32 s{sT}, s{sT}, s{sBase}")
            for ks in range(2):
                a(f"buffer_load_dwordx4 {vr(dst + 8*t + 4*ks, 4)}, v{vL16}, {sr(SRD['ws'],4)}, s{sT} offen offset:{ks*1024} sc1", (tagp, t))
    def run_oproj(self, subs, O, ACC, tagp, zero_first, keep_last):
        last = len(subs) - 1
        for t, i in enumerate(subs):
            if self.a.has_vm((tagp, t)): self.a.wait_vm((tagp, t))
            self.t_block(i, vT, lambda ks, ct, A: self.mfma(ACC + 16*ct, A, O + 8*t + 4*ks, zero=(zero_first and t == 0 and ks == 0)))
            if keep_last and t >= last - 1:
                self.busy[i % 4] = True
            else:
                self.issue()
        return subs[last-1] % 4
    def out_reduce(self, ACC, rs, TMP, sOutOff, final):
        a = self.a
        a(f"v_lshrrev_b32 v{vX1}, 5, v{vL}\nv_and_b32 v{vX0}, 31, v{vL}\nv_xor_b32 v{vX0}, v{vX0}, v{vX1}\nv_lshlrev_b32 v{vX0}, 4, v{vX0}")
        a(f"v_lshlrev_b32 v{vX1}, 9, v{vX1}\nv_add3_u32 v{vX0}, v{vX0}, v{vX1}, s{sRB}")
        for i in range(8):
            if i: a(f"v_xor_b32 v{vF+i}, {32*i}, v{vX0}")
        for i in range(8):
            a(f"ds_write_b128 v{vF+i if i else vX0}, {vr(ACC+4*i,4)} offset:{rs*4096 + i*1024}")
        a(f"v_lshrrev_b32 v{vF+8}, 4, v{vL}\ns_lshl_b32 s{sT}, s{sW}, 2\nv_add_u32 v{vF+8}, s{sT}, v{vF+8}\nv_and_b32 v{vF+9}, 15, v{vL}")
        a(f"v_xor_b32 v{vF+10}, v{vF+8}, v{vF+9}\nv_lshlrev_b32 v{vF+10}, 4, v{vF+10}\nv_lshlrev_b32 v{vF+11}, 9, v{vF+9}\nv_add_u32 v{vX0}, v{vF+10}, v{vF+11}\nv_add_u32 v{vX1}, 0x10000, v{vX0}")
        a(f"v_lshlrev_b32 v{vF+8}, 12, v{vF+8}\nv_lshlrev_b32 v{vF+9}, 3, v{vF+9}\nv_add_u32 v{vF+8}, v{vF+8}, v{vF+9}")
        a("s_waitcnt lgkmcnt(0)\ns_barrier")
        for p in range(8):
            a(f"ds_read_b128 {vr(TMP+4*p,4)}, v{vX0 if p < 4 else vX1} offset:{(p&3)*16384 + rs*4096}")
        for p in range(1, 8):
            a(f"s_waitcnt lgkmcnt({7-p})")
            for j in range(4):
                a(f"v_add_f32 v{TMP+j}, v{TMP+j}, v{TMP+4*p+j}")
        self.pack(TMP + 4, TMP, 2)
        a(f"buffer_store_dwordx2 {vr(TMP+4,2)}, v{vF+8}, {sr(SRD['out'],4)}, s{sOutOff} offen", "out")
        if not final:
            a("s_barrier")
            self.busy[rs] = self.busy[rs+1] = False
            self.issue()
    def prologue(self):
        a = self.a
        a("s_cmp_ge_u32 s2, 256\ns_cbranch_scc1 L_end")
        a(f"s_load_dwordx16 s[{KA}:{KA+15}], s[0:1], 0\ns_load_dwordx8 s[{KA+16}:{KA+23}], s[0:1], 64\ns_load_dwordx2 s[{KA+24}:{KA+25}], s[0:1], 96")
        a(f"v_lshrrev_b32 v1, 6, v0\nv_and_b32 v{vL}, 63, v0\nv_readfirstlane_b32 s{sW}, v1")
        for k in ORDER:
            a(f"s_mov_b32 s{SRD[k]+2}, {SIZE[k]:#x}\ns_mov_b32 s{SRD[k]+3}, 0x20000")
        a(f"s_lshl_b32 s{sRB}, s{sW}, 14\ns_and_b32 s{sX}, s2, 7\ns_bfe_u32 s{sJJ}, s2, 0x40003\ns_lshr_b32 s{sBB}, s{sJJ}, 1")
        a(f"v_lshlrev_b32 v{vL16}, 4, v{vL}")
        t0, t1, t2 = vF, vF+1, vF+2
        a(f"v_bfe_u32 v{t0}, v{vL}, 4, 1\nv_lshlrev_b32 v{t0}, 2, v{t0}\nv_lshrrev_b32 v{t1}, 5, v{vL}\nv_or_b32 v{t0}, v{t0}, v{t1}")
        a(f"v_and_b32 v{t1}, 7, v{vL}\nv_xor_b32 v{t0}, v{t0}, v{t1}\nv_lshlrev_b32 v{t0}, 4, v{t0}")
        a(f"v_xor_b32 v{t1}, 32, v{t0}\nv_lshrrev_b32 v{t2}, 3, v{vL}")
        for vs, lg in ((vD2048, 11), (vD8192, 13), (vD256, 8)):
            for i in range(4):
                a(f"v_lshl_add_u32 v{vs+i}, v{t2}, {lg}, v{t1 if i & 1 else t0}")
                if i: a(f"v_add_u32 v{vs+i}, {(8*i << lg) - 1024*i}, v{vs+i}")
    def copy_ptrs(self, names):
        for k in names:
            o = KA + 2*ORDER.index(k)
            self.a(f"s_mov_b32 s{SRD[k]}, s{o}\ns_mov_b32 s{SRD[k]+1}, s{o+1}")
    def read_addrs(self):
        a = self.a; t0, t1, t2, t3 = vF, vF+1, vF+2, vF+3
        a(f"v_bfe_u32 v{t0}, v{vL}, 1, 1\nv_lshlrev_b32 v{t0}, 2, v{t0}\nv_bfe_u32 v{t1}, v{vL}, 2, 2\nv_or_b32 v{t0}, v{t0}, v{t1}")
        a(f"v_lshrrev_b32 v{t1}, 5, v{vL}\nv_xor_b32 v{t0}, v{t0}, v{t1}\nv_lshlrev_b32 v{t0}, 4, v{t0}")
        a(f"v_and_b32 v{t1}, 31, v{vL}\nv_lshl_add_u32 v{t0}, v{t1}, 7, v{t0}\nv_add_u32 v{vN}, s{sRB}, v{t0}")
        for s in range(1, 4): a(f"v_xor_b32 v{vN+s}, {32*s}, v{vN}")
        for base, nat in ((vT, False), (vTq, True)):
            if nat:
                a(f"v_and_b32 v{t0}, 1, v{vL}\nv_bfe_u32 v{t1}, v{vL}, 1, 1")
            else:
                a(f"v_bfe_u32 v{t0}, v{vL}, 1, 1\nv_and_b32 v{t1}, 1, v{vL}")
            a(f"v_bfe_u32 v{t2}, v{vL}, 4, 1\nv_lshl_add_u32 v{t0}, v{t2}, 1, v{t0}")
            a(f"v_bfe_u32 v{t2}, v{vL}, 3, 1\nv_lshlrev_b32 v{t2}, 2, v{t2}\nv_xor_b32 v{t0}, v{t0}, v{t2}")
            a(f"v_lshrrev_b32 v{t2}, 5, v{vL}")
            if nat: a(f"v_lshlrev_b32 v{t3}, 1, v{t2}\nv_xor_b32 v{t0}, v{t0}, v{t3}")
            else:   a(f"v_xor_b32 v{t0}, v{t0}, v{t2}")
            a(f"v_lshlrev_b32 v{t0}, 4, v{t0}\nv_lshl_add_u32 v{t0}, v{t1}, 3, v{t0}")
            a(f"v_bfe_u32 v{t1}, v{vL}, 2, 2\nv_lshl_add_u32 v{t1}, v{t2}, {3 if nat else 2}, v{t1}")
            a(f"v_lshl_add_u32 v{t0}, v{t1}, 7, v{t0}\nv_add_u32 v{base}, s{sRB}, v{t0}")
            ux, ur = (16, 4*128) if nat else (32, 8*128)
            a(f"v_xor_b32 v{base+1}, {ux}, v{base}\nv_add_u32 v{base+1}, {ur}, v{base+1}")
            a(f"v_xor_b32 v{base+2}, 64, v{base}\nv_xor_b32 v{base+3}, 64, v{base+1}")
    def flag_off(self, dst, branch, sB, sH):
        a = self.a
        a(f"s_lshl_b32 s{dst}, s{sB}, 10\ns_lshl_b32 s{sT}, s{sH}, 5\ns_add_u32 s{dst}, s{dst}, s{sT}\ns_add_u32 s{dst}, s{dst}, {WS_FLAG + branch*8192}")
    def clear_flags(self, offs):
        a = self.a; L = self.newlabel("L_clr")
        a(f"s_cmp_lg_u32 s{sW}, 0\ns_cbranch_scc1 {L}")
        a(f"v_lshlrev_b32 v{vX0}, 2, v{vL}\nv_mov_b32 v{vX1}, 0")
        for s, nl in offs:
            a(f"s_mov_b64 exec, {(1 << nl) - 1:#x}\nbuffer_store_dword v{vX1}, v{vX0}, {sr(SRD['ws'],4)}, s{s} offen sc1")
            a.vm.pop()
        a("s_mov_b64 exec, -1")
        a.label(L)
    def signal_cleared(self):
        a = self.a; L = self.newlabel("L_sig")
        a(f"s_cmp_lg_u32 s{sW}, 0\ns_cbranch_scc1 {L}")
        a(f"v_mov_b32 v{vX1}, 1\ns_mov_b64 exec, 1\nbuffer_atomic_add v{vX1}, off, {sr(SRD['dbg'],4)}, 0 sc1\ns_mov_b64 exec, -1")
        a.vm.pop()
        a.label(L)
    def role_common_B(self):
        pass
    def role_S(self):
        a = self.a; c = self.cfg
        self.start_role()
        P = sP
        a(f"s_and_b32 s{sT}, s{sJJ}, 1\ns_lshl_b32 s{sHB}, s{sX}, 2\ns_add_u32 s{sHB}, s{sHB}, s{sT}")
        a("s_waitcnt lgkmcnt(0)")
        self.copy_ptrs(ORDER)
        sRot, sChx, sUnit, sO, sFl, sCt, sRotA, sOA, sOB, sFA, sFB, sOut = range(P, P + 12)
        pq, pa, pw1, pw2, pw3 = P+12, P+14, P+15, P+16, P+17
        a(f"s_and_b32 s{sRot}, s{sBB}, 3\ns_lshr_b32 s{sChx}, s{sBB}, 2")
        self.flag_off(sFl, 1, sBB, sHB)
        self.clear_flags([(sFl, 8)])
        self.stamp(0)
        q = self.queue_qproj(1, "xB", "wqB", sBB, sHB, sRot, sChx, pq)
        self.issue()
        self.read_addrs()
        a(f"s_lshl_b32 s{sUnit}, s{sBB}, 5\ns_add_u32 s{sUnit}, s{sUnit}, s{sHB}")
        a(f"s_lshl_b32 s{sO}, s{sUnit}, 13\ns_add_u32 s{sO}, s{sO}, {WS_O + (2 << 20)}")
        a(f"s_lshl_b32 s{sT}, s{sW}, 2\ns_add_u32 s{sFl}, s{sFl}, s{sT}")
        at = self.queue_attn("kB", "vB", sUnit, None, pa, c["fl_kvB"])
        a(f"s_and_b32 s{sT}, s{sJJ}, 1\ns_lshl_b32 s{sCt}, s{sX}, 1\ns_add_u32 s{sCt}, s{sCt}, s{sT}\ns_lshl_b32 s{sRotA}, s{sBB}, 1")
        if c["oproj"]:
            wA = self.queue_wo("woA", 16, 0, sRotA, pw1, sCt)
            wB1 = self.queue_wo("woB", 8, 0, sBB, pw2, sCt)
            wB2 = self.queue_wo("woB", 8, 2, sBB, pw3, sCt)
        self.run_qproj(1, q, sRot, sChx, self.signal_cleared)
        self.stamp(7)
        self.run_attn(1, at, sO, sFl, final=not c["oproj"])
        self.stamp(11)
        if c["oproj"]:
            a(f"s_lshl_b32 s{sOA}, s{sBB}, 18\ns_lshl_b32 s{sT}, s{sW}, 15\ns_add_u32 s{sOA}, s{sOA}, s{sT}\ns_add_u32 s{sOB}, s{sOA}, {2 << 20}")
            a(f"s_lshl_b32 s{sFA}, s{sBB}, 10\ns_lshl_b32 s{sT}, s{sW}, 7\ns_add_u32 s{sFA}, s{sFA}, s{sT}\ns_add_u32 s{sFA}, s{sFA}, {WS_FLAG}\ns_add_u32 s{sFB}, s{sFA}, 8192")
            a(f"s_lshl_b32 s{sOut}, s{sBB}, 17\ns_lshl_b32 s{sT}, s{sCt}, 7\ns_add_u32 s{sOut}, s{sOut}, s{sT}")
            ACC = vB1; O = vB2
            self.poll_cleared()
            self.poll(sFA, 0, 32)
            self.stamp(12)
            self.load_o(O, 16, sOA, sRotA, "oa")
            rs = self.run_oproj(wA, O, ACC, "oa", True, True)
            self.stamp(13)
            self.out_reduce(ACC, rs, vB2, sOut, False)
            self.poll(sFB, 0, 16)
            self.stamp(14)
            self.load_o(O, 8, sOB, sBB, "ob")
            self.run_oproj(wB1, O, ACC, "ob", True, False)
            W = vB2
            for t, i in enumerate(wB2):
                self.wait_sub(i)
                for ks in range(2):
                    for ct in range(2):
                        for u in range(2):
                            a(f"ds_read_b64_tr_b16 {vr(W + 16*t + 8*ks + 4*ct + 2*u, 2)}, v{vT + 2*ct + u} offset:{(i%4)*4096 + ks*2048}")
                a("s_waitcnt lgkmcnt(0)")
                self.free(i); self.issue()
            self.stamp(15)
            self.poll(sFB, 16, 16)
            a(f"s_add_u32 s{sOB}, s{sOB}, 16384\ns_add_u32 s{sOut}, s{sOut}, 2048")
            def oreg(t): return (vB1 + 32 + 8*t) if t < 4 else (vF + 8*(t-4))
            for t in range(8):
                a(f"s_add_u32 s{sT}, s{sBB}, {t}\ns_and_b32 s{sT}, s{sT}, 7\ns_lshl_b32 s{sT}, s{sT}, 11\ns_add_u32 s{sT}, s{sT}, s{sOB}")
                for ks in range(2):
                    a(f"buffer_load_dwordx4 {vr(oreg(t) + 4*ks, 4)}, v{vL16}, {sr(SRD['ws'],4)}, s{sT} offen offset:{ks*1024} sc1", ("oc", t, ks))
            for t in range(8):
                for ks in range(2):
                    a.wait_vm(("oc", t, ks))
                    for ct in range(2):
                        self.mfma(ACC + 16*ct, W + 16*t + 8*ks + 4*ct, oreg(t) + 4*ks)
            self.out_reduce(ACC, 0, vB2, sOut, True)
        self.stamp(1)
        a("s_endpgm")
        a.reset_keep_t()
    def role_G(self):
        a = self.a; c = self.cfg
        self.start_role()
        P = sP
        a(f"s_and_b32 s{sT}, s{sJJ}, 1\ns_lshl_b32 s{sHB}, s{sX}, 2\ns_add_u32 s{sHB}, s{sHB}, s{sT}\ns_add_u32 s{sHB}, s{sHB}, 2")
        a("s_waitcnt lgkmcnt(0)")
        self.copy_ptrs(ORDER)
        sRot, sChx, sUnit, sO, sFl, sBA, sHA, sRotW, sRotK, sUA, sOa, sFa = range(P, P + 12)
        pq, pa, pqa, paa = P+12, P+14, P+15, P+17
        a(f"s_and_b32 s{sT}, s{sX}, 1\ns_lshl_b32 s{sBA}, s{sT}, 2\ns_lshr_b32 s{sT}, s{sJJ}, 2\ns_add_u32 s{sBA}, s{sBA}, s{sT}\ns_lshl_b32 s{sRotW}, s{sT}, 1")
        a(f"s_and_b32 s{sRotK}, s{sJJ}, 3\ns_lshr_b32 s{sT2}, s{sX}, 1\ns_lshl_b32 s{sHA}, s{sT2}, 3\ns_lshl_b32 s{sT}, s{sRotK}, 1\ns_add_u32 s{sHA}, s{sHA}, s{sT}")
        a(f"s_lshl_b32 s{sUA}, s{sBA}, 2\ns_add_u32 s{sUA}, s{sUA}, s{sT2}")
        self.flag_off(sFl, 1, sBB, sHB)
        self.flag_off(sFa, 0, sBA, sHA)
        self.clear_flags([(sFl, 8), (sFa, 16)])
        self.stamp(0)
        qa = self.queue_qproj(2, "xA", "wqA", sBA, sHA, sRotW, None, pqa)
        self.issue()
        self.read_addrs()
        a(f"s_and_b32 s{sRot}, s{sBB}, 3\ns_lshr_b32 s{sChx}, s{sBB}, 2")
        a(f"s_lshl_b32 s{sUnit}, s{sBB}, 5\ns_add_u32 s{sUnit}, s{sUnit}, s{sHB}")
        a(f"s_lshl_b32 s{sO}, s{sUnit}, 13\ns_add_u32 s{sO}, s{sO}, {WS_O + (2 << 20)}")
        a(f"s_lshl_b32 s{sOa}, s{sBA}, 5\ns_add_u32 s{sOa}, s{sOa}, s{sHA}\ns_lshl_b32 s{sOa}, s{sOa}, 13")
        a(f"s_lshl_b32 s{sT}, s{sW}, 2\ns_add_u32 s{sFl}, s{sFl}, s{sT}\ns_add_u32 s{sFa}, s{sFa}, s{sT}")
        aa = self.queue_attn("kA", "vA", sUA, sRotK, paa, c["fl_kvA"])
        q = self.queue_qproj(1, "xB", "wqB", sBB, sHB, sRot, sChx, pq)
        at = self.queue_attn("kB", "vB", sUnit, None, pa, c["fl_kvB"])
        self.run_qproj(2, qa, sRotW, None, self.signal_cleared)
        self.stamp(5)
        self.run_attn(2, aa, sOa, sFa)
        self.stamp(6)
        self.run_qproj(1, q, sRot, sChx)
        self.stamp(7)
        self.run_attn(1, at, sO, sFl, final=True)
        self.stamp(1)
        a("s_endpgm")
        a.reset_keep_t()
    def build(self):
        a = self.a
        self.prologue()
        a("s_cmp_ge_u32 s2, 128\ns_cbranch_scc1 L_roleG")
        sv = (a.t, dict(a.valu_w), dict(a.valu_sw))
        self.role_S()
        a.label("L_roleG")
        a.nop(2)
        self.role_G()
        a.label("L_end")
        a("s_endpgm")
        body = a.text()
        return (HDR + f"; @launch grid=(256,1,1) block=(512,1,1) lds=163840\n"
                + '.amdgcn_target "amdgcn-amd-amdhsa--gfx950"\n.text\n'
                + f".globl {NAME}_kernel\n.p2align 8\n.type {NAME}_kernel,@function\n{NAME}_kernel:\n" + body
                + f""".section .rodata,"a"
.p2align 6
.amdhsa_kernel {NAME}_kernel
  .amdhsa_next_free_vgpr 256
  .amdhsa_next_free_sgpr 96
  .amdhsa_accum_offset 256
  .amdhsa_group_segment_fixed_size 0
  .amdhsa_kernarg_size 104
  .amdhsa_user_sgpr_count 2
  .amdhsa_user_sgpr_kernarg_segment_ptr 1
  .amdhsa_system_sgpr_workgroup_id_x 1
.end_amdhsa_kernel
""")

DEFAULT = dict(fl_x="", fl_w="", fl_wo="", fl_kvA="", fl_kvB="nt", oproj=True, stamps=False, spin=200000)
def make(**kw):
    c = dict(DEFAULT); c.update(kw)
    return Gen(c).build()
if __name__ == "__main__":
    out = sys.argv[1] if len(sys.argv) > 1 else "cdna_kernels/" + NAME + ".s"
    kw = eval("dict(" + (sys.argv[2] if len(sys.argv) > 2 else "") + ")")
    open(out, "w").write(make(**kw))
```

```python
import sys
sys.path.insert(0, "gen")
import gen1
NAME = gen1.NAME
def probe_kernel(name, flags, empty=False, src=(48, 56)):
    L = []; A = L.append
    A(f".text\n.globl {name}\n.p2align 8\n.type {name},@function\n{name}:")
    A(f"s_cmp_ge_u32 s2, 256\ns_cbranch_scc1 L_end_{name}")
    if not empty:
        A(f"s_load_dwordx2 s[8:9], s[0:1], {src[0]}\ns_load_dwordx2 s[12:13], s[0:1], {src[1]}")
        A("v_lshrrev_b32 v1, 6, v0\nv_and_b32 v0, 63, v0\nv_readfirstlane_b32 s3, v1")
        A("s_mov_b32 s10, 0x4000000\ns_mov_b32 s11, 0x20000\ns_mov_b32 s14, 0x4000000\ns_mov_b32 s15, 0x20000")
        A("s_lshl_b32 s18, s2, 18\ns_lshl_b32 s19, s3, 12\ns_add_u32 s18, s18, s19\nv_lshlrev_b32 v2, 4, v0\ns_waitcnt lgkmcnt(0)")
        if src[0] == src[1]:
            A("s_add_u32 s12, s12, 0x4000000\ns_addc_u32 s13, s13, 0")
        for srd in ("s[8:11]", "s[12:15]"):
            A("s_mov_b32 s23, s18")
            for b in range(8):
                for j in range(4):
                    A(f"s_waitcnt vmcnt(3)\nbuffer_load_dwordx4 v[{8+4*j}:{11+4*j}], v2, {srd}, s23 offen offset:{j*1024} {flags}")
                A("s_add_u32 s23, s23, 32768")
        A("s_waitcnt vmcnt(0)")
    A(f"L_end_{name}:\ns_endpgm")
    A(f""".section .rodata,"a"
.p2align 6
.amdhsa_kernel {name}
  .amdhsa_next_free_vgpr 32
  .amdhsa_next_free_sgpr 32
  .amdhsa_accum_offset 32
  .amdhsa_group_segment_fixed_size 0
  .amdhsa_kernarg_size 104
  .amdhsa_user_sgpr_count 2
  .amdhsa_user_sgpr_kernarg_segment_ptr 1
  .amdhsa_system_sgpr_workgroup_id_x 1
.end_amdhsa_kernel""")
    return "\n".join(L) + "\n"
def make(order, flags, empty=False, src=(48,56), nprobe=1):
    s = gen1.make()
    main = f"; @launch kernel={NAME}_kernel grid=(256,1,1) block=(512,1,1) lds=163840\n"
    pr = "; @launch kernel=probe_kernel grid=(256,1,1) block=(512,1,1) lds=0\n" * nprobe
    s = s.replace("; @launch grid=(256,1,1) block=(512,1,1) lds=163840\n", main + pr if order == "after" else pr + main)
    return s + probe_kernel("probe_kernel", flags, empty, src)
open("p0_main.s", "w").write(gen1.make())
open("p1_empty.s", "w").write(make("after", "", True))
open("p2_nt.s", "w").write(make("after", "nt"))
open("p3_nont.s", "w").write(make("after", ""))
open("p4_ws_first.s", "w").write(make("before", "nt", src=(96,96)))
open("p5_empty4.s", "w").write(make("after", "", True, nprobe=4))
```

```python
import sys, math
from collections import deque
from asmlib import Asm, vr, sr

NAME = "concat_heads__gqa_block_cached__mha_block_cached__near_ridge"
HDR = open("cdna_kernels/" + NAME + ".s.ref").read().split("; Override launch")[0]

SRD = dict(xA=8, kA=12, vA=16, wqA=20, woA=24, xB=28, kB=32, vB=36, wqB=40, woB=44, out=48, dbg=52, ws=56)
SIZE = dict(xA=1<<19, kA=1<<23, vA=1<<23, wqA=1<<23, woA=1<<23, xB=1<<19, kB=1<<26, vB=1<<26, wqB=1<<23, woB=1<<23,
            out=1<<20, dbg=256, ws=1<<28)
ORDER = ["xA", "kA", "vA", "wqA", "woA", "xB", "kB", "vB", "wqB", "woB", "out", "dbg", "ws"]
sW = 3; sRB = 60; sT = 61; sT2 = 62; sT3 = 63
sX = 4; sJJ = 5; sBB = 6; sHB = 7
KA = 64
sP = 64
vL = 0
vD256 = 1; vD2048 = 5; vD8192 = 9
vN = 13
vT = 17; vTq = 21
vL16 = 25
vM = 26; vS = 28
vF = 30
vB1 = 62
vB2 = 126
vX0 = 254; vX1 = 255
SPARE = 131072
QX = SPARE
ML = SPARE + 16384
WS_O = 0
WS_FLAG = 4 << 20
WS_TS = 8 << 20
SCALE = math.log2(math.e) / math.sqrt(128.0)

def f2u(x):
    import struct
    return struct.unpack("<I", struct.pack("<f", x))[0]

class Gen:
    def __init__(self, cfg):
        self.cfg = cfg
        self.a = Asm()
        self.lbl = 0
    def newlabel(self, p="L"):
        self.lbl += 1
        return f"{p}_{self.lbl}"
    def start_role(self):
        self.q = deque(); self.nissued = 0; self.nqueued = 0
        self.busy = [False]*4
        self.a.vm = []
        self.nstamp = 0
    def queue(self, fn):
        i = self.nqueued; self.nqueued += 1
        self.q.append((i, fn)); return i
    def issue(self, maxn=4):
        n = 0
        while self.q and n < maxn:
            i, fn = self.q[0]
            s = i % 4
            if self.busy[s]: break
            self.q.popleft(); self.busy[s] = True
            fn(s, ("sub", i)); n += 1
        return n
    def free(self, i):
        self.busy[i % 4] = False
    def dma(self, buf, vset, slot, tag, flags):
        a = self.a
        a(f"s_add_u32 m0, s{sRB}, {slot*4096}")
        for i in range(4):
            a(f"buffer_load_dwordx4 v{vset+i}, {sr(SRD[buf],4)}, s{sT} offen offset:{1024*i} {flags} lds", tag)
    def wait_sub(self, i):
        if ("sub", i) not in self.a.vm:
            assert i < self.nqueued and all(j != i for j, _ in self.q), f"sub {i} not issued"
            return
        self.a.wait_vm(("sub", i))
    def stamp(self, k):
        if not self.cfg.get("stamps"): return
        a = self.a
        if k == 0 and self.cfg.get("early0"):
            a("s_mov_b32 s90, s94\ns_mov_b32 s91, s95")
        else:
            a(f"s_memrealtime s[90:91]\ns_waitcnt lgkmcnt(0)")
        a(f"s_lshl_b32 s92, s2, 3\ns_add_u32 s92, s92, s{sW}\ns_lshl_b32 s92, s92, 7\ns_add_u32 s92, s92, {WS_TS + 8*k}")
        a(f"v_mov_b32 v{vX0}, s90\nv_mov_b32 v{vX1}, s91")
        a(f"s_mov_b64 exec, 1\nbuffer_store_dwordx2 v[{vX0}:{vX1}], off, {sr(SRD['ws'],4)}, s92\ns_mov_b64 exec, -1", ("stamp", k))
        a("s_nop 1")
    def t_block(self, i, taddr, mf):
        a = self.a; slot = i % 4; F = vF + 16*(i & 1)
        self.wait_sub(i)
        for ks in range(2):
            for ct in range(2):
                for u in range(2):
                    a(f"ds_read_b64_tr_b16 {vr(F + 8*ks + 4*ct + 2*u, 2)}, v{taddr + 2*ct + u} offset:{slot*4096 + ks*2048}")
        k = 0
        for ks in range(2):
            for ct in range(2):
                k += 1
                a(f"s_waitcnt lgkmcnt({8 - 2*k})")
                mf(ks, ct, F + 8*ks + 4*ct)
        self.free(i)
    def mfma(self, d, A, B, zero=False):
        self.a(f"v_mfma_f32_32x32x16_bf16 {vr(d,16)}, {vr(A,4)}, {vr(B,4)}, {'0' if zero else vr(d,16)}")
    def pack(self, dst, src, n):
        for k in range(n):
            self.a(f"v_cvt_pk_bf16_f32 v{dst+k}, v{src+2*k}, v{src+2*k+1}")
    def queue_qproj(self, n, xb, wb, sBat, sHead, sRot, sChx, p):
        a = self.a; fl = self.cfg["fl_w"]
        if n == 1:
            a(f"s_lshl_b32 s{p}, s{sBat}, 16\ns_lshl_b32 s{sT}, s{sW}, 8\ns_add_u32 s{p}, s{p}, s{sT}")
            a(f"s_lshl_b32 s{p+1}, s{sW}, 20\ns_lshl_b32 s{sT}, s{sHead}, 8\ns_add_u32 s{p+1}, s{p+1}, s{sT}")
            ng = 4
        else:
            a(f"s_and_b32 s{sT2}, s{sW}, 3\ns_lshl_b32 s{p}, s{sBat}, 16\ns_lshl_b32 s{sT}, s{sT2}, 9\ns_add_u32 s{p}, s{p}, s{sT}")
            a(f"s_lshr_b32 s{sT}, s{sW}, 2\ns_add_u32 s{sT}, s{sT}, s{sHead}\ns_lshl_b32 s{sT}, s{sT}, 8\ns_lshl_b32 s{p+1}, s{sT2}, 21\ns_add_u32 s{p+1}, s{p+1}, s{sT}")
            ng = 8
        xs = []
        for k in range(ng // 2):
            def fx(slot, tag, k=k):
                if n == 1:
                    a(f"s_add_u32 s{sT}, s{p}, {128*k}")
                else:
                    a(f"s_add_u32 s{sT}, s{sRot}, {2*k}\ns_and_b32 s{sT}, s{sT}, 7\ns_lshl_b32 s{sT}, s{sT}, 6\ns_add_u32 s{sT}, s{sT}, s{p}")
                self.dma(xb, vD2048, slot, tag, self.cfg["fl_x"])
            xs.append(self.queue(fx))
        wsub = []
        for g in range(ng):
            for ch in range(2):
                def fw(slot, tag, g=g, ch=ch):
                    a(f"s_add_u32 s{sT}, s{sRot}, {g}\ns_and_b32 s{sT}, s{sT}, {ng-1}\ns_lshl_b32 s{sT}, s{sT}, 18\ns_add_u32 s{sT}, s{sT}, s{p+1}")
                    if n == 1:
                        a(f"s_xor_b32 s{sT2}, s{sChx}, {ch}\ns_lshl_b32 s{sT2}, s{sT2}, 7\ns_add_u32 s{sT}, s{sT}, s{sT2}")
                    elif ch:
                        a(f"s_add_u32 s{sT}, s{sT}, 128")
                    self.dma(wb, vD8192, slot, tag, fl)
                wsub.append(self.queue(fw))
        return xs, wsub
    def run_qproj(self, n, subs, sRot, sChx, after_first_barrier=None):
        a = self.a; xs, wsub = subs; ng = 4*n
        X = vB1; ACC = vB2
        self.issue()
        if n == 1:
            self.wait_sub(xs[1])
            s0 = xs[0] % 4
            for g in range(4):
                a(f"s_add_u32 s{sT}, s{sRot}, {g}\ns_and_b32 s{sT2}, s{sT}, 1\ns_lshl_b32 s{sT2}, s{sT2}, 6\ns_bfe_u32 s{sT}, s{sT}, 0x10001")
                a(f"s_add_u32 s{sT}, s{sT}, {s0}\ns_lshl_b32 s{sT}, s{sT}, 12\ns_add_u32 s{sT}, s{sT}, s{sT2}")
                for ks in range(2):
                    a(f"v_xor_b32 v{vF+2*g+ks}, s{sT}, v{vN+ks}")
            for g in range(4):
                for ks in range(2):
                    a(f"ds_read_b128 {vr(X + 8*g + 4*ks, 4)}, v{vF+2*g+ks}")
            a("s_waitcnt lgkmcnt(0)")
            self.free(xs[0]); self.free(xs[1]); self.issue()
        else:
            for k in range(4):
                self.wait_sub(xs[k])
                for s in range(4):
                    a(f"ds_read_b128 {vr(X + 16*k + 4*s, 4)}, v{vN+s} offset:{(xs[k]%4)*4096}")
                a("s_waitcnt lgkmcnt(0)")
                self.free(xs[k]); self.issue()
        last = len(wsub) - 1
        for t, i in enumerate(wsub):
            g, ch = t >> 1, t & 1
            self.t_block(i, vTq, lambda ks, ct, A: self.mfma(ACC + 16*(2*ch+ct), A, X + 8*g + 4*ks, zero=(g == 0 and ks == 0)))
            if t >= last - 1:
                self.busy[i % 4] = True
            else:
                self.issue()
        rs = wsub[last-1] % 4
        assert rs in (0, 2)
        PK = vB2 + 64
        self.pack(PK, ACC, 32)
        if n == 1:
            a(f"s_lshl_b32 s{sT}, s{sChx}, 12\ns_add_u32 s{sT}, s{sT}, s{sRB}\nv_add_u32 v{vX0}, s{sT}, v{vL16}\nv_xor_b32 v{vX1}, 0x1000, v{vX0}")
            for f in range(8):
                a(f"ds_write_b128 v{vX0 if f < 4 else vX1}, {vr(PK+4*f,4)} offset:{rs*4096 + (f&3)*1024}")
        else:
            a(f"v_add_u32 v{vX0}, s{sRB}, v{vL16}")
            for f in range(8):
                a(f"ds_write_b128 v{vX0}, {vr(PK+4*f,4)} offset:{rs*4096 + f*1024}")
        a("s_waitcnt lgkmcnt(0)\ns_barrier")
        if after_first_barrier: after_first_barrier()
        R = vB2; SUM = vB2 + 32
        if n == 1:
            a(f"s_lshl_b32 s{sT}, s{sW}, 10\nv_add_u32 v{vX0}, s{sT}, v{vL16}\nv_add_u32 v{vX1}, 0x10000, v{vX0}")
            for p in range(8):
                a(f"ds_read_b128 {vr(R+4*p,4)}, v{vX0 if p < 4 else vX1} offset:{(p&3)*16384 + rs*4096}")
            groups = [list(range(8))]
        else:
            a(f"s_lshr_b32 s{sT}, s{sW}, 2\ns_lshl_b32 s{sT}, s{sT}, 16\ns_and_b32 s{sT2}, s{sW}, 3\ns_lshl_b32 s{sT2}, s{sT2}, 11\ns_add_u32 s{sT}, s{sT}, s{sT2}")
            a(f"v_add_u32 v{vX0}, s{sT}, v{vL16}")
            for e in range(2):
                for p in range(4):
                    a(f"ds_read_b128 {vr(R+16*e+4*p,4)}, v{vX0} offset:{p*16384 + rs*4096 + e*1024}")
            groups = [[0,1,2,3], [4,5,6,7]]
        a(f"s_mov_b32 s{sT3}, {f2u(SCALE):#x}\ns_mov_b32 s{sT2}, 0xffff0000")
        cnt = 8
        for e, grp in enumerate(groups):
            S_ = SUM + 8*e
            for k, p in enumerate(grp):
                cnt -= 1
                a(f"s_waitcnt lgkmcnt({cnt})")
                for j in range(4):
                    r = R + 4*p + j
                    if k == 0:
                        a(f"v_lshlrev_b32 v{S_+2*j}, 16, v{r}\nv_and_b32 v{S_+2*j+1}, s{sT2}, v{r}")
                    else:
                        a(f"v_lshlrev_b32 v{vX1}, 16, v{r}\nv_and_b32 v{r}, s{sT2}, v{r}\nv_add_f32 v{S_+2*j}, v{S_+2*j}, v{vX1}\nv_add_f32 v{S_+2*j+1}, v{S_+2*j+1}, v{r}")
            for j in range(8):
                a(f"v_mul_f32 v{S_+j}, s{sT3}, v{S_+j}")
            self.pack(SUM + 16 + 4*e, S_, 4)
        a(f"s_lshl_b32 s{sT}, s{sW}, {10 if n == 1 else 11}\ns_add_u32 s{sT}, s{sT}, {QX}\nv_add_u32 v{vX0}, s{sT}, v{vL16}")
        for e in range(len(groups)):
            a(f"ds_write_b128 v{vX0}, {vr(SUM+16+4*e,4)} offset:{e*1024}")
        a("s_waitcnt lgkmcnt(0)\ns_barrier")
        self.busy[rs] = self.busy[rs+1] = False
        self.issue()
        a(f"v_add_u32 v{vX0}, {QX}, v{vL16}")
        for f in range(8*n):
            if f == 12: a("s_waitcnt lgkmcnt(4)")
            a(f"ds_read_b128 {vr(vB1+4*f,4)}, v{vX0} offset:{f*1024}")
        a("s_waitcnt lgkmcnt(0)")
    def queue_attn(self, kb, vb, sUnit, sRot, p, fl):
        a = self.a
        a(f"s_lshl_b32 s{p}, s{sUnit}, 18\ns_lshl_b32 s{sT}, s{sW}, 13\ns_add_u32 s{p}, s{p}, s{sT}")
        out = []
        for buf in (kb, vb):
            l = []
            for i in range(4):
                for dh in range(2):
                    def f(slot, tag, i=i, dh=dh, buf=buf):
                        if sRot is None:
                            a(f"s_add_u32 s{sT}, s{p}, {i*65536 + dh*128}")
                        else:
                            a(f"s_add_u32 s{sT}, s{sRot}, {i}\ns_and_b32 s{sT}, s{sT}, 3\ns_lshl_b32 s{sT}, s{sT}, 16\ns_add_u32 s{sT}, s{sT}, s{p}")
                            if dh: a(f"s_add_u32 s{sT}, s{sT}, 128")
                        self.dma(buf, vD256, slot, tag, fl)
                    l.append(self.queue(f))
            out.append(l)
        return out
    def softmax(self, hh):
        a = self.a; S_ = vB2 + 64*hh; P = vB1 + 32*hh; m = vM + hh; l = vS + hh
        T = vF
        for c in range(4):
            b = S_ + 16*c
            a(f"v_max3_f32 v{T+c}, v{b}, v{b+1}, v{b+2}")
        for k in range(6):
            for c in range(4):
                b = S_ + 16*c + 3 + 2*k
                a(f"v_max3_f32 v{T+c}, v{T+c}, v{b}, v{b+1}")
        for c in range(4):
            a(f"v_max_f32 v{T+c}, v{T+c}, v{S_+16*c+15}")
        a(f"v_max3_f32 v{T}, v{T}, v{T+1}, v{T+2}\nv_max_f32 v{m}, v{T}, v{T+3}\nv_mov_b32 v{T}, v{m}")
        a(f"v_permlane32_swap_b32 v{m}, v{T}\nv_max_f32 v{m}, v{m}, v{T}")
        for k in range(0, 64, 8):
            for j in range(8): a(f"v_sub_f32 v{S_+k+j}, v{S_+k+j}, v{m}")
            for j in range(8): a(f"v_exp_f32 v{S_+k+j}, v{S_+k+j}")
            for j in range(8):
                c = j & 3
                if k == 0 and j < 4: a(f"v_mov_b32 v{T+c}, v{S_+k+j}")
                else: a(f"v_add_f32 v{T+c}, v{T+c}, v{S_+k+j}")
            self.pack(P + k//2, S_ + k, 4)
        a(f"v_add_f32 v{T}, v{T}, v{T+1}\nv_add_f32 v{T+2}, v{T+2}, v{T+3}\nv_add_f32 v{l}, v{T}, v{T+2}\nv_mov_b32 v{T}, v{l}")
        a(f"v_permlane32_swap_b32 v{l}, v{T}\nv_add_f32 v{l}, v{l}, v{T}")
    def run_attn(self, n, subs, sOunit, sFlag, final=False):
        a = self.a; ks_, vs_ = subs
        self.issue()
        for t, i in enumerate(ks_):
            ti, dh = t >> 1, t & 1; slot = i % 4; F = vF + 16*(i & 1)
            self.wait_sub(i)
            for s in range(4):
                a(f"ds_read_b128 {vr(F+4*s,4)}, v{vN+s} offset:{slot*4096}")
            for s in range(4):
                a(f"s_waitcnt lgkmcnt({3-s})")
                for hh in range(n):
                    self.mfma(vB2 + 64*hh + 16*ti, F+4*s, vB1 + 32*hh + 16*dh + 4*s, zero=(dh == 0 and s == 0))
            self.free(i); self.issue()
        self.stamp(2 if n == 2 else 8)
        for hh in range(n):
            self.softmax(hh)
        a(f"v_and_b32 v{vX0}, 31, v{vL}\nv_lshlrev_b32 v{vX0}, 3, v{vX0}\ns_lshl_b32 s{sT}, s{sW}, 8\ns_add_u32 s{sT}, s{sT}, {ML}\nv_add_u32 v{vX1}, s{sT}, v{vX0}")
        for hh in range(n):
            a(f"v_mov_b32 v{vF}, v{vM+hh}\nv_mov_b32 v{vF+1}, v{vS+hh}\nds_write_b64 v{vX1}, {vr(vF,2)} offset:{hh*2048}\ns_waitcnt lgkmcnt(0)")
        self.stamp(3 if n == 2 else 9)
        last = len(vs_) - 1
        for t, i in enumerate(vs_):
            ti, dh = t >> 1, t & 1
            def mf(ks, ct, A):
                for hh in range(n):
                    self.mfma(vB2 + 64*hh + 16*(2*dh+ct), A, vB1 + 32*hh + 8*ti + 4*ks, zero=(ti == 0 and ks == 0))
            self.t_block(i, vT, mf)
            if t >= last - (2*n - 1):
                self.busy[i % 4] = True
            else:
                self.issue()
        self.stamp(4 if n == 2 else 10)
        rs = vs_[last - (2*n - 1)] % 4
        a(f"v_add_u32 v{vX0}, s{sRB}, v{vL16}")
        for hh in range(n):
            PK = vB1 + 32*hh
            self.pack(PK, vB2 + 64*hh, 32)
            for f in range(8):
                a(f"ds_write_b128 v{vX0}, {vr(PK+4*f,4)} offset:{((rs+2*hh)%4)*4096 + f*1024}")
        a("s_waitcnt lgkmcnt(0)\ns_barrier")
        a(f"s_lshl_b32 s{sT}, s{sW}, 10\nv_add_u32 v{vX0}, s{sT}, v{vL16}\nv_add_u32 v{vX1}, 0x10000, v{vX0}")
        a(f"v_and_b32 v{vF}, 31, v{vL}\nv_lshlrev_b32 v{vF}, 3, v{vF}\nv_add_u32 v{vF}, {ML}, v{vF}")
        a(f"s_mov_b32 s{sT2}, 0xffff0000")
        for hh in range(n):
            MLR = vB1 + 32*hh; R = vB2 + 64*hh
            for p in range(8):
                a(f"ds_read_b64 {vr(MLR+2*p,2)}, v{vF} offset:{hh*2048 + p*256}")
            for p in range(8):
                if p == 4: a("s_waitcnt lgkmcnt(4)")
                a(f"ds_read_b128 {vr(R+4*p,4)}, v{vX0 if p < 4 else vX1} offset:{(p&3)*16384 + ((rs+2*hh)%4)*4096}")
            G_ = MLR + 16; SUM = R + 32; T = R + 48
            a(f"v_max3_f32 v{T}, v{MLR}, v{MLR+2}, v{MLR+4}\nv_max3_f32 v{T+1}, v{MLR+6}, v{MLR+8}, v{MLR+10}\nv_max3_f32 v{T}, v{T}, v{MLR+12}, v{MLR+14}\nv_max_f32 v{T}, v{T}, v{T+1}")
            for p in range(8): a(f"v_sub_f32 v{G_+p}, v{MLR+2*p}, v{T}")
            for p in range(8): a(f"v_exp_f32 v{G_+p}, v{G_+p}")
            a(f"v_mul_f32 v{T}, v{G_}, v{MLR+1}\nv_mul_f32 v{T+1}, v{G_+1}, v{MLR+3}")
            for p in range(2, 8): a(f"v_fmac_f32 v{T+(p&1)}, v{G_+p}, v{MLR+2*p+1}")
            a(f"v_add_f32 v{T}, v{T}, v{T+1}\nv_rcp_f32 v{T}, v{T}")
            for p in range(8): a(f"v_mul_f32 v{G_+p}, v{G_+p}, v{T}")
            for p in range(8):
                a(f"s_waitcnt lgkmcnt({7-p})")
                for j in range(4):
                    r = R + 4*p + j
                    a(f"v_lshlrev_b32 v{T+2+j}, 16, v{r}\nv_and_b32 v{r}, s{sT2}, v{r}")
                for j in range(4):
                    r = R + 4*p + j
                    op = "v_mul_f32" if p == 0 else "v_fmac_f32"
                    a(f"{op} v{SUM+2*j}, v{G_+p}, v{T+2+j}\n{op} v{SUM+2*j+1}, v{G_+p}, v{r}")
            self.pack(SUM + 8, SUM, 4)
            a(f"s_lshl_b32 s{sT}, s{sW}, 10\ns_add_u32 s{sT}, s{sT}, s{sOunit}")
            if hh: a(f"s_add_u32 s{sT}, s{sT}, 8192")
            a(f"buffer_store_dwordx4 {vr(SUM+8,4)}, v{vL16}, {sr(SRD['ws'],4)}, s{sT} offen sc1", ("ostore", hh))
        if not final:
            a("s_barrier")
            for k in range(2*n): self.busy[(rs + k) % 4] = False
            self.issue()
        a.wait_vm(("ostore", n-1))
        a(f"v_mov_b32 v{vX0}, 1\ns_mov_b64 exec, 1")
        for hh in range(n):
            a(f"buffer_store_dword v{vX0}, off, {sr(SRD['ws'],4)}, s{sFlag} offset:{32*hh} sc1", "flag")
        a("s_mov_b64 exec, -1")
    def queue_wo(self, wb, nsub, head0, sRot, p, sCt):
        a = self.a
        a(f"s_lshl_b32 s{p}, s{sW}, 20\ns_lshl_b32 s{sT}, s{sCt}, 7\ns_add_u32 s{p}, s{p}, s{sT}")
        if head0: a(f"s_add_u32 s{p}, s{p}, {head0*128*2048}")
        l = []
        for t in range(nsub):
            def f(slot, tag, t=t):
                a(f"s_add_u32 s{sT}, s{sRot}, {t}\ns_and_b32 s{sT}, s{sT}, {nsub-1}\ns_lshl_b32 s{sT}, s{sT}, 16\ns_add_u32 s{sT}, s{sT}, s{p}")
                self.dma(wb, vD2048, slot, tag, self.cfg["fl_wo"])
            l.append(self.queue(f))
        return l
    def poll(self, sOff, lanes_lo, lanes_n):
        a = self.a; L = self.newlabel("L_poll"); D = self.newlabel("L_pdone")
        a(f"v_and_b32 v{vX0}, {lanes_n-1}, v{vL}\nv_lshlrev_b32 v{vX0}, 2, v{vX0}\ns_mov_b32 s{sT2}, 0")
        a.fence()
        a.label(L)
        a(f"buffer_load_dword v{vX1}, v{vX0}, {sr(SRD['ws'],4)}, s{sOff} offen offset:{lanes_lo*4} sc1", "poll")
        a("s_waitcnt vmcnt(0)"); a.vm = []
        a(f"v_cmp_ne_u32 vcc, 1, v{vX1}\ns_add_u32 s{sT2}, s{sT2}, 1\ns_nop 2\ns_cbranch_vccz {D}")
        a(f"s_cmp_lt_u32 s{sT2}, {self.cfg['spin']}\ns_cbranch_scc0 {D}\ns_sleep 2\ns_branch {L}")
        a.label(D)
    def poll_cleared(self):
        a = self.a; L = self.newlabel("L_pollc"); D = self.newlabel("L_pcdone")
        a(f"s_mov_b32 s{sT2}, 0")
        a.fence()
        a.label(L)
        a(f"buffer_load_dword v{vX1}, off, {sr(SRD['dbg'],4)}, 0 sc1", "poll")
        a("s_waitcnt vmcnt(0)"); a.vm = []
        a(f"v_cmp_gt_u32 vcc, 0x100, v{vX1}\ns_add_u32 s{sT2}, s{sT2}, 1\ns_nop 2\ns_cbranch_vccz {D}")
        a(f"s_cmp_lt_u32 s{sT2}, {self.cfg['spin']}\ns_cbranch_scc0 {D}\ns_sleep 2\ns_branch {L}")
        a.label(D)
    def load_o(self, dst, nsub, sBase, sRot, tagp):
        a = self.a
        for t in range(nsub):
            a(f"s_add_u32 s{sT}, s{sRot}, {t}\ns_and_b32 s{sT}, s{sT}, {nsub-1}\ns_lshl_b32 s{sT}, s{sT}, 11\ns_add_u32 s{sT}, s{sT}, s{sBase}")
            for ks in range(2):
                a(f"buffer_load_dwordx4 {vr(dst + 8*t + 4*ks, 4)}, v{vL16}, {sr(SRD['ws'],4)}, s{sT} offen offset:{ks*1024} sc1", (tagp, t))
    def run_oproj(self, subs, O, ACC, tagp, zero_first, keep_last):
        last = len(subs) - 1
        for t, i in enumerate(subs):
            if self.a.has_vm((tagp, t)): self.a.wait_vm((tagp, t))
            self.t_block(i, vT, lambda ks, ct, A: self.mfma(ACC + 16*ct, A, O + 8*t + 4*ks, zero=(zero_first and t == 0 and ks == 0)))
            if keep_last and t >= last - 1:
                self.busy[i % 4] = True
            else:
                self.issue()
        return subs[last-1] % 4
    def out_reduce(self, ACC, rs, TMP, sOutOff, final):
        a = self.a
        a(f"v_lshrrev_b32 v{vX1}, 5, v{vL}\nv_and_b32 v{vX0}, 31, v{vL}\nv_xor_b32 v{vX0}, v{vX0}, v{vX1}\nv_lshlrev_b32 v{vX0}, 4, v{vX0}")
        a(f"v_lshlrev_b32 v{vX1}, 9, v{vX1}\nv_add3_u32 v{vX0}, v{vX0}, v{vX1}, s{sRB}")
        for i in range(8):
            if i: a(f"v_xor_b32 v{vF+i}, {32*i}, v{vX0}")
        for i in range(8):
            a(f"ds_write_b128 v{vF+i if i else vX0}, {vr(ACC+4*i,4)} offset:{rs*4096 + i*1024}")
        a(f"v_lshrrev_b32 v{vF+8}, 4, v{vL}\ns_lshl_b32 s{sT}, s{sW}, 2\nv_add_u32 v{vF+8}, s{sT}, v{vF+8}\nv_and_b32 v{vF+9}, 15, v{vL}")
        a(f"v_xor_b32 v{vF+10}, v{vF+8}, v{vF+9}\nv_lshlrev_b32 v{vF+10}, 4, v{vF+10}\nv_lshlrev_b32 v{vF+11}, 9, v{vF+9}\nv_add_u32 v{vX0}, v{vF+10}, v{vF+11}\nv_add_u32 v{vX1}, 0x10000, v{vX0}")
        a(f"v_lshlrev_b32 v{vF+8}, 12, v{vF+8}\nv_lshlrev_b32 v{vF+9}, 3, v{vF+9}\nv_add_u32 v{vF+8}, v{vF+8}, v{vF+9}")
        a("s_waitcnt lgkmcnt(0)\ns_barrier")
        for p in range(8):
            a(f"ds_read_b128 {vr(TMP+4*p,4)}, v{vX0 if p < 4 else vX1} offset:{(p&3)*16384 + rs*4096}")
        for p in range(1, 8):
            a(f"s_waitcnt lgkmcnt({7-p})")
            for j in range(4):
                a(f"v_add_f32 v{TMP+j}, v{TMP+j}, v{TMP+4*p+j}")
        self.pack(TMP + 4, TMP, 2)
        a(f"buffer_store_dwordx2 {vr(TMP+4,2)}, v{vF+8}, {sr(SRD['out'],4)}, s{sOutOff} offen", "out")
        if not final:
            a("s_barrier")
            self.busy[rs] = self.busy[rs+1] = False
            self.issue()
    def prologue(self):
        a = self.a
        if self.cfg.get("early0"): a("s_memrealtime s[94:95]")
        a("s_cmp_ge_u32 s2, 256\ns_cbranch_scc1 L_end")
        a(f"s_load_dwordx16 s[{KA}:{KA+15}], s[0:1], 0\ns_load_dwordx8 s[{KA+16}:{KA+23}], s[0:1], 64\ns_load_dwordx2 s[{KA+24}:{KA+25}], s[0:1], 96")
        a(f"v_lshrrev_b32 v1, 6, v0\nv_and_b32 v{vL}, 63, v0\nv_readfirstlane_b32 s{sW}, v1")
        for k in ORDER:
            a(f"s_mov_b32 s{SRD[k]+2}, {SIZE[k]:#x}\ns_mov_b32 s{SRD[k]+3}, 0x20000")
        a(f"s_lshl_b32 s{sRB}, s{sW}, 14\ns_and_b32 s{sX}, s2, 7\ns_bfe_u32 s{sJJ}, s2, 0x40003\ns_lshr_b32 s{sBB}, s{sJJ}, 1")
        a(f"v_lshlrev_b32 v{vL16}, 4, v{vL}")
        t0, t1, t2 = vF, vF+1, vF+2
        a(f"v_bfe_u32 v{t0}, v{vL}, 4, 1\nv_lshlrev_b32 v{t0}, 2, v{t0}\nv_lshrrev_b32 v{t1}, 5, v{vL}\nv_or_b32 v{t0}, v{t0}, v{t1}")
        a(f"v_and_b32 v{t1}, 7, v{vL}\nv_xor_b32 v{t0}, v{t0}, v{t1}\nv_lshlrev_b32 v{t0}, 4, v{t0}")
        a(f"v_xor_b32 v{t1}, 32, v{t0}\nv_lshrrev_b32 v{t2}, 3, v{vL}")
        for vs, lg in ((vD2048, 11), (vD8192, 13), (vD256, 8)):
            for i in range(4):
                a(f"v_lshl_add_u32 v{vs+i}, v{t2}, {lg}, v{t1 if i & 1 else t0}")
                if i: a(f"v_add_u32 v{vs+i}, {(8*i << lg) - 1024*i}, v{vs+i}")
    def copy_ptrs(self, names):
        for k in names:
            o = KA + 2*ORDER.index(k)
            self.a(f"s_mov_b32 s{SRD[k]}, s{o}\ns_mov_b32 s{SRD[k]+1}, s{o+1}")
    def read_addrs(self):
        a = self.a; t0, t1, t2, t3 = vF, vF+1, vF+2, vF+3
        a(f"v_bfe_u32 v{t0}, v{vL}, 1, 1\nv_lshlrev_b32 v{t0}, 2, v{t0}\nv_bfe_u32 v{t1}, v{vL}, 2, 2\nv_or_b32 v{t0}, v{t0}, v{t1}")
        a(f"v_lshrrev_b32 v{t1}, 5, v{vL}\nv_xor_b32 v{t0}, v{t0}, v{t1}\nv_lshlrev_b32 v{t0}, 4, v{t0}")
        a(f"v_and_b32 v{t1}, 31, v{vL}\nv_lshl_add_u32 v{t0}, v{t1}, 7, v{t0}\nv_add_u32 v{vN}, s{sRB}, v{t0}")
        for s in range(1, 4): a(f"v_xor_b32 v{vN+s}, {32*s}, v{vN}")
        for base, nat in ((vT, False), (vTq, True)):
            if nat:
                a(f"v_and_b32 v{t0}, 1, v{vL}\nv_bfe_u32 v{t1}, v{vL}, 1, 1")
            else:
                a(f"v_bfe_u32 v{t0}, v{vL}, 1, 1\nv_and_b32 v{t1}, 1, v{vL}")
            a(f"v_bfe_u32 v{t2}, v{vL}, 4, 1\nv_lshl_add_u32 v{t0}, v{t2}, 1, v{t0}")
            a(f"v_bfe_u32 v{t2}, v{vL}, 3, 1\nv_lshlrev_b32 v{t2}, 2, v{t2}\nv_xor_b32 v{t0}, v{t0}, v{t2}")
            a(f"v_lshrrev_b32 v{t2}, 5, v{vL}")
            if nat: a(f"v_lshlrev_b32 v{t3}, 1, v{t2}\nv_xor_b32 v{t0}, v{t0}, v{t3}")
            else:   a(f"v_xor_b32 v{t0}, v{t0}, v{t2}")
            a(f"v_lshlrev_b32 v{t0}, 4, v{t0}\nv_lshl_add_u32 v{t0}, v{t1}, 3, v{t0}")
            a(f"v_bfe_u32 v{t1}, v{vL}, 2, 2\nv_lshl_add_u32 v{t1}, v{t2}, {3 if nat else 2}, v{t1}")
            a(f"v_lshl_add_u32 v{t0}, v{t1}, 7, v{t0}\nv_add_u32 v{base}, s{sRB}, v{t0}")
            ux, ur = (16, 4*128) if nat else (32, 8*128)
            a(f"v_xor_b32 v{base+1}, {ux}, v{base}\nv_add_u32 v{base+1}, {ur}, v{base+1}")
            a(f"v_xor_b32 v{base+2}, 64, v{base}\nv_xor_b32 v{base+3}, 64, v{base+1}")
    def flag_off(self, dst, branch, sB, sH):
        a = self.a
        a(f"s_lshl_b32 s{dst}, s{sB}, 10\ns_lshl_b32 s{sT}, s{sH}, 5\ns_add_u32 s{dst}, s{dst}, s{sT}\ns_add_u32 s{dst}, s{dst}, {WS_FLAG + branch*8192}")
    def clear_flags(self, offs):
        a = self.a; L = self.newlabel("L_clr")
        a(f"s_cmp_lg_u32 s{sW}, 0\ns_cbranch_scc1 {L}")
        a(f"v_lshlrev_b32 v{vX0}, 2, v{vL}\nv_mov_b32 v{vX1}, 0")
        for s, nl in offs:
            a(f"s_mov_b64 exec, {(1 << nl) - 1:#x}\nbuffer_store_dword v{vX1}, v{vX0}, {sr(SRD['ws'],4)}, s{s} offen sc1")
            a.vm.pop()
        a("s_mov_b64 exec, -1")
        a.label(L)
    def signal_cleared(self):
        a = self.a; L = self.newlabel("L_sig")
        a(f"s_cmp_lg_u32 s{sW}, 0\ns_cbranch_scc1 {L}")
        a(f"v_mov_b32 v{vX1}, 1\ns_mov_b64 exec, 1\nbuffer_atomic_add v{vX1}, off, {sr(SRD['dbg'],4)}, 0 sc1\ns_mov_b64 exec, -1")
        a.vm.pop()
        a.label(L)
    def role_common_B(self):
        pass
    def role_S(self):
        a = self.a; c = self.cfg
        self.start_role()
        P = sP
        a(f"s_and_b32 s{sT}, s{sJJ}, 1\ns_lshl_b32 s{sHB}, s{sX}, 2\ns_add_u32 s{sHB}, s{sHB}, s{sT}")
        a("s_waitcnt lgkmcnt(0)")
        self.copy_ptrs(ORDER)
        sRot, sChx, sUnit, sO, sFl, sCt, sRotA, sOA, sOB, sFA, sFB, sOut = range(P, P + 12)
        pq, pa, pw1, pw2, pw3 = P+12, P+14, P+15, P+16, P+17
        a(f"s_and_b32 s{sRot}, s{sBB}, 3\ns_lshr_b32 s{sChx}, s{sBB}, 2")
        self.flag_off(sFl, 1, sBB, sHB)
        self.clear_flags([(sFl, 8)])
        self.stamp(0)
        q = self.queue_qproj(1, "xB", "wqB", sBB, sHB, sRot, sChx, pq)
        self.issue()
        self.read_addrs()
        a(f"s_lshl_b32 s{sUnit}, s{sBB}, 5\ns_add_u32 s{sUnit}, s{sUnit}, s{sHB}")
        a(f"s_lshl_b32 s{sO}, s{sUnit}, 13\ns_add_u32 s{sO}, s{sO}, {WS_O + (2 << 20)}")
        a(f"s_lshl_b32 s{sT}, s{sW}, 2\ns_add_u32 s{sFl}, s{sFl}, s{sT}")
        at = self.queue_attn("kB", "vB", sUnit, None, pa, c["fl_kvB"])
        a(f"s_and_b32 s{sT}, s{sJJ}, 1\ns_lshl_b32 s{sCt}, s{sX}, 1\ns_add_u32 s{sCt}, s{sCt}, s{sT}\ns_lshl_b32 s{sRotA}, s{sBB}, 1")
        if c["oproj"]:
            wA = self.queue_wo("woA", 16, 0, sRotA, pw1, sCt)
            wB1 = self.queue_wo("woB", 8, 0, sBB, pw2, sCt)
            wB2 = self.queue_wo("woB", 8, 2, sBB, pw3, sCt)
        self.run_qproj(1, q, sRot, sChx, self.signal_cleared)
        self.stamp(7)
        self.run_attn(1, at, sO, sFl, final=not c["oproj"])
        self.stamp(11)
        if c["oproj"]:
            a(f"s_lshl_b32 s{sOA}, s{sBB}, 18\ns_lshl_b32 s{sT}, s{sW}, 15\ns_add_u32 s{sOA}, s{sOA}, s{sT}\ns_add_u32 s{sOB}, s{sOA}, {2 << 20}")
            a(f"s_lshl_b32 s{sFA}, s{sBB}, 10\ns_lshl_b32 s{sT}, s{sW}, 7\ns_add_u32 s{sFA}, s{sFA}, s{sT}\ns_add_u32 s{sFA}, s{sFA}, {WS_FLAG}\ns_add_u32 s{sFB}, s{sFA}, 8192")
            a(f"s_lshl_b32 s{sOut}, s{sBB}, 17\ns_lshl_b32 s{sT}, s{sCt}, 7\ns_add_u32 s{sOut}, s{sOut}, s{sT}")
            ACC = vB1; O = vB2
            self.poll_cleared()
            self.poll(sFA, 0, 32)
            self.stamp(12)
            self.load_o(O, 16, sOA, sRotA, "oa")
            rs = self.run_oproj(wA, O, ACC, "oa", True, True)
            self.stamp(13)
            self.out_reduce(ACC, rs, vB2, sOut, False)
            self.poll(sFB, 0, 16)
            self.stamp(14)
            self.load_o(O, 8, sOB, sBB, "ob")
            self.run_oproj(wB1, O, ACC, "ob", True, False)
            W = vB2
            for t, i in enumerate(wB2):
                self.wait_sub(i)
                for ks in range(2):
                    for ct in range(2):
                        for u in range(2):
                            a(f"ds_read_b64_tr_b16 {vr(W + 16*t + 8*ks + 4*ct + 2*u, 2)}, v{vT + 2*ct + u} offset:{(i%4)*4096 + ks*2048}")
                a("s_waitcnt lgkmcnt(0)")
                self.free(i); self.issue()
            self.stamp(15)
            self.poll(sFB, 16, 16)
            a(f"s_add_u32 s{sOB}, s{sOB}, 16384\ns_add_u32 s{sOut}, s{sOut}, 2048")
            def oreg(t): return (vB1 + 32 + 8*t) if t < 4 else (vF + 8*(t-4))
            for t in range(8):
                a(f"s_add_u32 s{sT}, s{sBB}, {t}\ns_and_b32 s{sT}, s{sT}, 7\ns_lshl_b32 s{sT}, s{sT}, 11\ns_add_u32 s{sT}, s{sT}, s{sOB}")
                for ks in range(2):
                    a(f"buffer_load_dwordx4 {vr(oreg(t) + 4*ks, 4)}, v{vL16}, {sr(SRD['ws'],4)}, s{sT} offen offset:{ks*1024} sc1", ("oc", t, ks))
            for t in range(8):
                for ks in range(2):
                    a.wait_vm(("oc", t, ks))
                    for ct in range(2):
                        self.mfma(ACC + 16*ct, W + 16*t + 8*ks + 4*ct, oreg(t) + 4*ks)
            self.out_reduce(ACC, 0, vB2, sOut, True)
        self.stamp(1)
        a("s_endpgm")
        a.reset_keep_t()
    def role_G(self):
        a = self.a; c = self.cfg
        self.start_role()
        P = sP
        a(f"s_and_b32 s{sT}, s{sJJ}, 1\ns_lshl_b32 s{sHB}, s{sX}, 2\ns_add_u32 s{sHB}, s{sHB}, s{sT}\ns_add_u32 s{sHB}, s{sHB}, 2")
        a("s_waitcnt lgkmcnt(0)")
        self.copy_ptrs(ORDER)
        sRot, sChx, sUnit, sO, sFl, sBA, sHA, sRotW, sRotK, sUA, sOa, sFa = range(P, P + 12)
        pq, pa, pqa, paa = P+12, P+14, P+15, P+17
        a(f"s_and_b32 s{sT}, s{sX}, 1\ns_lshl_b32 s{sBA}, s{sT}, 2\ns_lshr_b32 s{sT}, s{sJJ}, 2\ns_add_u32 s{sBA}, s{sBA}, s{sT}\ns_lshl_b32 s{sRotW}, s{sT}, 1")
        a(f"s_and_b32 s{sRotK}, s{sJJ}, 3\ns_lshr_b32 s{sT2}, s{sX}, 1\ns_lshl_b32 s{sHA}, s{sT2}, 3\ns_lshl_b32 s{sT}, s{sRotK}, 1\ns_add_u32 s{sHA}, s{sHA}, s{sT}")
        a(f"s_lshl_b32 s{sUA}, s{sBA}, 2\ns_add_u32 s{sUA}, s{sUA}, s{sT2}")
        self.flag_off(sFl, 1, sBB, sHB)
        self.flag_off(sFa, 0, sBA, sHA)
        self.clear_flags([(sFl, 8), (sFa, 16)])
        self.stamp(0)
        qa = self.queue_qproj(2, "xA", "wqA", sBA, sHA, sRotW, None, pqa)
        self.issue()
        self.read_addrs()
        a(f"s_and_b32 s{sRot}, s{sBB}, 3\ns_lshr_b32 s{sChx}, s{sBB}, 2")
        a(f"s_lshl_b32 s{sUnit}, s{sBB}, 5\ns_add_u32 s{sUnit}, s{sUnit}, s{sHB}")
        a(f"s_lshl_b32 s{sO}, s{sUnit}, 13\ns_add_u32 s{sO}, s{sO}, {WS_O + (2 << 20)}")
        a(f"s_lshl_b32 s{sOa}, s{sBA}, 5\ns_add_u32 s{sOa}, s{sOa}, s{sHA}\ns_lshl_b32 s{sOa}, s{sOa}, 13")
        a(f"s_lshl_b32 s{sT}, s{sW}, 2\ns_add_u32 s{sFl}, s{sFl}, s{sT}\ns_add_u32 s{sFa}, s{sFa}, s{sT}")
        aa = self.queue_attn("kA", "vA", sUA, sRotK, paa, c["fl_kvA"])
        q = self.queue_qproj(1, "xB", "wqB", sBB, sHB, sRot, sChx, pq)
        at = self.queue_attn("kB", "vB", sUnit, None, pa, c["fl_kvB"])
        self.run_qproj(2, qa, sRotW, None, self.signal_cleared)
        self.stamp(5)
        self.run_attn(2, aa, sOa, sFa)
        self.stamp(6)
        self.run_qproj(1, q, sRot, sChx)
        self.stamp(7)
        self.run_attn(1, at, sO, sFl, final=True)
        self.stamp(1)
        a("s_endpgm")
        a.reset_keep_t()
    def build(self):
        a = self.a
        self.prologue()
        a("s_cmp_ge_u32 s2, 128\ns_cbranch_scc1 L_roleG")
        sv = (a.t, dict(a.valu_w), dict(a.valu_sw))
        self.role_S()
        a.label("L_roleG")
        a.nop(2)
        self.role_G()
        a.label("L_end")
        a("s_endpgm")
        body = a.text()
        return (HDR + f"; @launch grid=(256,1,1) block=(512,1,1) lds=163840\n"
                + '.amdgcn_target "amdgcn-amd-amdhsa--gfx950"\n.text\n'
                + f".globl {NAME}_kernel\n.p2align 8\n.type {NAME}_kernel,@function\n{NAME}_kernel:\n" + body
                + f""".section .rodata,"a"
.p2align 6
.amdhsa_kernel {NAME}_kernel
  .amdhsa_next_free_vgpr 256
  .amdhsa_next_free_sgpr 96
  .amdhsa_accum_offset 256
  .amdhsa_group_segment_fixed_size 0
  .amdhsa_kernarg_size 104
  .amdhsa_user_sgpr_count 2
  .amdhsa_user_sgpr_kernarg_segment_ptr 1
  .amdhsa_system_sgpr_workgroup_id_x 1
.end_amdhsa_kernel
""")

DEFAULT = dict(fl_x="", fl_w="", fl_wo="", fl_kvA="", fl_kvB="nt", oproj=True, stamps=False, spin=200000)
def make(**kw):
    c = dict(DEFAULT); c.update(kw)
    return Gen(c).build()
if __name__ == "__main__":
    out = sys.argv[1] if len(sys.argv) > 1 else "cdna_kernels/" + NAME + ".s"
    kw = eval("dict(" + (sys.argv[2] if len(sys.argv) > 2 else "") + ")")
    open(out, "w").write(make(**kw))
```

```python
import sys, math
from collections import deque
from asmlib import Asm, vr, sr

NAME = "concat_heads__gqa_block_cached__mha_block_cached__near_ridge"
HDR = open("cdna_kernels/" + NAME + ".s.ref").read().split("; Override launch")[0]

SRD = dict(xA=8, kA=12, vA=16, wqA=20, woA=24, xB=28, kB=32, vB=36, wqB=40, woB=44, out=48, dbg=52, ws=56)
SIZE = dict(xA=1<<19, kA=1<<23, vA=1<<23, wqA=1<<23, woA=1<<23, xB=1<<19, kB=1<<26, vB=1<<26, wqB=1<<23, woB=1<<23,
            out=1<<20, dbg=256, ws=1<<28)
ORDER = ["xA", "kA", "vA", "wqA", "woA", "xB", "kB", "vB", "wqB", "woB", "out", "dbg", "ws"]
sW = 3; sRB = 60; sT = 61; sT2 = 62; sT3 = 63; sD = 93; sD2 = 89
sX = 4; sJJ = 5; sBB = 6; sHB = 7
KA = 64
sP = 64
vL = 0
vD256 = 1; vD2048 = 5; vD8192 = 9
vN = 13
vT = 17; vTq = 21
vL16 = 25
vM = 26; vS = 28
vF = 30
vB1 = 62
vB2 = 126
vX0 = 254; vX1 = 255
SPARE = 131072
QX = SPARE
ML = SPARE + 16384
WS_O = 0
WS_FLAG = 4 << 20
WS_Q = 5 << 20
WS_QFLAG = WS_FLAG + 16384
WS_TS = 8 << 20
SCALE = math.log2(math.e) / math.sqrt(128.0)

def f2u(x):
    import struct
    return struct.unpack("<I", struct.pack("<f", x))[0]

class Gen:
    def __init__(self, cfg):
        self.cfg = cfg
        self.a = Asm()
        self.lbl = 0
    def newlabel(self, p="L"):
        self.lbl += 1
        return f"{p}_{self.lbl}"
    def start_role(self):
        self.q = deque(); self.nqueued = 0
        self.busy = [False]*4
        self.a.vm = []
        self.pend_flag = None
        self.gates = set()
        self.K = self.cfg["K"]
        self.done_issue = set()
    def queue(self, setup, buf, vset, flags):
        i = self.nqueued; self.nqueued += 1
        for k in range(4):
            self.q.append(("dma", i, k, setup, buf, vset, flags))
        return i
    def queue_ld(self, fn, tag, gate=None):
        self.q.append(("ld", fn, tag, gate))
    def can_issue(self):
        if not self.q: return False
        e = self.q[0]
        if e[0] == "dma": return e[2] > 0 or not self.busy[e[1] % 4]
        return e[3] is None or e[3] in self.gates
    def pump(self, n=1, wait=True):
        a = self.a; done = 0
        while done < n and self.can_issue():
            e = self.q.popleft()
            if e[0] == "dma":
                _, i, k, setup, buf, vset, flags = e
                if k == 0:
                    self.busy[i % 4] = True
                    a(f"s_add_u32 m0, s{sRB}, {(i%4)*4096}")
                    setup()
            if len(a.vm) > self.K - 1:
                if wait: a(f"s_waitcnt vmcnt({self.K-1})"); a.vm = a.vm[-(self.K-1):]
            if e[0] == "dma":
                a(f"buffer_load_dwordx4 v{vset+k}, {sr(SRD[buf],4)}, s{sD} offen offset:{1024*k} {flags} lds", ("sub", i))
                if k == 3: self.done_issue.add(("sub", i))
            else:
                e[1](); self.done_issue.add(e[2])
            done += 1
        return done
    def fill(self):
        while len(self.a.vm) < self.K and self.can_issue():
            self.pump(1)
    def free(self, i):
        self.busy[i % 4] = False
    def wait_tag(self, tag):
        while tag not in self.done_issue:
            assert self.pump(1), f"{tag} cannot be issued"
        while self.a.has_vm(tag):
            if not self.pump(1): self.a.wait_vm(tag)
    def wait_sub(self, i):
        self.wait_tag(("sub", i))
    def stamp(self, k):
        if not self.cfg.get("stamps"): return
        sel = self.cfg.get("sel")
        if sel is None:
            if k >= 32: return
        elif k not in sel and k > 1: return
        a = self.a
        r = self.stamp_regs.pop(0); self.stamped.append((k, r))
        if k == 0 and self.cfg.get("early0"):
            a(f"s_mov_b32 s{r}, s94")
        else:
            a(f"s_memrealtime s[90:91]\ns_waitcnt lgkmcnt(0)\ns_mov_b32 s{r}, s90")
        if k == 1:
            a(f"v_mov_b32 v{vX0}, 0")
            for kk, rr in self.stamped:
                a(f"v_writelane_b32 v{vX0}, s{rr}, {kk}")
            a(f"s_lshl_b32 s92, s2, 3\ns_add_u32 s92, s92, s{sW}\ns_lshl_b32 s92, s92, 8\ns_add_u32 s92, s92, {WS_TS}")
            a(f"v_lshlrev_b32 v{vX1}, 2, v{vL}\nbuffer_store_dword v{vX0}, v{vX1}, {sr(SRD['ws'],4)}, s92 offen", "stamp")
    def t_block(self, i, taddr, mf):
        a = self.a; slot = i % 4; F = vF + 16*(i & 1)
        self.wait_sub(i)
        for ks in range(2):
            for ct in range(2):
                for u in range(2):
                    a(f"ds_read_b64_tr_b16 {vr(F + 8*ks + 4*ct + 2*u, 2)}, v{taddr + 2*ct + u} offset:{slot*4096 + ks*2048}")
        k = 0
        for ks in range(2):
            for ct in range(2):
                k += 1
                a(f"s_waitcnt lgkmcnt({8 - 2*k})")
                mf(ks, ct, F + 8*ks + 4*ct)
        self.free(i)
    def n_reads(self, i, dst):
        return [lambda s_=s_: self.a(f"ds_read_b128 {vr(dst+4*s_,4)}, v{vN+s_} offset:{(i%4)*4096}") for s_ in range(4)]
    def t_reads(self, i, taddr, dst):
        return [lambda ks=ks, ct=ct, u=u: self.a(f"ds_read_b64_tr_b16 {vr(dst + 8*ks + 4*ct + 2*u, 2)}, v{taddr + 2*ct + u} offset:{(i%4)*4096 + ks*2048}")
                for ks in range(2) for ct in range(2) for u in range(2)]
    def landed(self, tag):
        while tag not in self.done_issue:
            assert self.pump(1), f"{tag} cannot be issued"
        if self.a.has_vm(tag): self.a.wait_vm(tag)
    def steps(self, subs, reads, mfmas, LA, keep_last=0, pre=None, post=None, first_done=False):
        a = self.a; n = len(subs)
        Fb = lambda t: vF + 16*(t & 1)
        if not first_done:
            self.landed(("sub", subs[0]))
            for r in reads(subs[0], Fb(0)): r()
        for t in range(n):
            if t + 1 < n: self.landed(("sub", subs[t+1]))
            if pre: pre(t)
            a("s_waitcnt lgkmcnt(0)")
            self.free(subs[t])
            if t >= n - keep_last: self.busy[subs[t] % 4] = True
            fill = reads(subs[t+1], Fb(t+1)) if t + 1 < n else []
            npump = max(0, LA - len(a.vm))
            pumps = [lambda: self.pump(1, wait=False)] * npump
            seq = []
            while fill or pumps:
                if fill: seq.append(fill.pop(0))
                if fill and len(fill) >= len(pumps): seq.append(fill.pop(0))
                if pumps: seq.append(pumps.pop(0))
            mf = mfmas(t, Fb(t))
            for k, m in enumerate(mf):
                m()
                lo, hi = len(seq)*k // len(mf), len(seq)*(k+1) // len(mf)
                for f in seq[lo:hi]: f()
            if post: post(t)
    def mfma(self, d, A, B, zero=False):
        self.a(f"v_mfma_f32_32x32x16_bf16 {vr(d,16)}, {vr(A,4)}, {vr(B,4)}, {'0' if zero else vr(d,16)}")
    def pack(self, dst, src, n):
        for k in range(n):
            self.a(f"v_cvt_pk_bf16_f32 v{dst+k}, v{src+2*k}, v{src+2*k+1}")
    def perm_matrix(self, dst):
        a = self.a; t0, t1 = vX0, vX1
        a(f"v_bfe_u32 v{t0}, v{vL}, 2, 1\nv_lshrrev_b32 v{t1}, 5, v{vL}\nv_xor_b32 v{t0}, v{t0}, v{t1}\nv_bfe_u32 v{t1}, v{vL}, 4, 1\nv_or_b32 v{t0}, v{t0}, v{t1}")
        a(f"v_lshlrev_b32 v{t0}, 2, v{t0}\nv_bfe_u32 v{t1}, v{vL}, 3, 1\nv_lshl_add_u32 v{t0}, v{t1}, 1, v{t0}\nv_bfe_u32 v{t1}, v{vL}, 1, 1\nv_add_u32 v{t0}, v{t0}, v{t1}")
        a(f"v_and_b32 v{t1}, 1, v{vL}\nv_lshlrev_b32 v{t1}, 4, v{t1}\nv_mov_b32 v{dst}, 0x3f80\nv_lshlrev_b32 v{t1}, v{t1}, v{dst}")
        for d in range(4):
            a(f"v_cmp_eq_u32 vcc, {d}, v{t0}\nv_cndmask_b32 v{dst+d}, 0, v{t1}, vcc")
    def msum(self, D, PM, R, n, cnt):
        for p in range(n):
            cnt -= 1
            self.a(f"s_waitcnt lgkmcnt({cnt})")
            self.mfma(D, PM, R + 4*p, zero=(p == 0))
        return cnt
    def bar(self, pump=True):
        if pump: self.pump(self.cfg["redpump"], wait=False)
        self.a("s_waitcnt lgkmcnt(0)\ns_barrier")
    def tr_reads(self, i, taddr, dst):
        for r in self.t_reads(i, taddr, dst): r()
    def queue_w(self, wb, g, ch, ng, sRot, pw):
        a = self.a
        def fw():
            a(f"s_add_u32 s{sD}, s{sRot}, {g}\ns_and_b32 s{sD}, s{sD}, {ng-1}\ns_lshl_b32 s{sD}, s{sD}, 18\ns_add_u32 s{sD}, s{sD}, s{pw}")
            if ch: a(f"s_add_u32 s{sD}, s{sD}, 128")
        return self.queue(fw, wb, vD8192, self.cfg["fl_w"])
    def set_flag(self, sFl, n=1, off=0):
        a = self.a
        a(f"v_mov_b32 v{vX0}, 1\ns_mov_b64 exec, 1")
        for hh in range(n):
            a(f"buffer_store_dword v{vX0}, off, {sr(SRD['ws'],4)}, s{sFl} offset:{off + 32*hh} sc1", "flag")
        a("s_mov_b64 exec, -1")
    def flush_flag(self):
        if self.pend_flag is None: return
        tag, sFl, n, off = self.pend_flag
        if self.a.has_vm(tag): self.a.wait_vm(tag)
        self.set_flag(sFl, n, off)
        self.pend_flag = None
    def queue_qB(self, sB0, sB1, sHead, sRot, p):
        a = self.a
        a(f"s_lshl_b32 s{sT}, s{sW}, 8\ns_lshl_b32 s{p}, s{sB0}, 16\ns_add_u32 s{p}, s{p}, s{sT}\ns_lshl_b32 s{p+1}, s{sB1}, 16\ns_add_u32 s{p+1}, s{p+1}, s{sT}")
        a(f"s_lshl_b32 s{p+2}, s{sW}, 20\ns_lshl_b32 s{sT}, s{sHead}, 8\ns_add_u32 s{p+2}, s{p+2}, s{sT}")
        ws_ = [self.queue_w("wqB", 0, ch, 4, sRot, p+2) for ch in range(2)]
        xs = [self.queue(lambda bb=bb, k=k: a(f"s_add_u32 s{sD}, s{p+bb}, {128*k}"), "xB", vD2048, self.cfg["fl_x"]) for bb in range(2) for k in range(2)]
        ws_ += [self.queue_w("wqB", g, ch, 4, sRot, p+2) for g in range(1, 4) for ch in range(2)]
        return xs, ws_
    def run_qB(self, subs, sRot, sQoff, sQfl):
        a = self.a; xs, wsub = subs
        X = vB1; ACC = vB2
        self.wait_sub(wsub[0]); self.signal_cleared(); self.stamp(16)
        self.tr_reads(wsub[0], vTq, vF)
        self.wait_sub(wsub[1]); self.stamp(51)
        a("s_waitcnt lgkmcnt(4)")
        self.tr_reads(wsub[1], vTq, vF + 16)
        AD = vB2 + 120
        for g in range(4):
            a(f"s_add_u32 s{sT}, s{sRot}, {g}\ns_and_b32 s{sT2}, s{sT}, 1\ns_lshl_b32 s{sT2}, s{sT2}, 6\ns_bfe_u32 s{sT}, s{sT}, 0x10001")
            a(f"s_lshl_b32 s{sT}, s{sT}, 12\ns_add_u32 s{sT}, s{sT}, s{sT2}")
            for ks in range(2):
                a(f"v_xor_b32 v{AD+2*g+ks}, s{sT}, v{vN+ks}")
        a("s_waitcnt lgkmcnt(0)")
        self.free(wsub[0]); self.free(wsub[1])
        self.K = self.cfg["Khit"]
        for bb in range(2):
            self.wait_sub(xs[2*bb+1]); self.stamp(18 if bb else 52)
            s0 = xs[2*bb] % 4
            for g in range(4):
                for ks in range(2):
                    a(f"ds_read_b128 {vr(X + 32*bb + 8*g + 4*ks, 4)}, v{AD+2*g+ks} offset:{s0*4096}")
            a("s_waitcnt lgkmcnt(0)")
            self.free(xs[2*bb]); self.free(xs[2*bb+1]); self.fill()
            for ch in range(2):
                for ks in range(2):
                    for ct in range(2):
                        self.mfma(ACC + 64*bb + 16*(2*ch+ct), vF + 16*ch + 8*ks + 4*ct, X + 32*bb + 4*ks, zero=(ks == 0))
        def mfS(t, F):
            g, ch = (t + 2) >> 1, t & 1
            return [lambda ks=ks, ct=ct, bb=bb: self.mfma(ACC + 64*bb + 16*(2*ch+ct), F + 8*ks + 4*ct, X + 32*bb + 8*g + 4*ks)
                    for ks in range(2) for ct in range(2) for bb in range(2)]
        self.steps(wsub[2:], lambda i, F: self.t_reads(i, vTq, F), mfS, self.cfg["LAq"], keep_last=4,
                   post=lambda t: self.stamp(20 if t == 5 else 54 + t))
        PM = vF; WA = vF + 8; RA = vF + 9
        a(f"s_mov_b32 s{sT3}, {f2u(SCALE):#x}")
        a(f"v_add_u32 v{WA}, s{sRB}, v{vL16}\ns_lshl_b32 s{sT}, s{sW}, 10\nv_add_u32 v{RA}, s{sT}, v{vL16}\nv_add_u32 v{RA+1}, 0x10000, v{RA}")
        self.perm_matrix(PM)
        self.pack(vB1, ACC, 32)
        for f in range(8):
            a(f"ds_write_b128 v{WA}, {vr(vB1+4*f,4)} offset:{f*1024}")
        self.pack(vB1 + 32, ACC + 64, 32)
        self.stamp(60)
        self.bar()
        self.stamp(61)
        for bb in range(2):
            R = vB2 + 64*bb; D = R + 32
            for p in range(8):
                a(f"ds_read_b128 {vr(R+4*p,4)}, v{RA + (p>>2)} offset:{(p&3)*16384 + bb*8192}")
            if bb == 0:
                self.msum(D, PM, R, 4, 8)
                for f in range(8):
                    a(f"ds_write_b128 v{WA}, {vr(vB1+32+4*f,4)} offset:{8192 + f*1024}")
                for p in range(4, 8):
                    a(f"s_waitcnt lgkmcnt({8 + 7 - p})"); self.mfma(D, PM, R + 4*p)
            else:
                self.msum(D, PM, R, 8, 8)
                a.wait_vm(("qstore", 0)); self.set_flag(sQfl); self.stamp(22)
            for j in range(8): a(f"v_mul_f32 v{D+j}, s{sT3}, v{D+j}")
            self.pack(D + 8, D, 4)
            if bb: a(f"s_add_u32 s{sQoff}, s{sQoff}, 8192")
            a(f"buffer_store_dwordx4 {vr(D+8,4)}, v{RA}, {sr(SRD['ws'],4)}, s{sQoff} offen sc1", ("qstore", bb))
            if bb == 0:
                self.stamp(62); self.gates.add("tw"); self.bar(); self.stamp(63)
        a("s_barrier")
        self.busy = [False]*4
        self.pend_flag = (("qstore", 1), sQfl, 1, 32)
    def queue_qA(self, sBat, sHead, sRot, p):
        a = self.a
        a(f"s_and_b32 s{sT2}, s{sW}, 3\ns_lshl_b32 s{p}, s{sBat}, 16\ns_lshl_b32 s{sT}, s{sT2}, 9\ns_add_u32 s{p}, s{p}, s{sT}")
        a(f"s_lshr_b32 s{sT}, s{sW}, 2\ns_add_u32 s{sT}, s{sT}, s{sHead}\ns_lshl_b32 s{sT}, s{sT}, 8\ns_lshl_b32 s{p+1}, s{sT2}, 21\ns_add_u32 s{p+1}, s{p+1}, s{sT}")
        xs = [self.queue(lambda k=k: a(f"s_add_u32 s{sD}, s{sRot}, {2*k}\ns_and_b32 s{sD}, s{sD}, 7\ns_lshl_b32 s{sD}, s{sD}, 6\ns_add_u32 s{sD}, s{sD}, s{p}"),
                         "xA", vD2048, self.cfg["fl_x"]) for k in range(4)]
        ws_ = [self.queue_w("wqA", g, ch, 8, sRot, p+1) for g in range(8) for ch in range(2)]
        return xs, ws_
    def run_qA(self, subs):
        a = self.a; xs, wsub = subs
        X = vB1; ACC = vB2
        for k in range(4):
            self.wait_sub(xs[k])
            if k == 1: self.flush_flag()
            for r in self.n_reads(xs[k], X + 16*k): r()
            a("s_waitcnt lgkmcnt(0)")
            self.free(xs[k])
        self.stamp(23)
        def mfG(t, F):
            g, ch = t >> 1, t & 1
            return [lambda ks=ks, ct=ct: self.mfma(ACC + 16*(2*ch+ct), F + 8*ks + 4*ct, X + 8*g + 4*ks, zero=(g == 0 and ks == 0)) for ks in range(2) for ct in range(2)]
        self.steps(wsub, lambda i, F: self.t_reads(i, vTq, F), mfG, self.cfg["LAq"], keep_last=2,
                   post=lambda t: self.stamp(25 if t == 15 else 32 + t) if (t == 15 or self.cfg.get('qasel')) else None)
        rs = wsub[-2] % 4
        PK = vB2 + 64; PM = vF
        self.perm_matrix(PM)
        self.pack(PK, ACC, 32)
        a(f"v_add_u32 v{vX0}, s{sRB}, v{vL16}")
        for f in range(8):
            a(f"ds_write_b128 v{vX0}, {vr(PK+4*f,4)} offset:{rs*4096 + f*1024}")
        a(f"s_lshr_b32 s{sT}, s{sW}, 2\ns_lshl_b32 s{sT}, s{sT}, 16\ns_and_b32 s{sT2}, s{sW}, 3\ns_lshl_b32 s{sT2}, s{sT2}, 11\ns_add_u32 s{sT}, s{sT}, s{sT2}")
        a(f"v_add_u32 v{vX1}, s{sT}, v{vL16}\ns_mov_b32 s{sT3}, {f2u(SCALE):#x}")
        self.bar()
        R = vB2
        for e in range(2):
            for p in range(4):
                a(f"ds_read_b128 {vr(R+16*e+4*p,4)}, v{vX1} offset:{p*16384 + rs*4096 + e*1024}")
        cnt = 8
        for e in range(2):
            cnt = self.msum(vB2 + 32 + 16*e, PM, R + 16*e, 4, cnt)
        a(f"s_lshl_b32 s{sT}, s{sW}, 11\ns_add_u32 s{sT}, s{sT}, {QX}\nv_add_u32 v{vX0}, s{sT}, v{vL16}")
        for e in range(2):
            D = vB2 + 32 + 16*e
            for j in range(8): a(f"v_mul_f32 v{D+j}, s{sT3}, v{D+j}")
            self.pack(D + 8, D, 4)
            a(f"ds_write_b128 v{vX0}, {vr(D+8,4)} offset:{e*1024}")
        self.bar()
        self.busy[rs] = self.busy[rs+1] = False
        a(f"v_add_u32 v{vX0}, {QX}, v{vL16}")
        for f in range(16):
            if f == 12: a("s_waitcnt lgkmcnt(4)")
            a(f"ds_read_b128 {vr(vB1+4*f,4)}, v{vX0} offset:{f*1024}")
        self.fill()
        a("s_waitcnt lgkmcnt(0)")
    def queue_attn(self, kb, vb, sUnit, sRot, p, fl, between=None):
        a = self.a
        a(f"s_lshl_b32 s{p}, s{sUnit}, 18\ns_lshl_b32 s{sT}, s{sW}, 13\ns_add_u32 s{p}, s{p}, s{sT}")
        out = []
        for buf in (kb, vb):
            l = []
            for i in range(4):
                for dh in range(2):
                    def f(i=i, dh=dh):
                        if sRot is None:
                            a(f"s_add_u32 s{sD}, s{p}, {i*65536 + dh*128}")
                        else:
                            a(f"s_add_u32 s{sD}, s{sRot}, {i}\ns_and_b32 s{sD}, s{sD}, 3\ns_lshl_b32 s{sD}, s{sD}, 16\ns_add_u32 s{sD}, s{sD}, s{p}")
                            if dh: a(f"s_add_u32 s{sD}, s{sD}, 128")
                    l.append(self.queue(f, buf, vD256, fl))
            out.append(l)
            if buf == kb and between: between()
        return out
    def row_max(self, S_, m):
        a = self.a; T = vF
        for c in range(4):
            b = S_ + 16*c
            a(f"v_max3_f32 v{T+c}, v{b}, v{b+1}, v{b+2}")
        for k in range(6):
            for c in range(4):
                b = S_ + 16*c + 3 + 2*k
                a(f"v_max3_f32 v{T+c}, v{T+c}, v{b}, v{b+1}")
        a(f"v_max3_f32 v{T}, v{T}, v{S_+15}, v{S_+31}\nv_max3_f32 v{T+1}, v{T+1}, v{S_+47}, v{S_+63}")
        a(f"v_max3_f32 v{T}, v{T}, v{T+2}, v{T+3}\nv_max_f32 v{m}, v{T}, v{T+1}\nv_mov_b32 v{T}, v{m}")
        a(f"v_permlane32_swap_b32 v{m}, v{T}\nv_max_f32 v{m}, v{m}, v{T}")
    def row_exp(self, S_, P, m, l, npump):
        a = self.a; T = vF
        for k in range(0, 64, 8):
            for j in range(8): a(f"v_sub_f32 v{S_+k+j}, v{S_+k+j}, v{m}")
            for j in range(8): a(f"v_exp_f32 v{S_+k+j}, v{S_+k+j}")
            for j in range(8):
                c = j & 3
                if k == 0 and j < 4: continue
                a(f"v_add_f32 v{T+c}, v{S_+c if k == 0 else T+c}, v{S_+k+j}")
            self.pack(P + k//2, S_ + k, 4)
            self.pump(npump*(k//8 + 1)//8 - npump*(k//8)//8, wait=False)
        a(f"v_add_f32 v{T}, v{T}, v{T+1}\nv_add_f32 v{T+2}, v{T+2}, v{T+3}\nv_add_f32 v{l}, v{T}, v{T+2}\nv_mov_b32 v{T}, v{l}")
        a(f"v_permlane32_swap_b32 v{l}, v{T}\nv_add_f32 v{l}, v{l}, v{T}")
    def qk(self, n, ks_, hooks=None):
        a = self.a; piped = n == 2
        def preK(t):
            if t == self.cfg['flagt']: self.flush_flag()
            if hooks and t in hooks: hooks[t]()
        if piped:
            def mfK(t, F):
                ti, dh = t >> 1, t & 1
                return [lambda s_=s_, hh=hh: self.mfma(vB2 + 64*hh + 16*ti, F+4*s_, vB1 + 32*hh + 16*dh + 4*s_, zero=(dh == 0 and s_ == 0))
                        for s_ in range(4) for hh in range(n)]
            self.steps(ks_, self.n_reads, mfK, self.cfg["LAa"], pre=preK, post=lambda t: None if self.cfg.get('qasel') else self.stamp(32 + t))
            return
        for t, i in enumerate(ks_):
            ti, dh = t >> 1, t & 1; F = vF + 16*(i & 1)
            self.wait_sub(i); preK(t)
            for r in self.n_reads(i, F): r()
            for s_ in range(4):
                a(f"s_waitcnt lgkmcnt({3-s_})")
                self.mfma(vB2 + 16*ti, F+4*s_, vB1 + 16*dh + 4*s_, zero=(dh == 0 and s_ == 0))
            self.free(i)
    def attn_rest(self, n, vs_, Sb, Pb, sOunit, sFlag, st, keep=2, after_softmax=None, after_first_barrier=None, urgent=False):
        a = self.a
        MA = vM + 1 if n == 1 else None
        self.stamp(st[0])
        a(f"v_and_b32 v{vX1}, 31, v{vL}\nv_lshlrev_b32 v{vX1}, 5, v{vX1}\nv_add_u32 v{vX1}, {ML}, v{vX1}\ns_lshl_b32 s{sT}, s{sW}, 2\nv_add_u32 v{vX0}, s{sT}, v{vX1}")
        for hh in range(n):
            self.row_max(Sb + 64*hh, vM + hh)
            a(f"ds_write_b32 v{vX0}, v{vM+hh} offset:{hh*2048}")
        self.bar()
        for hh in range(n):
            a(f"ds_read_b128 {vr(vF+8*hh,4)}, v{vX1} offset:{hh*2048}\nds_read_b128 {vr(vF+8*hh+4,4)}, v{vX1} offset:{hh*2048+16}")
        for hh in range(n):
            b = vF + 8*hh
            a(f"s_waitcnt lgkmcnt({2*(n-1-hh)})")
            a(f"v_max3_f32 v{b}, v{b}, v{b+1}, v{b+2}\nv_max3_f32 v{b+3}, v{b+3}, v{b+4}, v{b+5}\nv_max3_f32 v{b}, v{b}, v{b+6}, v{b+7}\nv_max_f32 v{vM+hh}, v{b}, v{b+3}")
        for hh in range(n):
            self.row_exp(Sb + 64*hh, Pb + 32*hh, vM + hh, vS + hh, self.cfg["smpump"] // n)
            a(f"ds_write_b32 v{vX0}, v{vS+hh} offset:{hh*2048 + 1024}")
        if after_softmax:
            a("s_waitcnt lgkmcnt(0)"); after_softmax()
        self.stamp(st[1])
        if n == 2:
            def mfV(t, F):
                ti, dh = t >> 1, t & 1
                return [lambda ks=ks, ct=ct, hh=hh: self.mfma(vB2 + 64*hh + 16*(2*dh+ct), F + 8*ks + 4*ct, Pb + 32*hh + 8*ti + 4*ks, zero=(ti == 0 and ks == 0))
                        for ks in range(2) for ct in range(2) for hh in range(n)]
            self.steps(vs_, lambda i, F: self.t_reads(i, vT, F), mfV, self.cfg["LAa"], keep_last=keep, post=lambda t: None if self.cfg.get('qasel') else self.stamp(40 + t))
        else:
            a("s_waitcnt lgkmcnt(0)")
            for t, i in enumerate(vs_):
                ti, dh = t >> 1, t & 1
                self.t_block(i, vT, lambda ks, ct, A: self.mfma(vB2 + 16*(2*dh+ct), A, Pb + 8*ti + 4*ks, zero=(ti == 0 and ks == 0)))
                if t >= len(vs_) - keep: self.busy[i % 4] = True
        self.stamp(st[2])
        rs = vs_[-keep] % 4
        so = [rs*4096, ((rs+2) % 4)*4096]
        PM, WA, RA, LA_ = vF, vF + 8, vF + 9, vF + 11
        a(f"v_add_u32 v{WA}, s{sRB}, v{vL16}\ns_lshl_b32 s{sT}, s{sW}, 10\nv_add_u32 v{RA}, s{sT}, v{vL16}\nv_add_u32 v{RA+1}, 0x10000, v{RA}")
        a(f"v_and_b32 v{LA_}, 31, v{vL}\nv_lshlrev_b32 v{LA_}, 5, v{LA_}\nv_add_u32 v{LA_}, {ML + 1024}, v{LA_}")
        self.perm_matrix(PM)
        for hh in range(n):
            self.pack(vB1 + 32*hh, vB2 + 64*hh, 32)
            for f in range(8):
                a(f"ds_write_b128 v{WA}, {vr(vB1+32*hh+4*f,4)} offset:{so[hh] + f*1024}")
            if hh < n - 1: a("s_waitcnt lgkmcnt(6)")
        self.bar()
        for hh in range(n):
            R = vB2 + 64*hh; D = R + 32; Lr = R + 48
            a(f"ds_read_b128 {vr(Lr,4)}, v{LA_} offset:{hh*2048}\nds_read_b128 {vr(Lr+4,4)}, v{LA_} offset:{hh*2048+16}")
            for p in range(8):
                a(f"ds_read_b128 {vr(R+4*p,4)}, v{RA + (p>>2)} offset:{(p&3)*16384 + so[hh]}")
            if hh == 0 and after_first_barrier: after_first_barrier()
            a("s_waitcnt lgkmcnt(8)")
            a(f"v_add_f32 v{Lr}, v{Lr}, v{Lr+1}\nv_add_f32 v{Lr+2}, v{Lr+2}, v{Lr+3}\nv_add_f32 v{Lr+4}, v{Lr+4}, v{Lr+5}\nv_add_f32 v{Lr+6}, v{Lr+6}, v{Lr+7}")
            a(f"v_add_f32 v{Lr}, v{Lr}, v{Lr+2}\nv_add_f32 v{Lr+4}, v{Lr+4}, v{Lr+6}\nv_add_f32 v{Lr}, v{Lr}, v{Lr+4}\nv_rcp_f32 v{Lr}, v{Lr}")
            self.msum(D, PM, R, 8, 8)
        for hh in range(n):
            R = vB2 + 64*hh; D = R + 32; Lr = R + 48
            for j in range(8): a(f"v_mul_f32 v{D+j}, v{Lr}, v{D+j}")
            self.pack(D + 8, D, 4)
            if hh: a(f"s_add_u32 s{sT}, s{sOunit}, 8192")
            a(f"buffer_store_dwordx4 {vr(D+8,4)}, v{RA}, {sr(SRD['ws'],4)}, s{sT if hh else sOunit} offen sc1", ("ostore", hh))
        a("s_barrier")
        for k in range(keep): self.busy[(rs + k) % 4] = False
        self.pend_flag = (("ostore", n-1), sFlag, n, 0)
        if urgent: self.flush_flag()
        self.fill()
    def queue_wo(self, wb, nsub, head0, sRot, p, sCt, inserts=None):
        a = self.a
        a(f"s_lshl_b32 s{p}, s{sW}, 20\ns_lshl_b32 s{sT}, s{sCt}, 7\ns_add_u32 s{p}, s{p}, s{sT}")
        if head0 is not None: a(f"s_lshl_b32 s{sT}, s{head0}, 18\ns_add_u32 s{p}, s{p}, s{sT}")
        l = []
        for t in range(nsub):
            l.append(self.queue(lambda t=t: a(f"s_add_u32 s{sD}, s{sRot}, {t}\ns_and_b32 s{sD}, s{sD}, {nsub-1}\ns_lshl_b32 s{sD}, s{sD}, 16\ns_add_u32 s{sD}, s{sD}, s{p}"),
                                wb, vD2048, self.cfg["fl_wo"]))
            if inserts and t in inserts: inserts[t]()
        return l
    def queue_o(self, oreg, t, nsub, sRot, sO, name, gate=None):
        a = self.a
        for ks in range(2):
            def f(ks=ks):
                if ks == 0: a(f"s_add_u32 s{sD2}, s{sRot}, {t}\ns_and_b32 s{sD2}, s{sD2}, {nsub-1}\ns_lshl_b32 s{sD2}, s{sD2}, 11\ns_add_u32 s{sD2}, s{sD2}, s{sO}")
                a(f"buffer_load_dwordx4 {vr(oreg(t) + 4*ks, 4)}, v{vL16}, {sr(SRD['ws'],4)}, s{sD2} offen offset:{ks*1024} sc1", (name, t, ks))
            self.queue_ld(f, (name, t, ks), gate or name)
    def touch(self, buf, lg, sOff, dummy):
        self.a(f"v_lshlrev_b32 v{vX0}, {lg}, v{vL}\nbuffer_load_dword v{dummy}, v{vX0}, {sr(SRD[buf],4)}, s{sOff} offen", "touch")
    def queue_touch(self, buf, vaddr_fn, soff_fn, dummy, gate=None):
        a = self.a
        def f():
            v = vaddr_fn(); soff_fn()
            a(f"buffer_load_dword v{dummy}, v{v}, {sr(SRD[buf],4)}, s{sD2} offen", "touch")
        self.queue_ld(f, "touch", gate)
    def poll(self, sOff, lanes_lo, lanes_n):
        a = self.a; L = self.newlabel("L_poll"); D = self.newlabel("L_pdone")
        a(f"v_and_b32 v{vX0}, {lanes_n-1}, v{vL}\nv_lshlrev_b32 v{vX0}, 2, v{vX0}\ns_mov_b32 s{sT2}, 0")
        a.fence()
        a.label(L)
        a(f"buffer_load_dword v{vX1}, v{vX0}, {sr(SRD['ws'],4)}, s{sOff} offen offset:{lanes_lo*4} sc1", "poll")
        a("s_waitcnt vmcnt(0)"); a.vm = []
        a(f"v_cmp_ne_u32 vcc, 1, v{vX1}\ns_add_u32 s{sT2}, s{sT2}, 1\ns_nop 2\ns_cbranch_vccz {D}")
        a(f"s_cmp_lt_u32 s{sT2}, {self.cfg['spin']}\ns_cbranch_scc0 {D}\ns_sleep 2\ns_branch {L}")
        a.label(D)
    def chk_issue_cleared(self, v):
        self.a(f"buffer_load_dword v{v}, off, {sr(SRD['dbg'],4)}, 0 sc1", ("chk", v))
    def chk_issue(self, v, sOff, lanes_n):
        self.a(f"v_and_b32 v{v+1}, {lanes_n-1}, v{vL}\nv_lshlrev_b32 v{v+1}, 2, v{v+1}")
        self.a(f"buffer_load_dword v{v}, v{v+1}, {sr(SRD['ws'],4)}, s{sOff} offen sc1", ("chk", v))
    def chk_verify(self, v, slow, cleared=False):
        a = self.a; D = self.newlabel("L_ok")
        if a.has_vm(("chk", v)): a.wait_vm(("chk", v))
        a(f"v_cmp_gt_u32 vcc, 0x100, v{v}" if cleared else f"v_cmp_ne_u32 vcc, 1, v{v}")
        a.fence()
        a(f"s_cbranch_vccz {D}")
        keep = list(a.vm)
        slow()
        a.vm = keep
        a.label(D)
    def poll_cleared(self):
        a = self.a; L = self.newlabel("L_pollc"); D = self.newlabel("L_pcdone")
        a(f"s_mov_b32 s{sT2}, 0")
        a.fence()
        a.label(L)
        a(f"buffer_load_dword v{vX1}, off, {sr(SRD['dbg'],4)}, 0 sc1", "poll")
        a("s_waitcnt vmcnt(0)"); a.vm = []
        a(f"v_cmp_gt_u32 vcc, 0x100, v{vX1}\ns_add_u32 s{sT2}, s{sT2}, 1\ns_nop 2\ns_cbranch_vccz {D}")
        a(f"s_cmp_lt_u32 s{sT2}, {self.cfg['spin']}\ns_cbranch_scc0 {D}\ns_sleep 2\ns_branch {L}")
        a.label(D)
    def run_oproj(self, subs, oreg, ACC, gate, zero_first, keep_last):
        def pre(t):
            self.wait_tag((gate, t, 1))
            if gate == "oa": self.stamp(48 + t)
        def mf(t, F):
            return [lambda ks=ks, ct=ct: self.mfma(ACC + 16*ct, F + 8*ks + 4*ct, oreg(t) + 4*ks, zero=(zero_first and t == 0 and ks == 0))
                    for ks in range(2) for ct in range(2)]
        self.steps(subs, lambda i, F: self.t_reads(i, vT, F), mf, self.cfg["LAo"], keep_last=keep_last, pre=pre)
        return subs[-2] % 4
    def out_reduce(self, ACC, rs, TMP, sOutOff, final):
        a = self.a
        a(f"v_lshrrev_b32 v{vX1}, 5, v{vL}\nv_and_b32 v{vX0}, 31, v{vL}\nv_xor_b32 v{vX0}, v{vX0}, v{vX1}\nv_lshlrev_b32 v{vX0}, 4, v{vX0}")
        a(f"v_lshlrev_b32 v{vX1}, 9, v{vX1}\nv_add3_u32 v{vX0}, v{vX0}, v{vX1}, s{sRB}")
        for i in range(8):
            if i: a(f"v_xor_b32 v{vF+i}, {32*i}, v{vX0}")
        for i in range(8):
            a(f"ds_write_b128 v{vF+i if i else vX0}, {vr(ACC+4*i,4)} offset:{rs*4096 + i*1024}")
        a(f"v_lshrrev_b32 v{vF+8}, 4, v{vL}\ns_lshl_b32 s{sT}, s{sW}, 2\nv_add_u32 v{vF+8}, s{sT}, v{vF+8}\nv_and_b32 v{vF+9}, 15, v{vL}")
        a(f"v_xor_b32 v{vF+10}, v{vF+8}, v{vF+9}\nv_lshlrev_b32 v{vF+10}, 4, v{vF+10}\nv_lshlrev_b32 v{vF+11}, 9, v{vF+9}\nv_add_u32 v{vX0}, v{vF+10}, v{vF+11}\nv_add_u32 v{vX1}, 0x10000, v{vX0}")
        a(f"v_lshlrev_b32 v{vF+8}, 12, v{vF+8}\nv_lshlrev_b32 v{vF+9}, 3, v{vF+9}\nv_add_u32 v{vF+8}, v{vF+8}, v{vF+9}")
        self.pump(self.cfg["redpump"], wait=False); a("s_waitcnt lgkmcnt(0)\ns_barrier")
        for p in range(8):
            a(f"ds_read_b128 {vr(TMP+4*p,4)}, v{vX0 if p < 4 else vX1} offset:{(p&3)*16384 + rs*4096}")
        for p in range(1, 8):
            a(f"s_waitcnt lgkmcnt({7-p})")
            for j in range(4):
                a(f"v_add_f32 v{TMP+j}, v{TMP+j}, v{TMP+4*p+j}")
        self.pack(TMP + 4, TMP, 2)
        a(f"buffer_store_dwordx2 {vr(TMP+4,2)}, v{vF+8}, {sr(SRD['out'],4)}, s{sOutOff} offen", "out")
        if not final:
            a("s_barrier")
            self.busy[rs] = self.busy[rs+1] = False
            self.fill()
    def prologue(self):
        a = self.a
        if self.cfg.get("early0"): a("s_memrealtime s[94:95]")
        a("s_cmp_ge_u32 s2, 256\ns_cbranch_scc1 L_end")
        a(f"s_load_dwordx16 s[{KA}:{KA+15}], s[0:1], 0\ns_load_dwordx8 s[{KA+16}:{KA+23}], s[0:1], 64\ns_load_dwordx2 s[{KA+24}:{KA+25}], s[0:1], 96")
        a(f"v_lshrrev_b32 v1, 6, v0\nv_and_b32 v{vL}, 63, v0\nv_readfirstlane_b32 s{sW}, v1")
        for k in ORDER:
            a(f"s_mov_b32 s{SRD[k]+2}, {SIZE[k]:#x}\ns_mov_b32 s{SRD[k]+3}, 0x20000")
        a(f"s_lshl_b32 s{sRB}, s{sW}, 14\ns_and_b32 s{sX}, s2, 7\ns_bfe_u32 s{sJJ}, s2, 0x40003")
        a(f"v_lshlrev_b32 v{vL16}, 4, v{vL}")
        t0, t1, t2 = vF, vF+1, vF+2
        a(f"v_bfe_u32 v{t0}, v{vL}, 4, 1\nv_lshlrev_b32 v{t0}, 2, v{t0}\nv_lshrrev_b32 v{t1}, 5, v{vL}\nv_or_b32 v{t0}, v{t0}, v{t1}")
        a(f"v_and_b32 v{t1}, 7, v{vL}\nv_xor_b32 v{t0}, v{t0}, v{t1}\nv_lshlrev_b32 v{t0}, 4, v{t0}")
        a(f"v_xor_b32 v{t1}, 32, v{t0}\nv_lshrrev_b32 v{t2}, 3, v{vL}")
        for vs, lg in ((vD2048, 11), (vD8192, 13), (vD256, 8)):
            for i in range(4):
                a(f"v_lshl_add_u32 v{vs+i}, v{t2}, {lg}, v{t1 if i & 1 else t0}")
                if i: a(f"v_add_u32 v{vs+i}, {(8*i << lg) - 1024*i}, v{vs+i}")
    def copy_ptrs(self, names):
        for k in names:
            o = KA + 2*ORDER.index(k)
            self.a(f"s_mov_b32 s{SRD[k]}, s{o}\ns_mov_b32 s{SRD[k]+1}, s{o+1}")
    def read_addrs(self):
        a = self.a; t0, t1, t2, t3 = vF, vF+1, vF+2, vF+3
        a(f"v_bfe_u32 v{t0}, v{vL}, 1, 1\nv_lshlrev_b32 v{t0}, 2, v{t0}\nv_bfe_u32 v{t1}, v{vL}, 2, 2\nv_or_b32 v{t0}, v{t0}, v{t1}")
        a(f"v_lshrrev_b32 v{t1}, 5, v{vL}\nv_xor_b32 v{t0}, v{t0}, v{t1}\nv_lshlrev_b32 v{t0}, 4, v{t0}")
        a(f"v_and_b32 v{t1}, 31, v{vL}\nv_lshl_add_u32 v{t0}, v{t1}, 7, v{t0}\nv_add_u32 v{vN}, s{sRB}, v{t0}")
        for s in range(1, 4): a(f"v_xor_b32 v{vN+s}, {32*s}, v{vN}")
        for base, nat in ((vT, False), (vTq, True)):
            if nat:
                a(f"v_and_b32 v{t0}, 1, v{vL}\nv_bfe_u32 v{t1}, v{vL}, 1, 1")
            else:
                a(f"v_bfe_u32 v{t0}, v{vL}, 1, 1\nv_and_b32 v{t1}, 1, v{vL}")
            a(f"v_bfe_u32 v{t2}, v{vL}, 4, 1\nv_lshl_add_u32 v{t0}, v{t2}, 1, v{t0}")
            a(f"v_bfe_u32 v{t2}, v{vL}, 3, 1\nv_lshlrev_b32 v{t2}, 2, v{t2}\nv_xor_b32 v{t0}, v{t0}, v{t2}")
            a(f"v_lshrrev_b32 v{t2}, 5, v{vL}")
            if nat: a(f"v_lshlrev_b32 v{t3}, 1, v{t2}\nv_xor_b32 v{t0}, v{t0}, v{t3}")
            else:   a(f"v_xor_b32 v{t0}, v{t0}, v{t2}")
            a(f"v_lshlrev_b32 v{t0}, 4, v{t0}\nv_lshl_add_u32 v{t0}, v{t1}, 3, v{t0}")
            a(f"v_bfe_u32 v{t1}, v{vL}, 2, 2\nv_lshl_add_u32 v{t1}, v{t2}, {3 if nat else 2}, v{t1}")
            a(f"v_lshl_add_u32 v{t0}, v{t1}, 7, v{t0}\nv_add_u32 v{base}, s{sRB}, v{t0}")
            ux, ur = (16, 4*128) if nat else (32, 8*128)
            a(f"v_xor_b32 v{base+1}, {ux}, v{base}\nv_add_u32 v{base+1}, {ur}, v{base+1}")
            a(f"v_xor_b32 v{base+2}, 64, v{base}\nv_xor_b32 v{base+3}, 64, v{base+1}")
    def flag_off(self, dst, branch, sB, sH):
        a = self.a
        a(f"s_lshl_b32 s{dst}, s{sB}, 10\ns_lshl_b32 s{sT}, s{sH}, 5\ns_add_u32 s{dst}, s{dst}, s{sT}\ns_add_u32 s{dst}, s{dst}, {WS_FLAG + branch*8192}")
    def clear_flags(self, offs):
        a = self.a; L = self.newlabel("L_clr")
        a(f"s_cmp_lg_u32 s{sW}, 0\ns_cbranch_scc1 {L}")
        a(f"v_lshlrev_b32 v{vX0}, 2, v{vL}\nv_mov_b32 v{vX1}, 0")
        for s, nl in offs:
            a(f"s_mov_b64 exec, {(1 << nl) - 1:#x}\nbuffer_store_dword v{vX1}, v{vX0}, {sr(SRD['ws'],4)}, s{s} offen sc1")
            a.vm.pop()
        a("s_mov_b64 exec, -1")
        a.label(L)
    def signal_cleared(self):
        a = self.a; L = self.newlabel("L_sig")
        a(f"s_cmp_lg_u32 s{sW}, 0\ns_cbranch_scc1 {L}")
        a(f"v_mov_b32 v{vX1}, 1\ns_mov_b64 exec, 1\nbuffer_atomic_add v{vX1}, off, {sr(SRD['dbg'],4)}, 0 sc1\ns_mov_b64 exec, -1")
        a.vm.pop()
        a.label(L)
    def role_common_B(self):
        pass
    def oproj_params(self, sBo, sCt, sO_, sF_, sOut, branch):
        a = self.a
        a(f"s_lshr_b32 s{sBo}, s{sJJ}, 1\ns_and_b32 s{sT}, s{sJJ}, 1\ns_lshl_b32 s{sCt}, s{sX}, 1\ns_add_u32 s{sCt}, s{sCt}, s{sT}")
        a(f"s_lshl_b32 s{sO_}, s{sBo}, 18\ns_lshl_b32 s{sT}, s{sW}, 15\ns_add_u32 s{sO_}, s{sO_}, s{sT}")
        a(f"s_lshl_b32 s{sF_}, s{sBo}, 10\ns_lshl_b32 s{sT}, s{sW}, 7\ns_add_u32 s{sF_}, s{sF_}, s{sT}\ns_add_u32 s{sF_}, s{sF_}, {WS_FLAG + branch*8192}")
        a(f"s_lshl_b32 s{sOut}, s{sBo}, 17\ns_lshl_b32 s{sT}, s{sCt}, 7\ns_add_u32 s{sOut}, s{sOut}, s{sT}")
        if branch: a(f"s_add_u32 s{sO_}, s{sO_}, {2 << 20}\ns_add_u32 s{sOut}, s{sOut}, 2048")
    def unit_ids(self):
        a = self.a
        a(f"s_and_b32 s{sT}, s{sJJ}, 3\ns_lshl_b32 s{sHB}, s{sX}, 2\ns_add_u32 s{sHB}, s{sHB}, s{sT}")
        a(f"s_and_b32 s{sT}, s{sJJ}, 2\ns_lshl_b32 s{sT}, s{sT}, 1\ns_lshr_b32 s{sBB}, s{sJJ}, 2\ns_add_u32 s{sBB}, s{sBB}, s{sT}")
    def load_q(self, dst, sQo):
        a = self.a
        a(f"s_add_u32 s{sT}, s{sQo}, 4096")
        for f in range(8):
            a(f"buffer_load_dwordx4 {vr(dst+4*f,4)}, v{vL16}, {sr(SRD['ws'],4)}, s{sT if f >= 4 else sQo} offen offset:{(f&3)*1024} sc1", ("q", f))
    def role_S(self):
        a = self.a; c = self.cfg
        self.start_role()
        self.stamp_regs = list(range(8, 24)) + list(range(28, 32)) + list(range(95, 102)); self.stamped = []
        P = sP
        self.unit_ids()
        a("s_waitcnt lgkmcnt(0)")
        self.copy_ptrs(ORDER)
        self.stamp(32)
        (sU1, sU2, sO1, sO2, sF1, sF2, sB2, sQo, sQf, sBo, sCt, sOA, sFA, sOut, sRotA) = range(P, P + 15)
        p1, p2, pw1 = P+15, P+16, P+17
        a(f"s_lshl_b32 s{sU1}, s{sBB}, 5\ns_add_u32 s{sU1}, s{sU1}, s{sHB}\ns_xor_b32 s{sU2}, s{sU1}, 128\ns_xor_b32 s{sB2}, s{sBB}, 4")
        self.K = c["K0"]
        a1 = self.queue_attn("kB", "vB", sU1, None, p1, c["fl_kvB"])
        self.fill()
        self.stamp(33)
        self.flag_off(sF1, 1, sBB, sHB); self.flag_off(sF2, 1, sB2, sHB)
        self.clear_flags([(sF1, 8), (sF2, 8)])
        self.stamp(0)
        self.read_addrs()
        a(f"s_lshl_b32 s{sQf}, s2, 7\ns_add_u32 s{sQf}, s{sQf}, {WS_QFLAG}\ns_lshl_b32 s{sQo}, s2, 14\ns_add_u32 s{sQo}, s{sQo}, {WS_Q}")
        a(f"s_lshl_b32 s{sO1}, s{sU1}, 13\ns_add_u32 s{sO1}, s{sO1}, {WS_O + (2 << 20)}\ns_lshl_b32 s{sO2}, s{sU2}, 13\ns_add_u32 s{sO2}, s{sO2}, {WS_O + (2 << 20)}")
        a(f"s_lshl_b32 s{sT}, s{sW}, 2\ns_add_u32 s{sF1}, s{sF1}, s{sT}\ns_add_u32 s{sF2}, s{sF2}, s{sT}")
        a2 = self.queue_attn("kB", "vB", sU2, None, p2, c["fl_kvB"])
        self.oproj_params(sBo, sCt, sOA, sFA, sOut, 0)
        a(f"s_lshl_b32 s{sRotA}, s{sBo}, 1")
        oregA = lambda t: (vB2 + 64 + 8*t) if t < 8 else (vB1 + 32 + 8*(t-8)) if t < 12 else (vB2 + 8*(t-12))
        wA = self.queue_wo("woA", 16, None, sRotA, pw1, sCt,
                           {1: lambda: [self.queue_o(oregA, t, 16, sRotA, sOA, "oa", "oa" if t < 12 else "oa2") for t in range(16)]})
        CK = vD8192
        for t, i in enumerate(a1[0]):
            self.wait_sub(i); self.stamp(34 + t)
            if t == 0: self.signal_cleared()
            if t == c["K0n"]: self.K = c["K"]
            if t == 5: self.chk_issue_cleared(CK)
            if t == 7: self.chk_verify(CK, self.poll_cleared, True)
            for r in self.n_reads(i, vB2 + 16*t): r()
            a("s_waitcnt lgkmcnt(0)")
            self.free(i)
        self.stamp(16)
        self.pump(c["prepoll"])
        self.poll(sQf, 0, 8)
        self.stamp(17)
        self.load_q(vF, sQo)
        for t in range(8):
            ti, dh = t >> 1, t & 1
            for s_ in range(4):
                if a.has_vm(("q", 4*dh + s_)): a.wait_vm(("q", 4*dh + s_))
                self.mfma(vB1 + 16*ti, vB2 + 16*t + 4*s_, vF + 16*dh + 4*s_, zero=(dh == 0 and s_ == 0))
            if t >= 1: self.pump(1, wait=False)
        def chkq2():
            a(f"s_add_u32 s{sQf}, s{sQf}, 32\ns_add_u32 s{sQo}, s{sQo}, 8192")
            self.chk_issue(CK + 1, sQf, 8)
        def loadq2():
            self.chk_verify(CK + 1, lambda: self.poll(sQf, 0, 8))
            self.load_q(vB1, sQo)
        self.attn_rest(1, a1[1], vB1, vB2 + 64, sO1, sF1, (7, 8, 9), after_softmax=chkq2, after_first_barrier=loadq2)
        self.stamp(10)
        if a.has_vm(("q", 7)): a.wait_vm(("q", 7))
        self.qk(1, a2[0])
        def chkA():
            self.chk_issue(CK + 1, sFA, 32)
        self.a2hook = None
        self.attn_rest(1, a2[1], vB2, vB1, sO2, sF2, (11, 12, 13), after_softmax=chkA,
                       after_first_barrier=None, urgent=True)
        self.stamp(14)
        self.chk_verify(CK + 1, lambda: self.poll(sFA, 0, 32))
        self.gates.add("oa"); self.gates.add("oa2"); self.K = c["Khit"]
        rs = self.run_oproj(wA, oregA, vB1, "oa", True, 2)
        self.stamp(15)
        self.out_reduce(vB1, rs, vB2, sOut, True)
        self.stamp(1)
        a("s_endpgm")
        a.reset_keep_t()
    def role_G(self):
        a = self.a; c = self.cfg
        self.start_role()
        self.stamp_regs = list(range(32, 40)) + list(range(95, 102)) + [86, 87, 88]; self.stamped = []
        P = sP
        self.unit_ids()
        a("s_waitcnt lgkmcnt(0)")
        self.copy_ptrs(ORDER)
        (sRot, sBP, sBA, sHA, sRotW, sRotK, sUA, sOa, sFa, sQo, sQf, sBo, sCt, sO1, sO2, sF1, sF2, sOut, sH1) = range(P, P + 19)
        pq, pqa, paa = P+19, sBB, sBP
        pw2, pw3 = sRot, sH1
        a(f"s_lshr_b32 s{sRot}, s{sJJ}, 2\ns_xor_b32 s{sBP}, s{sBB}, 4")
        a(f"s_lshl_b32 s{sT}, s{sJJ}, 15\ns_lshl_b32 s{sT2}, s{sW}, 12\ns_add_u32 s{sT}, s{sT}, s{sT2}")
        self.touch("xB", 6, sT, vB2)
        q = self.queue_qB(sBB, sBP, sHB, sRot, pq)
        self.fill()
        a(f"s_and_b32 s{sT3}, s{sX}, 1\ns_lshl_b32 s{sBA}, s{sT3}, 2\ns_add_u32 s{sBA}, s{sBA}, s{sRot}\ns_lshl_b32 s{sRotW}, s{sRot}, 1")
        a(f"s_and_b32 s{sRotK}, s{sJJ}, 3\ns_lshr_b32 s{sT2}, s{sX}, 1\ns_lshl_b32 s{sHA}, s{sT2}, 3\ns_lshl_b32 s{sT}, s{sRotK}, 1\ns_add_u32 s{sHA}, s{sHA}, s{sT}")
        a(f"s_lshl_b32 s{sUA}, s{sBA}, 2\ns_add_u32 s{sUA}, s{sUA}, s{sT2}")
        self.flag_off(sFa, 0, sBA, sHA)
        a(f"s_and_b32 s{sT}, s2, 127\ns_lshl_b32 s{sQf}, s{sT}, 7\ns_add_u32 s{sQf}, s{sQf}, {WS_QFLAG}\ns_lshl_b32 s{sQo}, s{sT}, 14\ns_add_u32 s{sQo}, s{sQo}, {WS_Q}")
        self.clear_flags([(sFa, 16), (sQf, 16)])
        self.stamp(0)
        self.read_addrs()
        a(f"s_lshl_b32 s{sOa}, s{sBA}, 5\ns_add_u32 s{sOa}, s{sOa}, s{sHA}\ns_lshl_b32 s{sOa}, s{sOa}, 13")
        a(f"s_lshl_b32 s{sT}, s{sW}, 2\ns_add_u32 s{sFa}, s{sFa}, s{sT}\ns_add_u32 s{sQf}, s{sQf}, s{sT}")
        DUM, TA = vX1, vX0
        DUM = vM; TA = vS
        def lanes(lgrow, lgline):
            def f(TA=TA, DUM=DUM):
                a(f"v_lshrrev_b32 v{TA}, 1, v{vL}\nv_lshlrev_b32 v{TA}, {lgrow}, v{TA}\nv_and_b32 v{TA+1}, 1, v{vL}\nv_lshl_add_u32 v{TA}, v{TA+1}, 7, v{TA}"); return TA
            return f
        def lin(lg, TA=TA):
            def f():
                a(f"v_lshlrev_b32 v{TA}, {lg}, v{vL}"); return TA
            return f
        self.queue_touch("xA", lin(5), lambda: a(f"s_and_b32 s{sD2}, s{sX}, 1\ns_lshl_b32 s{sD2}, s{sD2}, 4\ns_add_u32 s{sD2}, s{sD2}, s{sJJ}\ns_lshl_b32 s{sD2}, s{sD2}, 3\ns_add_u32 s{sD2}, s{sD2}, s{sW}\ns_lshl_b32 s{sD2}, s{sD2}, 11"), DUM)
        a(f"s_mov_b32 s{sH1}, s{sHB}")
        qa_par = []
        if c["touchWA"]:
            for k in range(2):
                self.queue_touch("wqA", lanes(13, 7), lambda k=k: a(f"s_add_u32 s{sD2}, s{sRotW}, {k}\ns_lshl_b32 s{sD2}, s{sD2}, 18\ns_add_u32 s{sD2}, s{sD2}, s{pqa+1}"), DUM, gate="tw" if c["gateWA"] else None)
        qa = self.queue_qA(sBA, sHA, sRotW, pqa)
        kv = lambda: a(f"s_lshl_b32 s{sD2}, s{sRotK}, 16\ns_add_u32 s{sD2}, s{sD2}, s{paa}")
        if c["touchK"]: self.queue_touch("kA", lin(7), kv, DUM)
        if c["touchV"] == 1: self.queue_touch("vA", lin(7), kv, DUM)
        aa = self.queue_attn("kA", "vA", sUA, sRotK, paa, c["fl_kvA"],
                             between=(lambda: self.queue_touch("vA", lin(7, vD8192+2), kv, vD8192+3)) if c["touchV"] == 2 else None)
        self.oproj_params(sBo, sCt, sO1, sF1, sOut, 1)
        self.run_qB(q, sRot, sQo, sQf)
        self.stamp(7)
        sH2 = sQo
        self.run_qA(qa)
        a(f"s_lshr_b32 s{sH1}, s{sBo}, 2\ns_lshl_b32 s{sH1}, s{sH1}, 1\ns_xor_b32 s{sH2}, s{sH1}, 2")
        a(f"s_lshl_b32 s{sT}, s{sH2}, 5\ns_add_u32 s{sF2}, s{sF1}, s{sT}\ns_lshl_b32 s{sT}, s{sH2}, 13\ns_add_u32 s{sO2}, s{sO1}, s{sT}")
        a(f"s_lshl_b32 s{sT}, s{sH1}, 5\ns_add_u32 s{sF1}, s{sF1}, s{sT}\ns_lshl_b32 s{sT}, s{sH1}, 13\ns_add_u32 s{sO1}, s{sO1}, s{sT}")
        oregB = lambda t: vB2 + 8*t
        oregC = lambda t: (vB1 + 32 + 8*t) if t < 4 else (vF + 8*(t-4))
        T2, D2 = vTq, vTq + 2
        if c["touchWB"]:
            def vwb():
                a(f"v_and_b32 v{T2}, 31, v{vL}\nv_lshlrev_b32 v{T2}, 11, v{T2}\nv_lshrrev_b32 v{T2+1}, 5, v{vL}\nv_lshl_add_u32 v{T2}, v{T2+1}, 19, v{T2}"); return T2
            self.queue_touch("woB", vwb, lambda: a(f"s_lshl_b32 s{sD2}, s{sW}, 20\ns_lshl_b32 s{sT}, s{sCt}, 7\ns_add_u32 s{sD2}, s{sD2}, s{sT}\ns_lshl_b32 s{sT}, s{sBo}, 16\ns_add_u32 s{sD2}, s{sD2}, s{sT}"), D2)
        wB1 = self.queue_wo("woB", 8, sH1, sBo, pw2, sCt, {3: lambda: [self.queue_o(oregB, t, 8, sBo, sO1, "ob") for t in range(8)]})
        wB2 = self.queue_wo("woB", 8, sH2, sBo, pw3, sCt)
        if c["touchW"]:
            def vwo():
                a(f"v_lshrrev_b32 v{T2}, 1, v{vL}\nv_lshlrev_b32 v{T2}, 11, v{T2}\nv_and_b32 v{T2+1}, 1, v{vL}\nv_lshl_add_u32 v{T2}, v{T2+1}, 7, v{T2}"); return T2
            self.queue_touch("woA", vwo, lambda: a(f"s_lshl_b32 s{sD2}, s{sJJ}, 3\ns_add_u32 s{sD2}, s{sD2}, s{sW}\ns_lshl_b32 s{sD2}, s{sD2}, 16\ns_lshl_b32 s{sT}, s{sX}, 8\ns_add_u32 s{sD2}, s{sD2}, s{sT}"), D2)
        if c["touchO"]:
            for k in range(2):
                self.queue_touch("ws", lin(7, T2), lambda k=k: a(f"s_lshl_b32 s{sD2}, s{sJJ}, 3\ns_add_u32 s{sD2}, s{sD2}, s{sW}\ns_lshl_b32 s{sD2}, s{sD2}, 14\ns_add_u32 s{sD2}, s{sD2}, {WS_O + 8192*k}"), D2, gate="to")
        for t in range(8): self.queue_o(oregC, t, 8, sBo, sO2, "oc")
        self.stamp(5)
        CK = vD8192
        self.qk(2, aa[0], hooks={0: lambda: self.chk_issue_cleared(CK), 4: lambda: self.chk_verify(CK, self.poll_cleared, True)})
        self.attn_rest(2, aa[1], vB2, vB1, sOa, sFa, (2, 3, 4), keep=4, after_softmax=lambda: self.chk_issue(CK, sF1, 16), urgent=True)
        self.stamp(6)
        ACC = vB1
        self.chk_verify(CK, lambda: (self.poll(sF1, 0, 16)))
        self.stamp(14)
        self.gates.add("ob")
        if c["touchO"]:
            a(f"s_lshl_b32 s{sT3}, s{sJJ}, 3\ns_add_u32 s{sT3}, s{sT3}, s{sW}\ns_lshl_b32 s{sT3}, s{sT3}, 6\ns_add_u32 s{sT3}, s{sT3}, {WS_FLAG}")
        self.run_oproj(wB1, oregB, ACC, "ob", True, 0)
        self.stamp(13)
        W = vB2
        for t, i in enumerate(wB2):
            self.wait_sub(i)
            if t == 2 and c["touchO"]: self.chk_issue(CK, sT3, 16)
            self.tr_reads(i, vT, W + 16*t)
            a("s_waitcnt lgkmcnt(0)")
            self.free(i)
        if c["touchO"]:
            self.chk_verify(CK, lambda: self.poll(sT3, 0, 16)); self.gates.add("to")
        self.pump(3)
        self.stamp(15)
        self.poll(sF2, 0, 16)
        self.stamp(12)
        self.gates.add("oc"); self.K = c["Ktail"]
        for t in range(8):
            for ks in range(2):
                self.wait_tag(("oc", t, ks))
                for ct in range(2):
                    self.mfma(ACC + 16*ct, W + 16*t + 8*ks + 4*ct, oregC(t) + 4*ks)
        self.out_reduce(ACC, 0, vB2, sOut, True)
        self.stamp(1)
        a("s_endpgm")
        a.reset_keep_t()
    def build(self):
        a = self.a
        self.prologue()
        a("s_cmp_ge_u32 s2, 128\ns_cbranch_scc1 L_roleG")
        sv = (a.t, dict(a.valu_w), dict(a.valu_sw))
        self.role_S()
        a.label("L_roleG")
        a.nop(2)
        self.role_G()
        a.label("L_end")
        a("s_endpgm")
        body = a.text()
        return (HDR + f"; @launch grid=(256,1,1) block=(512,1,1) lds=163840\n"
                + '.amdgcn_target "amdgcn-amd-amdhsa--gfx950"\n.text\n'
                + f".globl {NAME}_kernel\n.p2align 8\n.type {NAME}_kernel,@function\n{NAME}_kernel:\n" + body
                + f""".section .rodata,"a"
.p2align 6
.amdhsa_kernel {NAME}_kernel
  .amdhsa_next_free_vgpr 256
  .amdhsa_next_free_sgpr 102
  .amdhsa_accum_offset 256
  .amdhsa_group_segment_fixed_size 0
  .amdhsa_kernarg_size 104
  .amdhsa_user_sgpr_count 2
  .amdhsa_user_sgpr_kernarg_segment_ptr 1
  .amdhsa_system_sgpr_workgroup_id_x 1
.end_amdhsa_kernel
""")

DEFAULT = dict(gateWA=1, K0=4, K0n=3, Khit=8, prepoll=0, touchWA=1, touchWB=1, touchO=1, pipe1=False, LAq=8, LAa=8, LAb=6, LAo=8, touchK=1, touchV=2, touchW=1, flagt=2, redpump=2, K=6, Ktail=6, smpump=8, fl_x="", fl_w="", fl_wo="", fl_kvA="", fl_kvB="nt", oproj=True, stamps=False, spin=200000)
def make(**kw):
    c = dict(DEFAULT); c.update(kw)
    return Gen(c).build()
if __name__ == "__main__":
    out = sys.argv[1] if len(sys.argv) > 1 else "cdna_kernels/" + NAME + ".s"
    kw = eval("dict(" + (sys.argv[2] if len(sys.argv) > 2 else "") + ")")
    open(out, "w").write(make(**kw))
```

```python
import sys, math
from collections import deque
from asmlib import Asm, vr, sr

NAME = "concat_heads__gqa_block_cached__mha_block_cached__near_ridge"
HDR = open("cdna_kernels/" + NAME + ".s.ref").read().split("; Override launch")[0]

SRD = dict(G=96, xA=8, kA=12, vA=16, wqA=20, woA=24, xB=28, kB=32, vB=36, wqB=40, woB=44, out=48, dbg=52, ws=56)
SIZE = dict(xA=1<<19, kA=1<<23, vA=1<<23, wqA=1<<23, woA=1<<23, xB=1<<19, kB=1<<26, vB=1<<26, wqB=1<<23, woB=1<<23,
            out=1<<20, dbg=256, ws=1<<28)
ORDER = ["xA", "kA", "vA", "wqA", "woA", "xB", "kB", "vB", "wqB", "woB", "out", "dbg", "ws"]
sW = 3; sRB = 60; sT = 61; sT2 = 62; sT3 = 63; sD = 93; sD2 = 89; sG = 96
sX = 4; sJJ = 5; sBB = 6; sHB = 7
KA = 64
sP = 64
vL = 0
vD256 = 1; vD2048 = 5; vD8192 = 9
vN = 13
vT = 17; vTq = 21
vL16 = 25
vM = 26; vS = 28
vF = 30
vB1 = 62
vB2 = 126
vX0 = 254; vX1 = 255
vGa = vB2 + 96; vCA = vB2 + 100; vCW = vB2 + 104
SPARE = 131072
QX = SPARE
ML = SPARE + 16384
WS_O = 0
WS_Q = 4 << 20
WS_TS = 8 << 20
WS_FLAG = 9 << 20
WS_QFLAG = WS_FLAG + (512 << 10)
WS_PFLAG = WS_FLAG + (640 << 10)
WS_P = 16 << 20
SCALE = math.log2(math.e) / math.sqrt(128.0)

def f2u(x):
    import struct
    return struct.unpack("<I", struct.pack("<f", x))[0]

class Gen:
    def __init__(self, cfg):
        self.cfg = cfg
        self.a = Asm()
        self.lbl = 0
    def newlabel(self, p="L"):
        self.lbl += 1
        return f"{p}_{self.lbl}"
    def start_role(self):
        self.q = deque(); self.nqueued = 0
        self.busy = [False]*4
        self.a.vm = []
        self.pend_flag = None
        self.gates = set()
        self.K = self.cfg["K"]
        self.done_issue = set()
    def queue(self, setup, buf, vset, flags):
        i = self.nqueued; self.nqueued += 1
        for k in range(4):
            self.q.append(("dma", i, k, setup, buf, vset, flags))
        return i
    def queue_ld(self, fn, tag, gate=None):
        self.q.append(("ld", fn, tag, gate))
    def can_issue(self):
        if not self.q: return False
        e = self.q[0]
        if e[0] == "dma": return e[2] > 0 or not self.busy[e[1] % 4]
        return e[3] is None or e[3] in self.gates
    def pump(self, n=1, wait=True):
        a = self.a; done = 0
        while done < n and self.can_issue():
            e = self.q.popleft()
            if e[0] == "dma":
                _, i, k, setup, buf, vset, flags = e
                if k == 0:
                    self.busy[i % 4] = True
                    a(f"s_add_u32 m0, s{sRB}, {(i%4)*4096}")
                    setup()
            if len(a.vm) > self.K - 1:
                if wait: a(f"s_waitcnt vmcnt({self.K-1})"); a.vm = a.vm[len(a.vm)-(self.K-1):]
            if e[0] == "dma":
                a(f"buffer_load_dwordx4 v{vset+k}, {sr(SRD[buf],4)}, s{sD} offen offset:{1024*k} {flags} lds", ("sub", i))
                if k == 3: self.done_issue.add(("sub", i))
            else:
                e[1](); self.done_issue.add(e[2])
            done += 1
        return done
    def fill(self):
        while len(self.a.vm) < self.K and self.can_issue():
            self.pump(1)
    def free(self, i):
        self.busy[i % 4] = False
    def wait_tag(self, tag):
        while tag not in self.done_issue:
            assert self.pump(1), f"{tag} cannot be issued"
        while self.a.has_vm(tag):
            if not self.pump(1): self.a.wait_vm(tag)
    def wait_sub(self, i):
        self.wait_tag(("sub", i))
    def stamp(self, k):
        if not self.cfg.get("stamps"): return
        sel = self.cfg.get("sel")
        if sel is None:
            if k >= 32: return
        elif k not in sel and k > 1: return
        a = self.a
        if len(self.stamp_regs) <= 1 and k != 1: return
        r = self.stamp_regs.pop(0); self.stamped.append((k, r))
        if k == 0 and self.cfg.get("early0"):
            a(f"s_mov_b32 s{r}, s94")
        else:
            a(f"s_memrealtime s[90:91]\ns_waitcnt lgkmcnt(0)\ns_mov_b32 s{r}, s90")
        if k == 1:
            a(f"v_mov_b32 v{vX0}, 0")
            for kk, rr in self.stamped:
                a(f"v_writelane_b32 v{vX0}, s{rr}, {kk}")
            a(f"s_lshl_b32 s92, s2, 3\ns_add_u32 s92, s92, s{sW}\ns_lshl_b32 s92, s92, 8\ns_add_u32 s92, s92, {WS_TS}")
            a(f"v_lshlrev_b32 v{vX1}, 2, v{vL}\nbuffer_store_dword v{vX0}, v{vX1}, {sr(SRD['ws'],4)}, s92 offen", "stamp")
    def t_block(self, i, taddr, mf):
        a = self.a; slot = i % 4; F = vF + 16*(i & 1)
        self.wait_sub(i)
        for ks in range(2):
            for ct in range(2):
                for u in range(2):
                    a(f"ds_read_b64_tr_b16 {vr(F + 8*ks + 4*ct + 2*u, 2)}, v{taddr + 2*ct + u} offset:{slot*4096 + ks*2048}")
        k = 0
        for ks in range(2):
            for ct in range(2):
                k += 1
                a(f"s_waitcnt lgkmcnt({8 - 2*k})")
                mf(ks, ct, F + 8*ks + 4*ct)
        self.free(i)
    def n_reads(self, i, dst):
        return [lambda s_=s_: self.a(f"ds_read_b128 {vr(dst+4*s_,4)}, v{vN+s_} offset:{(i%4)*4096}") for s_ in range(4)]
    def t_reads(self, i, taddr, dst):
        return [lambda ks=ks, ct=ct, u=u: self.a(f"ds_read_b64_tr_b16 {vr(dst + 8*ks + 4*ct + 2*u, 2)}, v{taddr + 2*ct + u} offset:{(i%4)*4096 + ks*2048}")
                for ks in range(2) for ct in range(2) for u in range(2)]
    def landed(self, tag):
        while tag not in self.done_issue:
            assert self.pump(1), f"{tag} cannot be issued"
        if self.a.has_vm(tag): self.a.wait_vm(tag)
    def steps(self, subs, reads, mfmas, LA, keep_last=0, pre=None, post=None, first_done=False):
        a = self.a; n = len(subs)
        Fb = lambda t: vF + 16*(t & 1)
        if not first_done:
            self.landed(("sub", subs[0]))
            for r in reads(subs[0], Fb(0)): r()
        for t in range(n):
            if t + 1 < n: self.landed(("sub", subs[t+1]))
            if pre: pre(t)
            a("s_waitcnt lgkmcnt(0)")
            self.free(subs[t])
            if t >= n - keep_last: self.busy[subs[t] % 4] = True
            fill = reads(subs[t+1], Fb(t+1)) if t + 1 < n else []
            npump = max(0, LA - len(a.vm))
            pumps = [lambda: self.pump(1, wait=False)] * npump
            seq = []
            while fill or pumps:
                if fill: seq.append(fill.pop(0))
                if fill and len(fill) >= len(pumps): seq.append(fill.pop(0))
                if pumps: seq.append(pumps.pop(0))
            mf = mfmas(t, Fb(t))
            for k, m in enumerate(mf):
                m()
                lo, hi = len(seq)*k // len(mf), len(seq)*(k+1) // len(mf)
                for f in seq[lo:hi]: f()
            if post: post(t)
    def mfma(self, d, A, B, zero=False):
        self.a(f"v_mfma_f32_32x32x16_bf16 {vr(d,16)}, {vr(A,4)}, {vr(B,4)}, {'0' if zero else vr(d,16)}")
    def pack(self, dst, src, n):
        for k in range(n):
            self.a(f"v_cvt_pk_bf16_f32 v{dst+k}, v{src+2*k}, v{src+2*k+1}")
    def perm_matrix(self, dst):
        a = self.a; t0, t1 = vX0, vX1
        a(f"v_bfe_u32 v{t0}, v{vL}, 2, 1\nv_lshrrev_b32 v{t1}, 5, v{vL}\nv_xor_b32 v{t0}, v{t0}, v{t1}\nv_bfe_u32 v{t1}, v{vL}, 4, 1\nv_or_b32 v{t0}, v{t0}, v{t1}")
        a(f"v_lshlrev_b32 v{t0}, 2, v{t0}\nv_bfe_u32 v{t1}, v{vL}, 3, 1\nv_lshl_add_u32 v{t0}, v{t1}, 1, v{t0}\nv_bfe_u32 v{t1}, v{vL}, 1, 1\nv_add_u32 v{t0}, v{t0}, v{t1}")
        a(f"v_and_b32 v{t1}, 1, v{vL}\nv_lshlrev_b32 v{t1}, 4, v{t1}\nv_mov_b32 v{dst}, 0x3f80\nv_lshlrev_b32 v{t1}, v{t1}, v{dst}")
        for d in range(4):
            a(f"v_cmp_eq_u32 vcc, {d}, v{t0}\nv_cndmask_b32 v{dst+d}, 0, v{t1}, vcc")
    def msum(self, D, PM, R, n, cnt):
        for p in range(n):
            cnt -= 1
            self.a(f"s_waitcnt lgkmcnt({cnt})")
            self.mfma(D, PM, R + 4*p, zero=(p == 0))
        return cnt
    def bar(self, pump=True):
        if pump: self.pump(self.cfg["redpump"], wait=False)
        self.a("s_waitcnt lgkmcnt(0)\ns_barrier")
    def tr_reads(self, i, taddr, dst):
        for r in self.t_reads(i, taddr, dst): r()
    def queue_w(self, wb, g, ch, ng, sRot, pw):
        a = self.a
        def fw():
            a(f"s_add_u32 s{sD}, s{sRot}, {g}\ns_and_b32 s{sD}, s{sD}, {ng-1}\ns_lshl_b32 s{sD}, s{sD}, 18\ns_add_u32 s{sD}, s{sD}, s{pw}")
            if ch: a(f"s_add_u32 s{sD}, s{sD}, 128")
        return self.queue(fw, wb, vD8192, self.cfg["fl_w"])
    def set_flag(self, sFl, n=1, off=0):
        a = self.a
        a(f"v_mov_b32 v{vX0}, 1\ns_mov_b64 exec, 1")
        for hh in range(n):
            a(f"buffer_store_dword v{vX0}, off, {sr(SRD['ws'],4)}, s{sFl} offset:{off + 1024*hh} sc1", "flag")
        a("s_mov_b64 exec, -1")
    def flush_flag(self):
        if self.pend_flag is None: return
        tag, sFl, n, off = self.pend_flag
        if self.a.has_vm(tag): self.a.wait_vm(tag)
        self.set_flag(sFl, n, off)
        self.pend_flag = None
    def pick(self, abuf, wbuf, sSel=None, abuf2=None, wbuf2=None):
        a = self.a
        for k in range(3):
            if sSel is None:
                a(f"s_cmp_lt_u32 s{sW}, 4\ns_cselect_b32 s{sG+k}, s{SRD[abuf]+k}, s{SRD[wbuf]+k}")
            else:
                a(f"s_cmp_eq_u32 s{sSel}, 0\ns_cselect_b32 s{sT}, s{SRD[abuf]+k}, s{SRD[abuf2]+k}\ns_cselect_b32 s{sT2}, s{SRD[wbuf]+k}, s{SRD[wbuf2]+k}")
                a(f"s_cmp_lt_u32 s{sW}, 4\ns_cselect_b32 s{sG+k}, s{sT}, s{sT2}")
        a(f"s_mov_b32 s{sG+3}, 0x20000")
    def queue_cg(self, nst, p, first, flags, gate=None):
        a = self.a; l = []
        if gate: self.queue_ld(lambda: None, ("gate", gate), gate)
        for st in range(nst):
            def f(st=st):
                if st == 0: first()
                a(f"s_add_u32 s{sD}, s{p+2}, {st}\ns_and_b32 s{sD}, s{sD}, {nst-1}\ns_lshl_b32 s{sD}, s{sD}, s{p+1}\ns_add_u32 s{sD}, s{sD}, s{p}")
            l.append(self.queue(f, "G", vGa, flags))
        return l
    def cg_addr(self, linear, taddr):
        a = self.a
        a(f"s_and_b32 s{sT}, s{sW}, 3\ns_lshl_b32 s{sT}, s{sT}, 14\ns_lshr_b32 s{sT2}, s{sW}, 2\ns_add_u32 s{sT2}, s{sT2}, 4\ns_lshl_b32 s{sT2}, s{sT2}, 14\ns_sub_u32 s{sT2}, s{sT2}, s{sRB}")
        if linear:
            a(f"v_add_u32 v{vCA}, s{sT}, v{vL16}")
        else:
            a(f"s_sub_u32 s{sT}, s{sT}, s{sRB}")
            for k in range(4): a(f"v_add_u32 v{vCA+k}, s{sT}, v{vN+k}")
        for k in range(4): a(f"v_add_u32 v{vCW+k}, s{sT2}, v{taddr+k}")
    def run_cg(self, subs, linear, ACC, LA, stamp0=None, hooks=None):
        a = self.a; n = len(subs)
        FB = lambda t: vB2 + 48*(t & 1)
        def reads(t):
            F = FB(t); so = (subs[t] % 4)*4096; out = []
            for kk in range(4):
                g, ks = kk >> 1, kk & 1
                out.append(lambda kk=kk: a(f"ds_read_b128 {vr(F+4*kk,4)}, v{vCA if linear else vCA+kk} offset:{so + (1024*kk if linear else 0)}"))
                for ct in range(2):
                    for u in range(2):
                        out.append(lambda g=g, ks=ks, ct=ct, u=u, kk=kk: a(f"ds_read_b64_tr_b16 {vr(F + 16 + 8*kk + 4*ct + 2*u, 2)}, v{vCW + 2*ct + u} offset:{so + g*32768 + ks*2048}"))
            return out
        self.landed(("sub", subs[0])); a("s_barrier")
        r0 = reads(0)
        for k, r in enumerate(r0):
            if k == 12: a("s_waitcnt lgkmcnt(4)")
            r()
        for t in range(n):
            if t + 1 < n: self.landed(("sub", subs[t+1]))
            if hooks and t in hooks: hooks[t]()
            a("s_waitcnt lgkmcnt(0)\ns_barrier")
            self.free(subs[t])
            fill = reads(t+1) if t + 1 < n else []
            pumps = [lambda: self.pump(1, wait=False)] * max(0, LA - len(a.vm))
            seq = pumps[:1] + fill[:5] + pumps[1:2] + fill[5:10] + pumps[2:3] + [lambda: a("s_waitcnt lgkmcnt(5)")] * bool(fill) + fill[10:15] + pumps[3:] + fill[15:]
            F = FB(t)
            mf = [lambda kk=kk, ct=ct: self.mfma(ACC + 16*ct, F + 16 + 8*kk + 4*ct, F + 4*kk, zero=(t == 0 and kk == 0)) for kk in range(4) for ct in range(2)]
            nsp = self.cfg["cgspread"]
            for k, m in enumerate(mf):
                m()
                if k < nsp:
                    for f in seq[len(seq)*k // nsp: len(seq)*(k+1) // nsp]: f()
            if stamp0 is not None: self.stamp(stamp0 + t)
    def queue_attn(self, kb, vb, sUnit, sRot, p, fl, between=None, afterV3=None):
        a = self.a
        a(f"s_lshl_b32 s{p}, s{sUnit}, 18\ns_lshl_b32 s{sT}, s{sW}, 13\ns_add_u32 s{p}, s{p}, s{sT}")
        out = []
        for buf in (kb, vb):
            l = []
            for i in range(4):
                for dh in range(2):
                    def f(i=i, dh=dh):
                        if sRot is None:
                            a(f"s_add_u32 s{sD}, s{p}, {i*65536 + dh*128}")
                        else:
                            a(f"s_add_u32 s{sD}, s{sRot}, {i}\ns_and_b32 s{sD}, s{sD}, 3\ns_lshl_b32 s{sD}, s{sD}, 16\ns_add_u32 s{sD}, s{sD}, s{p}")
                            if dh: a(f"s_add_u32 s{sD}, s{sD}, 128")
                    l.append(self.queue(f, buf, vD256, fl))
                    if buf == vb and i == 1 and dh == 1 and afterV3: afterV3()
            out.append(l)
            if buf == kb and between: between()
        return out
    def row_max(self, S_, m):
        a = self.a; T = vF
        for c in range(4):
            b = S_ + 16*c
            a(f"v_max3_f32 v{T+c}, v{b}, v{b+1}, v{b+2}")
        for k in range(6):
            for c in range(4):
                b = S_ + 16*c + 3 + 2*k
                a(f"v_max3_f32 v{T+c}, v{T+c}, v{b}, v{b+1}")
        a(f"v_max3_f32 v{T}, v{T}, v{S_+15}, v{S_+31}\nv_max3_f32 v{T+1}, v{T+1}, v{S_+47}, v{S_+63}")
        a(f"v_max3_f32 v{T}, v{T}, v{T+2}, v{T+3}\nv_max_f32 v{m}, v{T}, v{T+1}\nv_mov_b32 v{T}, v{m}")
        a(f"v_permlane32_swap_b32 v{m}, v{T}\nv_max_f32 v{m}, v{m}, v{T}")
    def row_exp(self, S_, P, m, l, npump):
        a = self.a; T = vF
        for k in range(0, 64, 8):
            for j in range(8): a(f"v_sub_f32 v{S_+k+j}, v{S_+k+j}, v{m}")
            for j in range(8): a(f"v_exp_f32 v{S_+k+j}, v{S_+k+j}")
            for j in range(8):
                c = j & 3
                if k == 0 and j < 4: continue
                a(f"v_add_f32 v{T+c}, v{S_+c if k == 0 else T+c}, v{S_+k+j}")
            self.pack(P + k//2, S_ + k, 4)
            self.pump(npump*(k//8 + 1)//8 - npump*(k//8)//8, wait=False)
        a(f"v_add_f32 v{T}, v{T}, v{T+1}\nv_add_f32 v{T+2}, v{T+2}, v{T+3}\nv_add_f32 v{l}, v{T}, v{T+2}\nv_mov_b32 v{T}, v{l}")
        a(f"v_permlane32_swap_b32 v{l}, v{T}\nv_add_f32 v{l}, v{l}, v{T}")
    def qk(self, n, ks_, hooks=None):
        a = self.a; piped = n == 2
        def preK(t):
            if t == self.cfg['flagt']: self.flush_flag()
            if hooks and t in hooks: hooks[t]()
        if piped:
            def mfK(t, F):
                ti, dh = t >> 1, t & 1
                return [lambda s_=s_, hh=hh: self.mfma(vB2 + 64*hh + 16*ti, F+4*s_, vB1 + 32*hh + 16*dh + 4*s_, zero=(dh == 0 and s_ == 0))
                        for s_ in range(4) for hh in range(n)]
            self.steps(ks_, self.n_reads, mfK, self.cfg["LAa"], pre=preK, post=lambda t: None if self.cfg.get('qasel') else self.stamp(32 + t))
            return
        for t, i in enumerate(ks_):
            ti, dh = t >> 1, t & 1; F = vF + 16*(i & 1)
            self.wait_sub(i); preK(t); self.stamp(42 + t) if not self.cfg.get('qasel') else None
            for r in self.n_reads(i, F): r()
            for s_ in range(4):
                a(f"s_waitcnt lgkmcnt({3-s_})")
                self.mfma(vB2 + 16*ti, F+4*s_, vB1 + 16*dh + 4*s_, zero=(dh == 0 and s_ == 0))
            self.free(i)
    def attn_rest(self, n, vs_, Sb, Pb, sOunit, sFlag, st, keep=2, after_softmax=None, after_first_barrier=None, urgent=False):
        a = self.a
        MA = vM + 1 if n == 1 else None
        self.stamp(st[0])
        a(f"v_and_b32 v{vX1}, 31, v{vL}\nv_lshlrev_b32 v{vX1}, 5, v{vX1}\nv_add_u32 v{vX1}, {ML}, v{vX1}\ns_lshl_b32 s{sT}, s{sW}, 2\nv_add_u32 v{vX0}, s{sT}, v{vX1}")
        for hh in range(n):
            self.row_max(Sb + 64*hh, vM + hh)
            a(f"ds_write_b32 v{vX0}, v{vM+hh} offset:{hh*2048}")
        self.bar()
        for hh in range(n):
            a(f"ds_read_b128 {vr(vF+8*hh,4)}, v{vX1} offset:{hh*2048}\nds_read_b128 {vr(vF+8*hh+4,4)}, v{vX1} offset:{hh*2048+16}")
        for hh in range(n):
            b = vF + 8*hh
            a(f"s_waitcnt lgkmcnt({2*(n-1-hh)})")
            a(f"v_max3_f32 v{b}, v{b}, v{b+1}, v{b+2}\nv_max3_f32 v{b+3}, v{b+3}, v{b+4}, v{b+5}\nv_max3_f32 v{b}, v{b}, v{b+6}, v{b+7}\nv_max_f32 v{vM+hh}, v{b}, v{b+3}")
        for hh in range(n):
            self.row_exp(Sb + 64*hh, Pb + 32*hh, vM + hh, vS + hh, self.cfg["smpump"] // n)
            a(f"ds_write_b32 v{vX0}, v{vS+hh} offset:{hh*2048 + 1024}")
        if after_softmax:
            a("s_waitcnt lgkmcnt(0)"); after_softmax()
        self.stamp(st[1])
        if n == 2:
            def mfV(t, F):
                ti, dh = t >> 1, t & 1
                return [lambda ks=ks, ct=ct, hh=hh: self.mfma(vB2 + 64*hh + 16*(2*dh+ct), F + 8*ks + 4*ct, Pb + 32*hh + 8*ti + 4*ks, zero=(ti == 0 and ks == 0))
                        for ks in range(2) for ct in range(2) for hh in range(n)]
            self.steps(vs_, lambda i, F: self.t_reads(i, vT, F), mfV, self.cfg["LAa"], keep_last=keep, post=lambda t: None if self.cfg.get('qasel') else self.stamp(40 + t))
        else:
            a("s_waitcnt lgkmcnt(0)")
            for t, i in enumerate(vs_):
                ti, dh = t >> 1, t & 1
                self.t_block(i, vT, lambda ks, ct, A: self.mfma(vB2 + 16*(2*dh+ct), A, Pb + 8*ti + 4*ks, zero=(ti == 0 and ks == 0)))
                if t >= len(vs_) - keep: self.busy[i % 4] = True
                if st[0] == 11: self.stamp(50 + t)
        self.stamp(st[2])
        rs = vs_[-keep] % 4
        so = [rs*4096, ((rs+2) % 4)*4096]
        PM, WA, RA, LA_ = vF, vF + 8, vF + 9, vF + 11
        a(f"v_add_u32 v{WA}, s{sRB}, v{vL16}\ns_lshl_b32 s{sT}, s{sW}, 10\nv_add_u32 v{RA}, s{sT}, v{vL16}\nv_add_u32 v{RA+1}, 0x10000, v{RA}")
        a(f"v_and_b32 v{LA_}, 31, v{vL}\nv_lshlrev_b32 v{LA_}, 5, v{LA_}\nv_add_u32 v{LA_}, {ML + 1024}, v{LA_}")
        self.perm_matrix(PM)
        for hh in range(n):
            self.pack(vB1 + 32*hh, vB2 + 64*hh, 32)
            for f in range(8):
                a(f"ds_write_b128 v{WA}, {vr(vB1+32*hh+4*f,4)} offset:{so[hh] + f*1024}")
            if hh < n - 1: a("s_waitcnt lgkmcnt(6)")
        self.bar()
        for hh in range(n):
            R = vB2 + 64*hh; D = R + 32; Lr = R + 48
            a(f"ds_read_b128 {vr(Lr,4)}, v{LA_} offset:{hh*2048}\nds_read_b128 {vr(Lr+4,4)}, v{LA_} offset:{hh*2048+16}")
            for p in range(8):
                a(f"ds_read_b128 {vr(R+4*p,4)}, v{RA + (p>>2)} offset:{(p&3)*16384 + so[hh]}")
            if hh == 0 and after_first_barrier: after_first_barrier()
            a("s_waitcnt lgkmcnt(8)")
            a(f"v_add_f32 v{Lr}, v{Lr}, v{Lr+1}\nv_add_f32 v{Lr+2}, v{Lr+2}, v{Lr+3}\nv_add_f32 v{Lr+4}, v{Lr+4}, v{Lr+5}\nv_add_f32 v{Lr+6}, v{Lr+6}, v{Lr+7}")
            a(f"v_add_f32 v{Lr}, v{Lr}, v{Lr+2}\nv_add_f32 v{Lr+4}, v{Lr+4}, v{Lr+6}\nv_add_f32 v{Lr}, v{Lr}, v{Lr+4}\nv_rcp_f32 v{Lr}, v{Lr}")
            self.msum(D, PM, R, 8, 8)
        for hh in range(n):
            R = vB2 + 64*hh; D = R + 32; Lr = R + 48
            for j in range(8): a(f"v_mul_f32 v{D+j}, v{Lr}, v{D+j}")
            self.pack(D + 8, D, 4)
            if hh: a(f"s_add_u32 s{sT}, s{sOunit}, 8192")
            a(f"buffer_store_dwordx4 {vr(D+8,4)}, v{RA}, {sr(SRD['ws'],4)}, s{sT if hh else sOunit} offen sc1", ("ostore", hh))
        a("s_barrier")
        for k in range(keep): self.busy[(rs + k) % 4] = False
        self.pend_flag = (("ostore", n-1), sFlag, n, 0)
        if urgent: self.flush_flag()
        self.fill()
    def queue_wo(self, wb, nsub, head0, sRot, p, sCt, inserts=None):
        a = self.a
        a(f"s_lshl_b32 s{p}, s{sW}, 20\ns_lshl_b32 s{sT}, s{sCt}, 7\ns_add_u32 s{p}, s{p}, s{sT}")
        if head0 is not None: a(f"s_lshl_b32 s{sT}, s{head0}, 18\ns_add_u32 s{p}, s{p}, s{sT}")
        l = []
        for t in range(nsub):
            l.append(self.queue(lambda t=t: a(f"s_add_u32 s{sD}, s{sRot}, {t}\ns_and_b32 s{sD}, s{sD}, {nsub-1}\ns_lshl_b32 s{sD}, s{sD}, 16\ns_add_u32 s{sD}, s{sD}, s{p}"),
                                wb, vD2048, self.cfg["fl_wo"]))
            if inserts and t in inserts: inserts[t]()
        return l
    def queue_o(self, oreg, t, nsub, sRot, sO, name, gate=None):
        a = self.a
        for ks in range(2):
            def f(ks=ks):
                if ks == 0: a(f"s_add_u32 s{sD2}, s{sRot}, {t}\ns_and_b32 s{sD2}, s{sD2}, {nsub-1}\ns_lshl_b32 s{sD2}, s{sD2}, 11\ns_add_u32 s{sD2}, s{sD2}, s{sO}")
                a(f"buffer_load_dwordx4 {vr(oreg(t) + 4*ks, 4)}, v{vL16}, {sr(SRD['ws'],4)}, s{sD2} offen offset:{ks*1024} sc1", (name, t, ks))
            self.queue_ld(f, (name, t, ks), gate or name)
    def touch(self, buf, lg, sOff, dummy):
        self.a(f"v_lshlrev_b32 v{vX0}, {lg}, v{vL}\nbuffer_load_dword v{dummy}, v{vX0}, {sr(SRD[buf],4)}, s{sOff} offen", "touch")
    def queue_touch(self, buf, vaddr_fn, soff_fn, dummy, gate=None):
        a = self.a
        def f():
            v = vaddr_fn(); soff_fn()
            a(f"buffer_load_dword v{dummy}, v{v}, {sr(SRD[buf],4)}, s{sD2} offen", "touch")
        self.queue_ld(f, "touch", gate)
    def poll(self, sOff, lanes_lo, lanes_n, nap=None):
        a = self.a; L = self.newlabel("L_poll"); D = self.newlabel("L_pdone")
        a(f"v_and_b32 v{vX0}, {lanes_n-1}, v{vL}\nv_lshlrev_b32 v{vX0}, 7, v{vX0}\ns_mov_b32 s{sT2}, 0")
        a.fence()
        a.label(L)
        a(f"buffer_load_dword v{vX1}, v{vX0}, {sr(SRD['ws'],4)}, s{sOff} offen offset:{lanes_lo*4} sc1", "poll")
        a("s_waitcnt vmcnt(0)"); a.vm = []
        a(f"v_cmp_ne_u32 vcc, 1, v{vX1}\ns_add_u32 s{sT2}, s{sT2}, 1\ns_nop 2\ns_cbranch_vccz {D}")
        a(f"s_cmp_lt_u32 s{sT2}, {self.cfg['spin']}\ns_cbranch_scc0 {D}\ns_sleep {self.cfg['nap'] if nap is None else nap}\ns_branch {L}")
        a.label(D)
    def chk_issue_cleared(self, v):
        self.a(f"v_lshlrev_b32 v{v}, 2, v{vL}\nbuffer_load_dword v{v}, v{v}, {sr(SRD['dbg'],4)}, 0 offen sc1", ("chk", v))
    def chk_issue(self, v, sOff, lanes_n):
        self.a(f"v_and_b32 v{v+1}, {lanes_n-1}, v{vL}\nv_lshlrev_b32 v{v+1}, 7, v{v+1}")
        self.a(f"buffer_load_dword v{v}, v{v+1}, {sr(SRD['ws'],4)}, s{sOff} offen sc1", ("chk", v))
    def chk4(self, v, sOff, wide):
        a = self.a
        a(f"v_lshrrev_b32 v{v+2}, 4, v{vL}\nv_lshlrev_b32 v{v+2}, 10, v{v+2}\nv_and_b32 v{v}, 15, v{vL}\nv_lshl_add_u32 v{v+2}, v{v}, {3 if wide else 2}, v{v+2}")
        a(f"buffer_load_dword{'x2' if wide else ''} {vr(v, 2 if wide else 1)}, v{v+2}, {sr(SRD['ws'],4)}, s{sOff} offen sc1", ("chk", v))
    def chk4_verify(self, v, sOff, wide):
        a = self.a; L = self.newlabel("L_c4"); D = self.newlabel("L_c4ok")
        if a.has_vm(("chk", v)): a.wait_vm(("chk", v))
        a(f"s_mov_b32 s{sT2}, 0")
        a.fence(); a.label(L)
        if wide: a(f"v_and_b32 v{v}, v{v}, v{v+1}")
        a(f"v_cmp_ne_u32 vcc, 1, v{v}\ns_add_u32 s{sT2}, s{sT2}, 1\ns_nop 2\ns_cbranch_vccz {D}")
        a(f"s_cmp_lt_u32 s{sT2}, {self.cfg['spin']}\ns_cbranch_scc0 {D}\ns_sleep 2")
        a(f"buffer_load_dword{'x2' if wide else ''} {vr(v, 2 if wide else 1)}, v{v+2}, {sr(SRD['ws'],4)}, s{sOff} offen sc1\ns_waitcnt vmcnt(0)\ns_branch {L}")
        a.vm.pop()
        a.label(D)
    def chk_verify(self, v, slow, cleared=False):
        a = self.a; D = self.newlabel("L_ok")
        if a.has_vm(("chk", v)): a.wait_vm(("chk", v))
        a(f"v_cmp_gt_u32 vcc, 4, v{v}" if cleared else f"v_cmp_ne_u32 vcc, 1, v{v}")
        a.fence()
        a(f"s_cbranch_vccz {D}")
        keep = list(a.vm)
        slow()
        a.vm = keep
        a.label(D)
    def poll_cleared(self):
        a = self.a; L = self.newlabel("L_pollc"); D = self.newlabel("L_pcdone")
        a(f"s_mov_b32 s{sT2}, 0\nv_lshlrev_b32 v{vX0}, 2, v{vL}")
        a.fence()
        a.label(L)
        a(f"buffer_load_dword v{vX1}, v{vX0}, {sr(SRD['dbg'],4)}, 0 offen sc1", "poll")
        a("s_waitcnt vmcnt(0)"); a.vm = []
        a(f"v_cmp_gt_u32 vcc, 4, v{vX1}\ns_add_u32 s{sT2}, s{sT2}, 1\ns_nop 2\ns_cbranch_vccz {D}")
        a(f"s_cmp_lt_u32 s{sT2}, {self.cfg['spin']}\ns_cbranch_scc0 {D}\ns_sleep {self.cfg['nap']}\ns_branch {L}")
        a.label(D)
    def run_oproj(self, subs, oreg, ACC, gate, zero_first, keep_last, hooks=None):
        def pre(t):
            self.wait_tag((gate, t, 1))
            if hooks and t in hooks: hooks[t]()
            if gate == "oa" and self.cfg.get("oasel"): self.stamp(48 + t)
        def mf(t, F):
            return [lambda ks=ks, ct=ct: self.mfma(ACC + 16*ct, F + 8*ks + 4*ct, oreg(t) + 4*ks, zero=(zero_first and t == 0 and ks == 0))
                    for ks in range(2) for ct in range(2)]
        self.steps(subs, lambda i, F: self.t_reads(i, vT, F), mf, self.cfg["LAo"], keep_last=keep_last, pre=pre)
        return subs[-2] % 4
    def out_reduce(self, ACC, rs, TMP, sOutOff=None, add=None, sPart=None):
        a = self.a
        a(f"v_lshrrev_b32 v{vX1}, 5, v{vL}\nv_and_b32 v{vX0}, 31, v{vL}\nv_xor_b32 v{vX0}, v{vX0}, v{vX1}\nv_lshlrev_b32 v{vX0}, 4, v{vX0}")
        a(f"v_lshlrev_b32 v{vX1}, 9, v{vX1}\nv_add3_u32 v{vX0}, v{vX0}, v{vX1}, s{sRB}")
        for i in range(1, 8):
            a(f"v_xor_b32 v{vF+i}, {32*i}, v{vX0}")
        a(f"v_lshrrev_b32 v{vF+8}, 4, v{vL}\ns_lshl_b32 s{sT}, s{sW}, 2\nv_add_u32 v{vF+8}, s{sT}, v{vF+8}\nv_and_b32 v{vF+9}, 15, v{vL}")
        a(f"v_xor_b32 v{vF+10}, v{vF+8}, v{vF+9}\nv_lshlrev_b32 v{vF+10}, 4, v{vF+10}\nv_lshl_add_u32 v{vF+10}, v{vF+9}, 9, v{vF+10}\nv_add_u32 v{vF+11}, 0x10000, v{vF+10}")
        a(f"v_lshlrev_b32 v{vF+8}, 12, v{vF+8}\nv_lshl_add_u32 v{vF+8}, v{vF+9}, 3, v{vF+8}")
        for i in range(8):
            a(f"ds_write_b128 v{vF+i if i else vX0}, {vr(ACC+4*i,4)} offset:{rs*4096 + i*1024}")
        self.bar()
        for p in range(8):
            a(f"ds_read_b128 {vr(TMP+4*p,4)}, v{vF+10 + (p>>2)} offset:{(p&3)*16384 + rs*4096}")
        for p in range(0 if add is not None else 1, 8):
            a(f"s_waitcnt lgkmcnt({7-p})")
            for j in range(4):
                a(f"v_add_f32 v{TMP+j}, v{TMP+j}, v{(TMP+4*p+j) if p else (add+j)}")
        if sPart is not None:
            a(f"buffer_store_dwordx4 {vr(TMP,4)}, v{vL16}, {sr(SRD['ws'],4)}, s{sPart} offen sc1", "pstore")
            a("s_barrier")
            self.busy[rs] = self.busy[rs+1] = False
        else:
            self.pack(TMP + 4, TMP, 2)
            a(f"buffer_store_dwordx2 {vr(TMP+4,2)}, v{vF+8}, {sr(SRD['out'],4)}, s{sOutOff} offen", "out")
    def prologue(self):
        a = self.a
        if self.cfg.get("early0"): a("s_memrealtime s[94:95]")
        a("s_cmp_ge_u32 s2, 256\ns_cbranch_scc1 L_end")
        a(f"s_load_dwordx16 s[{KA}:{KA+15}], s[0:1], 0\ns_load_dwordx8 s[{KA+16}:{KA+23}], s[0:1], 64\ns_load_dwordx2 s[{KA+24}:{KA+25}], s[0:1], 96")
        a(f"v_lshrrev_b32 v1, 6, v0\nv_and_b32 v{vL}, 63, v0\nv_readfirstlane_b32 s{sW}, v1")
        for k in ORDER:
            a(f"s_mov_b32 s{SRD[k]+2}, {SIZE[k]:#x}\ns_mov_b32 s{SRD[k]+3}, 0x20000")
        a(f"s_lshl_b32 s{sRB}, s{sW}, 14\ns_and_b32 s{sX}, s2, 7\ns_bfe_u32 s{sJJ}, s2, 0x40003")
        a(f"v_lshlrev_b32 v{vL16}, 4, v{vL}")
        t0, t1, t2 = vF, vF+1, vF+2
        a(f"v_bfe_u32 v{t0}, v{vL}, 4, 1\nv_lshlrev_b32 v{t0}, 2, v{t0}\nv_lshrrev_b32 v{t1}, 5, v{vL}\nv_or_b32 v{t0}, v{t0}, v{t1}")
        a(f"v_and_b32 v{t1}, 7, v{vL}\nv_xor_b32 v{t0}, v{t0}, v{t1}\nv_lshlrev_b32 v{t0}, 4, v{t0}")
        a(f"v_xor_b32 v{t1}, 32, v{t0}\nv_lshrrev_b32 v{t2}, 3, v{vL}")
        for vs, lg in ((vD2048, 11), (vD8192, 13), (vD256, 8)):
            for i in range(4):
                a(f"v_lshl_add_u32 v{vs+i}, v{t2}, {lg}, v{t1 if i & 1 else t0}")
                if i: a(f"v_add_u32 v{vs+i}, {(8*i << lg) - 1024*i}, v{vs+i}")
    def copy_ptrs(self, names):
        for k in names:
            o = KA + 2*ORDER.index(k)
            self.a(f"s_mov_b32 s{SRD[k]}, s{o}\ns_mov_b32 s{SRD[k]+1}, s{o+1}")
    def read_addrs(self, need_q=True):
        a = self.a; t0, t1, t2, t3 = vF, vF+1, vF+2, vF+3
        a(f"v_bfe_u32 v{t0}, v{vL}, 1, 1\nv_lshlrev_b32 v{t0}, 2, v{t0}\nv_bfe_u32 v{t1}, v{vL}, 2, 2\nv_or_b32 v{t0}, v{t0}, v{t1}")
        a(f"v_lshrrev_b32 v{t1}, 5, v{vL}\nv_xor_b32 v{t0}, v{t0}, v{t1}\nv_lshlrev_b32 v{t0}, 4, v{t0}")
        a(f"v_and_b32 v{t1}, 31, v{vL}\nv_lshl_add_u32 v{t0}, v{t1}, 7, v{t0}\nv_add_u32 v{vN}, s{sRB}, v{t0}")
        for s in range(1, 4): a(f"v_xor_b32 v{vN+s}, {32*s}, v{vN}")
        for base, nat in ((vT, False), (vTq, True))[:2 if need_q else 1]:
            if nat:
                a(f"v_and_b32 v{t0}, 1, v{vL}\nv_bfe_u32 v{t1}, v{vL}, 1, 1")
            else:
                a(f"v_bfe_u32 v{t0}, v{vL}, 1, 1\nv_and_b32 v{t1}, 1, v{vL}")
            a(f"v_bfe_u32 v{t2}, v{vL}, 4, 1\nv_lshl_add_u32 v{t0}, v{t2}, 1, v{t0}")
            a(f"v_bfe_u32 v{t2}, v{vL}, 3, 1\nv_lshlrev_b32 v{t2}, 2, v{t2}\nv_xor_b32 v{t0}, v{t0}, v{t2}")
            a(f"v_lshrrev_b32 v{t2}, 5, v{vL}")
            if nat: a(f"v_lshlrev_b32 v{t3}, 1, v{t2}\nv_xor_b32 v{t0}, v{t0}, v{t3}")
            else:   a(f"v_xor_b32 v{t0}, v{t0}, v{t2}")
            a(f"v_lshlrev_b32 v{t0}, 4, v{t0}\nv_lshl_add_u32 v{t0}, v{t1}, 3, v{t0}")
            a(f"v_bfe_u32 v{t1}, v{vL}, 2, 2\nv_lshl_add_u32 v{t1}, v{t2}, {3 if nat else 2}, v{t1}")
            a(f"v_lshl_add_u32 v{t0}, v{t1}, 7, v{t0}\nv_add_u32 v{base}, s{sRB}, v{t0}")
            ux, ur = (16, 4*128) if nat else (32, 8*128)
            a(f"v_xor_b32 v{base+1}, {ux}, v{base}\nv_add_u32 v{base+1}, {ur}, v{base+1}")
            a(f"v_xor_b32 v{base+2}, 64, v{base}\nv_xor_b32 v{base+3}, 64, v{base+1}")
    def flag_off(self, dst, branch, sB, sH):
        a = self.a
        a(f"s_lshl_b32 s{dst}, s{sB}, 15\ns_lshl_b32 s{sT}, s{sH}, 10\ns_add_u32 s{dst}, s{dst}, s{sT}\ns_add_u32 s{dst}, s{dst}, {WS_FLAG + branch*262144}")
    def clear_flags(self, offs):
        a = self.a; L = self.newlabel("L_clr")
        a(f"s_cmp_lg_u32 s{sW}, 0\ns_cbranch_scc1 {L}")
        a(f"v_mov_b32 v{vX1}, 0")
        for s_, nl, code in offs:
            a(code or f"v_lshlrev_b32 v{vX0}, 7, v{vL}")
            a(f"s_mov_b64 exec, {(1 << nl) - 1:#x}\nbuffer_store_dword v{vX1}, v{vX0}, {sr(SRD['ws'],4)}, s{s_} offen sc1\ns_mov_b64 exec, -1")
            a.vm.pop()
        a.label(L)
    def signal_cleared(self):
        a = self.a; L = self.newlabel("L_sig")
        a(f"s_cmp_lg_u32 s{sW}, 0\ns_cbranch_scc1 {L}")
        a(f"v_mov_b32 v{vX1}, 1\ns_mov_b64 exec, 1\ns_and_b32 s{sT}, s2, 63\ns_lshl_b32 s{sT}, s{sT}, 2\nbuffer_atomic_add v{vX1}, off, {sr(SRD['dbg'],4)}, s{sT} sc1\ns_mov_b64 exec, -1")
        a.vm.pop()
        a.label(L)
    def role_common_B(self):
        pass
    def oproj_params(self, sBo, sCt, sO_, sF_, sOut, branch):
        a = self.a
        a(f"s_lshr_b32 s{sBo}, s{sJJ}, 1\ns_and_b32 s{sT}, s{sJJ}, 1\ns_lshl_b32 s{sCt}, s{sX}, 1\ns_add_u32 s{sCt}, s{sCt}, s{sT}")
        a(f"s_lshl_b32 s{sO_}, s{sBo}, 18\ns_lshl_b32 s{sT}, s{sW}, 15\ns_add_u32 s{sO_}, s{sO_}, s{sT}")
        a(f"s_lshl_b32 s{sF_}, s{sBo}, 15\ns_lshl_b32 s{sT}, s{sW}, 12\ns_add_u32 s{sF_}, s{sF_}, s{sT}\ns_add_u32 s{sF_}, s{sF_}, {WS_FLAG + branch*262144}")
        a(f"s_lshl_b32 s{sOut}, s{sBo}, 17\ns_lshl_b32 s{sT}, s{sCt}, 7\ns_add_u32 s{sOut}, s{sOut}, s{sT}")
        if branch: a(f"s_add_u32 s{sO_}, s{sO_}, {2 << 20}\ns_add_u32 s{sOut}, s{sOut}, 2048")
    def unit_ids(self):
        a = self.a
        a(f"s_and_b32 s{sT}, s{sJJ}, 3\ns_lshl_b32 s{sHB}, s{sX}, 2\ns_add_u32 s{sHB}, s{sHB}, s{sT}")
        a(f"s_and_b32 s{sT}, s{sJJ}, 2\ns_lshl_b32 s{sT}, s{sT}, 1\ns_lshr_b32 s{sBB}, s{sJJ}, 2\ns_add_u32 s{sBB}, s{sBB}, s{sT}")
    def load_q(self, dst, sQo):
        a = self.a
        a(f"s_add_u32 s{sT}, s{sQo}, 4096")
        for f in range(8):
            a(f"buffer_load_dwordx4 {vr(dst+4*f,4)}, v{vL16}, {sr(SRD['ws'],4)}, s{sT if f >= 4 else sQo} offen offset:{(f&3)*1024} sc1", ("q", f))
    def half_params(self, sBo, sH, sO_, sF_, late):
        a = self.a
        a(f"s_lshr_b32 s{sH}, s{sBo}, 2\ns_lshl_b32 s{sH}, s{sH}, 1")
        if late: a(f"s_xor_b32 s{sH}, s{sH}, 2")
        a(f"s_lshl_b32 s{sT}, s{sH}, 10\ns_add_u32 s{sF_}, s{sF_}, s{sT}\ns_lshl_b32 s{sT}, s{sH}, 13\ns_add_u32 s{sO_}, s{sO_}, s{sT}")
    def lanes2(self, T, lgrow):
        def f():
            self.a(f"v_lshrrev_b32 v{T}, 1, v{vL}\nv_lshlrev_b32 v{T}, {lgrow}, v{T}\nv_and_b32 v{T+1}, 1, v{vL}\nv_lshl_add_u32 v{T}, v{T+1}, 7, v{T}"); return T
        return f
    def lin(self, T, lg):
        def f():
            self.a(f"v_lshlrev_b32 v{T}, {lg}, v{vL}"); return T
        return f
    def qflag_off(self, dst, sBr, sB, sH):
        a = self.a
        a(f"s_lshl_b32 s{dst}, s{sB}, 13\ns_lshl_b32 s{sT}, s{sH}, 8\ns_add_u32 s{dst}, s{dst}, s{sT}\ns_add_u32 s{dst}, s{dst}, {WS_QFLAG + (65536*sBr if isinstance(sBr, bool) else 0)}")
        if not isinstance(sBr, bool): a(f"s_lshl_b32 s{sT}, s{sBr}, 16\ns_add_u32 s{dst}, s{dst}, s{sT}")
    def part_off(self, sPo, sPf, sB, sCt, sKq, branch):
        a = self.a
        a(f"s_lshl_b32 s{sT}, s{sB}, 4\ns_add_u32 s{sT}, s{sT}, s{sCt}\ns_lshl_b32 s{sT}, s{sT}, 3\ns_add_u32 s{sT}, s{sT}, s{sKq}")
        a(f"s_lshl_b32 s{sPo}, s{sT}, 13\ns_add_u32 s{sPo}, s{sPo}, {WS_P + branch*(8 << 20)}\ns_lshl_b32 s{sPf}, s{sT}, 2\ns_add_u32 s{sPf}, s{sPf}, {WS_PFLAG + branch*4096}")
    def move8(self, op, reg, sOff, tag):
        a = self.a
        a(f"s_add_u32 s{sT}, s{sOff}, 4096")
        for f in range(8):
            a(f"buffer_{op}_dwordx4 {vr(reg+4*f,4)}, v{vL16}, {sr(SRD['ws'],4)}, s{sT if f >= 4 else sOff} offen offset:{(f&3)*1024} sc1", (tag, f))
    def fetch_q(self, sQo, nk):
        a = self.a
        a(f"s_lshl_b32 s{sT}, s{sW}, {10 + nk - 1}\ns_add_u32 s{sT2}, s{sT}, {QX}\ns_add_u32 s{sT}, s{sT}, s{sQo}\ns_mov_b32 s{sT3}, m0\ns_mov_b32 m0, s{sT2}")
        for k in range(nk):
            a(f"buffer_load_dwordx4 v{vL16}, {sr(SRD['ws'],4)}, s{sT} offen offset:{1024*k} sc1 lds", "qdma")
        a(f"s_mov_b32 m0, s{sT3}")
    def read_q(self, dst, nf):
        a = self.a
        if a.has_vm("qdma"): a.wait_vm("qdma")
        a(f"v_add_u32 v{vX0}, {QX}, v{vL16}\ns_barrier")
        for f in range(nf):
            if f == 12: a("s_waitcnt lgkmcnt(4)")
            a(f"ds_read_b128 {vr(dst+4*f,4)}, v{vX0} offset:{f*1024}")
    def role_S(self):
        a = self.a; c = self.cfg
        self.start_role()
        self.stamp_regs = list(range(24, 28)) + list(range(85, 89)) + [100, 101, 95] + list(range(8, 12)) + list(range(28, 32)) + list(range(20, 24)) + list(range(40, 44)); self.stamped = []
        P = sP
        self.unit_ids()
        a("s_waitcnt lgkmcnt(0)")
        self.copy_ptrs(ORDER)
        (sU1, sU2, sO1, sO2, sF1, sF2, sB2, sQo, sQf, sBo, sCt, sOC, sFC, sOut, sH2, sPo, sPf) = range(P, P + 17)
        p1, p2, pwo = P+17, P+18, P+19
        T2, D2 = vTq, vTq + 2
        self.K = c["K0"]
        if c["touchWA"]:
            a(f"s_lshr_b32 s{sT3}, s{sJJ}, 3")
            for k in range(3):
                a(f"s_cmp_eq_u32 s{sT3}, 0\ns_cselect_b32 s{sG+k}, s{SRD['wqA']+k}, s{SRD['wqB']+k}")
            a(f"s_mov_b32 s{sG+3}, 0x20000")
            a(f"s_and_b32 s{sT}, s{sJJ}, 3\ns_lshl_b32 s{sT}, s{sT}, 3\ns_and_b32 s{sT2}, s{sJJ}, 4\ns_lshl_b32 s{sT2}, s{sT2}, 2\ns_add_u32 s{sT}, s{sT}, s{sT2}")
            a(f"s_add_u32 s{sT}, s{sT}, s{sW}\ns_add_u32 s{sT}, s{sT}, 8\ns_and_b32 s{sT2}, s{sX}, {3 if c['rotQ'] == 3 else 0}\ns_lshl_b32 s{sT2}, s{sT2}, 1\ns_add_u32 s{sT}, s{sT}, s{sT2}\ns_and_b32 s{sT}, s{sT}, 31\ns_lshl_b32 s{sD2}, s{sT}, 18\ns_lshl_b32 s{sT}, s{sHB}, 8\ns_add_u32 s{sD2}, s{sD2}, s{sT}")
            if c["touchX"]:
                a(f"s_lshl_b32 s{sT}, s{sJJ}, 15\ns_and_b32 s{sT2}, s{sW}, 3\ns_lshl_b32 s{sT2}, s{sT2}, 13\ns_add_u32 s{sT}, s{sT}, s{sT2}\nv_lshlrev_b32 v{T2}, 7, v{vL}")
                L1 = self.newlabel("L_xb"); L2 = self.newlabel("L_xd")
                a(f"s_cmp_ge_u32 s{sW}, 4\ns_cbranch_scc1 {L1}\nbuffer_load_dword v{D2}, v{T2}, {sr(SRD['xA'],4)}, s{sT} offen\ns_branch {L2}", "touch")
                a.label(L1); a(f"buffer_load_dword v{D2}, v{T2}, {sr(SRD['xB'],4)}, s{sT} offen"); a.vm.pop(); a.label(L2)
            self.queue_touch("G", self.lanes2(T2, 13), lambda: None, D2)
            self.pump(1)
        a(f"s_lshl_b32 s{sU1}, s{sBB}, 5\ns_add_u32 s{sU1}, s{sU1}, s{sHB}\ns_xor_b32 s{sU2}, s{sU1}, 128\ns_xor_b32 s{sB2}, s{sBB}, 4")
        sKV = P + 20
        kvoff = lambda: a(f"s_mov_b32 s{sD2}, s{sKV}")
        a1 = self.queue_attn("kB", "vB", sU1, None, p1, c["fl_kvB"],
                             between=(lambda: self.queue_touch("vA", self.lin(T2, 7), kvoff, D2)) if c["touchV"] else None)
        if c["touchK"] is not None:
            q = list(self.q); n = 4*c["touchK"]; self.q = deque(q[:n]); self.queue_touch("kA", self.lin(T2, 7), kvoff, D2); self.q.extend(q[n:])
        if not c["holdS"]: self.fill()
        a(f"s_and_b32 s{sT}, s{sX}, 1\ns_lshl_b32 s{sT}, s{sT}, 2\ns_lshr_b32 s{sT2}, s{sJJ}, 2\ns_add_u32 s{sT}, s{sT}, s{sT2}\ns_lshl_b32 s{sT}, s{sT}, 2\ns_lshr_b32 s{sT2}, s{sX}, 1\ns_add_u32 s{sT}, s{sT}, s{sT2}\ns_lshl_b32 s{sKV}, s{sT}, 18")
        a(f"s_and_b32 s{sT}, s{sJJ}, 3\ns_lshl_b32 s{sT}, s{sT}, 16\ns_add_u32 s{sKV}, s{sKV}, s{sT}\ns_lshl_b32 s{sT}, s{sW}, 13\ns_add_u32 s{sKV}, s{sKV}, s{sT}")
        self.flag_off(sF1, 1, sBB, sHB); self.flag_off(sF2, 1, sB2, sHB)
        self.clear_flags([(sF1, 8, None), (sF2, 8, None)])
        self.stamp(0)
        self.read_addrs(need_q=False)
        self.qflag_off(sQf, True, sBB, sHB)
        a(f"s_lshl_b32 s{sO1}, s{sU1}, 13\ns_add_u32 s{sQo}, s{sO1}, {WS_Q + (2 << 20)}\ns_add_u32 s{sO1}, s{sO1}, {WS_O + (2 << 20)}\ns_xor_b32 s{sO2}, s{sO1}, {1 << 20}")
        a(f"s_lshl_b32 s{sT}, s{sW}, 7\ns_add_u32 s{sF1}, s{sF1}, s{sT}\ns_add_u32 s{sF2}, s{sF2}, s{sT}")
        a2 = self.queue_attn("kB", "vB", sU2, None, p2, c["fl_kvB"])
        self.oproj_params(sBo, sCt, sOC, sFC, sOut, 1)
        self.half_params(sBo, sH2, sOC, sFC, True)
        a(f"s_lshl_b32 s{sPo}, s2, 3\ns_add_u32 s{sPo}, s{sPo}, s{sW}\ns_lshl_b32 s{sPf}, s{sPo}, 7\ns_add_u32 s{sPf}, s{sPf}, {WS_PFLAG}\ns_lshl_b32 s{sPo}, s{sPo}, 10\ns_add_u32 s{sPo}, s{sPo}, {WS_P}")
        wB2 = self.queue_wo("woB", 8, sH2, sBo, pwo, sCt)
        oregC = lambda t: (vB1 + 32 + 8*t) if t < 4 else (vF + 8*(t-4))
        for t in range(8): self.queue_o(oregC, t, 8, sBo, sOC, "oc")
        if c["holdS"]:
            a.wait_vm_all(); self.fill()
        CK = vD8192
        for t, i in enumerate(a1[0]):
            self.wait_sub(i); self.stamp(34 + t)
            if t == 0: self.signal_cleared()
            if t == c["K0n"]: self.K = c["K"]
            if t == 4: self.chk_issue_cleared(CK)
            if t == 6: self.chk_verify(CK, self.poll_cleared, True)
            if t == 7: self.chk_issue(CK + 1, sQf, 2)
            for r in self.n_reads(i, vB2 + 16*t): r()
            a("s_waitcnt lgkmcnt(0)")
            self.free(i)
        self.stamp(16)
        self.chk_verify(CK + 1, lambda: self.poll(sQf, 0, 2, nap=c['napq']))
        self.stamp(17)
        self.fetch_q(sQo, 1); self.read_q(vF, 8)
        for t in range(8):
            ti, dh = t >> 1, t & 1
            for s_ in range(4):
                if t < 2: a(f"s_waitcnt lgkmcnt({7 - 4*dh - s_})")
                self.mfma(vB1 + 16*ti, vB2 + 16*t + 4*s_, vF + 16*dh + 4*s_, zero=(dh == 0 and s_ == 0))
            if t >= 1: self.pump(1, wait=False)
        def chkq2():
            a(f"s_xor_b32 s{sQf}, s{sQf}, 32768\ns_xor_b32 s{sQo}, s{sQo}, {1 << 20}")
            self.chk_issue(CK + 1, sQf, 2)
        def loadq2():
            self.chk_verify(CK + 1, lambda: self.poll(sQf, 0, 2))
            self.fetch_q(sQo, 1)
        self.attn_rest(1, a1[1], vB1, vB2 + 64, sO1, sF1, (7, 8, 9), after_softmax=chkq2, after_first_barrier=loadq2)
        self.stamp(10)
        self.read_q(vB1, 8); a("s_waitcnt lgkmcnt(0)")
        self.qk(1, a2[0])
        self.attn_rest(1, a2[1], vB2, vB1, sO2, sF2, (11, 12, 13), urgent=True)
        self.stamp(14)
        if c.get("cutG"):
            self.stamp(1); a("s_endpgm"); a.reset_keep_t(); return
        self.K = c["Khit"]
        W = vB2; ACC = vB1; PP = vM
        self.chk_issue(CK + 1, sPf, 1)
        for t, i in enumerate(wB2):
            self.wait_sub(i)
            self.tr_reads(i, vT, W + 16*t)
            a("s_waitcnt lgkmcnt(0)")
            self.free(i)
        self.stamp(15)
        self.poll(sFC, 0, 16, nap=c['naptail'])
        self.stamp(18)
        self.gates.add("oc"); self.K = c["Ktail"]
        for t in range(8):
            for ks in range(2):
                self.wait_tag(("oc", t, ks))
                for ct in range(2):
                    self.mfma(ACC + 16*ct, W + 16*t + 8*ks + 4*ct, oregC(t) + 4*ks, zero=(t == 0 and ks == 0))
            if t == 4:
                self.chk_verify(CK + 1, lambda: self.poll(sPf, 0, 1))
                a(f"buffer_load_dwordx4 {vr(PP,4)}, v{vL16}, {sr(SRD['ws'],4)}, s{sPo} offen sc1", "pp")
        if a.has_vm("pp"): a.wait_vm("pp")
        self.out_reduce(ACC, 0, vB2, sOut, add=PP)
        self.stamp(1)
        a("s_endpgm")
        a.reset_keep_t()
    def role_G(self):
        a = self.a; c = self.cfg
        self.start_role()
        self.stamp_regs = list(range(32, 40)) + [100, 101, 95, 6, 7] + list(range(84, 89)); self.stamped = []
        P = sP
        (sBr, sHq, sBh, sBA, sHA, sRotK, sUA, sOa, sFa, sQo, sQf, sPf, pg, pg1, pg2, paa, sA, sB_, sC, sE) = range(P, P + 20)
        a("s_waitcnt lgkmcnt(0)")
        self.copy_ptrs(ORDER)
        a(f"s_lshr_b32 s{sBr}, s{sJJ}, 3\ns_and_b32 s{sT}, s{sJJ}, 3\ns_lshl_b32 s{sHq}, s{sX}, 2\ns_add_u32 s{sHq}, s{sHq}, s{sT}\ns_bfe_u32 s{sBh}, s{sJJ}, 0x10002")
        a(f"s_lshl_b32 s{pg2}, s{sT}, 2\ns_lshl_b32 s{sT}, s{sBh}, 3\ns_add_u32 s{pg2}, s{pg2}, s{sT}")
        if c["rotQ"] == 3: a(f"s_and_b32 s{sT}, s{sX}, 3\ns_add_u32 s{pg2}, s{pg2}, s{sT}")
        if c["rotQ"] == 0: a(f"s_mov_b32 s{pg2}, 0")
        if c["rotQ"] == 2: a(f"s_and_b32 s{pg2}, s{sX}, 7\ns_lshl_b32 s{pg2}, s{pg2}, 1")
        a(f"s_lshl_b32 s{sT}, s{sBh}, 2\ns_add_u32 s{sT}, s{sT}, s{sW}\ns_lshl_b32 s{sT}, s{sT}, 16")
        a(f"s_bfe_u32 s{sT2}, s{sW}, 0x10001\ns_lshl_b32 s{sT2}, s{sT2}, 18\ns_and_b32 s{sT3}, s{sW}, 1\ns_lshl_b32 s{sT3}, s{sT3}, 7\ns_add_u32 s{sT2}, s{sT2}, s{sT3}\ns_lshl_b32 s{sT3}, s{sHq}, 8\ns_add_u32 s{sT2}, s{sT2}, s{sT3}")
        a(f"s_cmp_lt_u32 s{sW}, 4\ns_cselect_b32 s{pg}, s{sT}, s{sT2}\ns_cselect_b32 s{pg1}, 7, 19\ns_cselect_b64 vcc, -1, 0")
        for k in range(4): a(f"v_cndmask_b32 v{vGa+k}, v{vD8192+k}, v{vD2048+k}, vcc")
        qs = self.queue_cg(16, pg, lambda: self.pick("xA", "wqA", sBr, "xB", "wqB"), c["fl_w"])
        self.K = c["KG0"]
        pass
        self.fill()
        pass
        a(f"s_and_b32 s{sT3}, s{sX}, 1\ns_lshl_b32 s{sBA}, s{sT3}, 2\ns_lshr_b32 s{sT}, s{sJJ}, 2\ns_add_u32 s{sBA}, s{sBA}, s{sT}")
        a(f"s_and_b32 s{sRotK}, s{sJJ}, 3\ns_lshr_b32 s{sT2}, s{sX}, 1\ns_lshl_b32 s{sHA}, s{sT2}, 3\ns_lshl_b32 s{sT}, s{sRotK}, 1\ns_add_u32 s{sHA}, s{sHA}, s{sT}")
        a(f"s_lshl_b32 s{sUA}, s{sBA}, 2\ns_add_u32 s{sUA}, s{sUA}, s{sT2}")
        self.flag_off(sFa, 0, sBA, sHA)
        a(f"s_lshl_b32 s{sA}, s{sBh}, 2")
        self.qflag_off(sQf, sBr, sA, sHq)
        a(f"s_and_b32 s{sPf}, s2, 127\ns_lshl_b32 s{sPf}, s{sPf}, 10\ns_add_u32 s{sPf}, s{sPf}, {WS_PFLAG}")
        self.clear_flags([(sFa, 16, None), (sPf, 8, None),
                          (sQf, 8, f"v_lshrrev_b32 v{vX0}, 1, v{vL}\nv_lshlrev_b32 v{vX0}, 13, v{vX0}\nv_and_b32 v{vF}, 1, v{vL}\nv_lshl_add_u32 v{vX0}, v{vF}, 7, v{vX0}")])
        self.stamp(0)
        self.read_addrs()
        self.cg_addr(False, vTq)
        a(f"s_lshl_b32 s{sOa}, s{sBA}, 5\ns_add_u32 s{sOa}, s{sOa}, s{sHA}\ns_lshl_b32 s{sOa}, s{sOa}, 13")
        a(f"s_lshl_b32 s{sT}, s{sW}, 7\ns_add_u32 s{sFa}, s{sFa}, s{sT}\ns_add_u32 s{sPf}, s{sPf}, s{sT}")
        a(f"s_and_b32 s{sT}, s{sW}, 3\ns_lshl_b32 s{sT2}, s{sT}, 13\ns_add_u32 s{sQf}, s{sQf}, s{sT2}\ns_lshr_b32 s{sT3}, s{sW}, 2\ns_lshl_b32 s{sT2}, s{sT3}, 7\ns_add_u32 s{sQf}, s{sQf}, s{sT2}")
        a(f"s_lshl_b32 s{sQo}, s{sBr}, 3\ns_lshl_b32 s{sT2}, s{sBh}, 2\ns_add_u32 s{sQo}, s{sQo}, s{sT2}\ns_add_u32 s{sQo}, s{sQo}, s{sT}\ns_lshl_b32 s{sQo}, s{sQo}, 5\ns_add_u32 s{sQo}, s{sQo}, s{sHq}\ns_lshl_b32 s{sQo}, s{sQo}, 1\ns_add_u32 s{sQo}, s{sQo}, s{sT3}\ns_lshl_b32 s{sQo}, s{sQo}, 12\ns_add_u32 s{sQo}, s{sQo}, {WS_Q}")
        if c["gateKA"]: self.queue_ld(lambda: None, ("gate", "ka"), "ka")
        aa = self.queue_attn("kA", "vA", sUA, sRotK, paa, c["fl_kvA"])
        CK = vD8192
        ACC = vB1
        self.run_cg(qs, False, ACC, c["LAq"], stamp0=32 if c.get("qasel") else None,
                    hooks={0: self.signal_cleared, 9: lambda: self.chk_issue_cleared(CK), 13: lambda: self.chk_verify(CK, self.poll_cleared, True)})
        self.stamp(20)
        a(f"s_mov_b32 s{sT3}, {f2u(SCALE):#x}")
        for f in range(4):
            for j in range(8): a(f"v_mul_f32 v{ACC+8*f+j}, s{sT3}, v{ACC+8*f+j}")
            self.pack(ACC + 32 + 4*f, ACC + 8*f, 4)
            a(f"buffer_store_dwordx4 {vr(ACC+32+4*f,4)}, v{vL16}, {sr(SRD['ws'],4)}, s{sQo} offen offset:{f*1024} sc1", "qstore")
        self.gates.add("ka")
        self.pump(c["preA0"], wait=False)
        a.wait_vm("qstore"); self.set_flag(sQf)
        self.stamp(22)
        if c.get("cutG") == 1:
            self.stamp(1); a("s_endpgm"); a.reset_keep_t(); return
        self.K = c["Khit"]
        self.pump(c["preA"])
        self.qflag_off(sQf, False, sBA, sHA)
        self.poll(sQf, 0, 4, nap=c['napq'])
        self.stamp(7)
        a(f"s_add_u32 s{sQo}, s{sOa}, {WS_Q}")
        self.fetch_q(sQo, 2)
        sBo, sCt, sO1, sOA, sF1, sFA, sOut, sH1, pw2, pw1, sRotA, sPo = sBr, sHq, sBh, sA, sB_, sC, sE, sBA, pg, pg1, pg2, sQo
        self.oproj_params(sBo, sCt, sOA, sFA, sOut, 0)
        a(f"s_add_u32 s{sO1}, s{sOA}, {2 << 20}\ns_add_u32 s{sF1}, s{sFA}, 262144")
        self.half_params(sBo, sH1, sO1, sF1, False)
        a(f"s_lshl_b32 s{sRotA}, s{sBo}, 1\ns_and_b32 s{sT}, s{sCt}, {1 if c['rotO'] else 0}\ns_lshl_b32 s{sT}, s{sT}, 3\ns_add_u32 s{sRotA}, s{sRotA}, s{sT}\ns_and_b32 s{sPo}, s2, 127\ns_lshl_b32 s{sPo}, s{sPo}, 3\ns_add_u32 s{sPo}, s{sPo}, s{sW}\ns_lshl_b32 s{sPo}, s{sPo}, 10\ns_add_u32 s{sPo}, s{sPo}, {WS_P}")
        oregB = lambda t: vB2 + 8*t
        oregA = lambda t: (vB2 + 64 + 8*t) if t < 8 else (vB1 + 32 + 8*(t-8)) if t < 12 else (vB2 + 32 + 8*(t-12))
        wB1 = self.queue_wo("woB", 8, sH1, sBo, pw2, sCt, {c["aheadB"]-1: lambda: [self.queue_o(oregB, t, 8, sBo, sO1, "ob") for t in range(8)]})
        wA = self.queue_wo("woA", 16, None, sRotA, pw1, sCt, {1: lambda: [self.queue_o(oregA, t, 16, sRotA, sOA, "oa", "oa" if t < 12 else "oa2") for t in range(16)]})
        self.read_q(vB1, 16); a("s_waitcnt lgkmcnt(0)")
        self.stamp(5)
        self.qk(2, aa[0])
        self.attn_rest(2, aa[1], vB2, vB1, sOa, sFa, (2, 3, 4), keep=4, after_softmax=lambda: self.chk_issue(CK, sF1, 16), urgent=c["urgA"])
        self.stamp(6)
        if c.get("cutG") == 2:
            self.stamp(1); a("s_endpgm"); a.reset_keep_t(); return
        self.chk_verify(CK, lambda: (self.poll(sF1, 0, 16)))
        self.stamp(14)
        self.gates.add("ob")
        rs = self.run_oproj(wB1, oregB, ACC, "ob", True, 2, hooks={0: self.flush_flag, 5: lambda: self.chk_issue(CK, sFA, 32)})
        self.stamp(13)
        self.chk_verify(CK, lambda: (self.poll(sFA, 0, 32)))
        self.gates.add("oa")
        self.out_reduce(ACC, rs, vB2, sPart=sPo)
        self.pend_flag = ("pstore", sPf, 1, 0)
        self.gates.add("oa2")
        self.stamp(15)
        rs = self.run_oproj(wA, oregA, ACC, "oa", True, 2, hooks={1: self.flush_flag})
        self.stamp(12)
        self.out_reduce(ACC, rs, vB2, sOut)
        self.stamp(1)
        a("s_endpgm")
        a.reset_keep_t()
    def build(self):
        a = self.a
        self.prologue()
        a("s_cmp_ge_u32 s2, 128\ns_cbranch_scc1 L_roleG")
        sv = (a.t, dict(a.valu_w), dict(a.valu_sw))
        self.role_S()
        a.label("L_roleG")
        a.nop(2)
        self.role_G()
        a.label("L_end")
        a("s_endpgm")
        body = a.text()
        return (HDR + f"; @launch grid=(256,1,1) block=(512,1,1) lds=163840\n"
                + '.amdgcn_target "amdgcn-amd-amdhsa--gfx950"\n.text\n'
                + f".globl {NAME}_kernel\n.p2align 8\n.type {NAME}_kernel,@function\n{NAME}_kernel:\n" + body
                + f""".section .rodata,"a"
.p2align 6
.amdhsa_kernel {NAME}_kernel
  .amdhsa_next_free_vgpr 256
  .amdhsa_next_free_sgpr 102
  .amdhsa_accum_offset 256
  .amdhsa_group_segment_fixed_size 0
  .amdhsa_kernarg_size 104
  .amdhsa_user_sgpr_count 2
  .amdhsa_user_sgpr_kernarg_segment_ptr 1
  .amdhsa_system_sgpr_workgroup_id_x 1
.end_amdhsa_kernel
""")

DEFAULT = dict(rotO=1, touchX=1, nap=16, naptail=2, napq=4, rotQ=3, cgspread=5, holdS=0, gateKA=1, preA0=0, KG0=17, preA=0, urgA=True, gateW=None, aheadB=4, gateWA=1, K0=6, K0n=3, Khit=6, prepoll=0, touchWA=1, touchWB=1, touchO=1, pipe1=False, LAq=8, LAa=6, LAb=6, LAo=6, touchK=None, touchV=0, touchW=1, flagt=0, redpump=2, K=6, Ktail=6, smpump=8, fl_x="", fl_w="", fl_wo="", fl_kvA="", fl_kvB="nt", oproj=True, stamps=False, spin=20000)
def make(**kw):
    c = dict(DEFAULT); c.update(kw)
    return Gen(c).build()
if __name__ == "__main__":
    out = sys.argv[1] if len(sys.argv) > 1 else "cdna_kernels/" + NAME + ".s"
    kw = eval("dict(" + (sys.argv[2] if len(sys.argv) > 2 else "") + ")")
    open(out, "w").write(make(**kw))
```

```python
import sys, math
from collections import deque
from asmlib import Asm, vr, sr

NAME = "concat_heads__gqa_block_cached__mha_block_cached__near_ridge"
HDR = open("cdna_kernels/" + NAME + ".s.ref").read().split("; Override launch")[0]

SRD = dict(G=96, xA=8, kA=12, vA=16, wqA=20, woA=24, xB=28, kB=32, vB=36, wqB=40, woB=44, out=48, dbg=52, ws=56)
SIZE = dict(xA=1<<19, kA=1<<23, vA=1<<23, wqA=1<<23, woA=1<<23, xB=1<<19, kB=1<<26, vB=1<<26, wqB=1<<23, woB=1<<23,
            out=1<<20, dbg=256, ws=1<<28)
ORDER = ["xA", "kA", "vA", "wqA", "woA", "xB", "kB", "vB", "wqB", "woB", "out", "dbg", "ws"]
sW = 3; sRB = 60; sT = 61; sT2 = 62; sT3 = 63; sD = 93; sD2 = 89; sG = 96
sX = 4; sJJ = 5; sBB = 6; sHB = 7
KA = 64
sP = 64
vL = 0
vD256 = 1; vD2048 = 5; vD8192 = 9
vN = 13
vT = 17; vTq = 21
vL16 = 25
vM = 26; vS = 28
vF = 30
vB1 = 62
vB2 = 126
vX0 = 254; vX1 = 255
vGa = vB2 + 96; vCA = vB2 + 100; vCW = vB2 + 104
SPARE = 131072
QX = SPARE
ML = SPARE + 16384
WS_O = 0
WS_Q = 4 << 20
WS_TS = 8 << 20
WS_FLAG = 10 << 20
WS_QFLAG = WS_FLAG + 65536
WS_PFLAG = WS_FLAG + 131072
WS_P = 16 << 20
SCALE = math.log2(math.e) / math.sqrt(128.0)

def f2u(x):
    import struct
    return struct.unpack("<I", struct.pack("<f", x))[0]

class Gen:
    def __init__(self, cfg):
        self.cfg = cfg
        self.a = Asm()
        self.lbl = 0
    def newlabel(self, p="L"):
        self.lbl += 1
        return f"{p}_{self.lbl}"
    def start_role(self):
        self.q = deque(); self.nqueued = 0
        self.busy = [False]*4
        self.a.vm = []
        self.pend_flag = None
        self.gates = set()
        self.K = self.cfg["K"]
        self.done_issue = set()
    def queue(self, setup, buf, vset, flags):
        i = self.nqueued; self.nqueued += 1
        for k in range(4):
            self.q.append(("dma", i, k, setup, buf, vset, flags))
        return i
    def queue_ld(self, fn, tag, gate=None):
        self.q.append(("ld", fn, tag, gate))
    def can_issue(self):
        if not self.q: return False
        e = self.q[0]
        if e[0] == "dma": return e[2] > 0 or not self.busy[e[1] % 4]
        return e[3] is None or e[3] in self.gates
    def pump(self, n=1, wait=True):
        a = self.a; done = 0
        while done < n and self.can_issue():
            e = self.q.popleft()
            if e[0] == "dma":
                _, i, k, setup, buf, vset, flags = e
                if k == 0:
                    self.busy[i % 4] = True
                    a(f"s_add_u32 m0, s{sRB}, {(i%4)*4096}")
                    setup()
            if len(a.vm) > self.K - 1:
                if wait: a(f"s_waitcnt vmcnt({self.K-1})"); a.vm = a.vm[len(a.vm)-(self.K-1):]
            if e[0] == "dma":
                a(f"buffer_load_dwordx4 v{vset+k}, {sr(SRD[buf],4)}, s{sD} offen offset:{1024*k} {flags} lds", ("sub", i))
                if k == 3: self.done_issue.add(("sub", i))
            else:
                e[1](); self.done_issue.add(e[2])
            done += 1
        return done
    def fill(self):
        while len(self.a.vm) < self.K and self.can_issue():
            self.pump(1)
    def free(self, i):
        self.busy[i % 4] = False
    def wait_tag(self, tag):
        while tag not in self.done_issue:
            assert self.pump(1), f"{tag} cannot be issued"
        while self.a.has_vm(tag):
            if not self.pump(1): self.a.wait_vm(tag)
    def wait_sub(self, i):
        self.wait_tag(("sub", i))
    def stamp(self, k):
        if not self.cfg.get("stamps"): return
        sel = self.cfg.get("sel")
        if sel is None:
            if k >= 32: return
        elif k not in sel and k > 1: return
        a = self.a
        if len(self.stamp_regs) <= 1 and k != 1: return
        r = self.stamp_regs.pop(0); self.stamped.append((k, r))
        if k == 0 and self.cfg.get("early0"):
            a(f"s_mov_b32 s{r}, s94")
        else:
            a(f"s_memrealtime s[90:91]\ns_waitcnt lgkmcnt(0)\ns_mov_b32 s{r}, s90")
        if k in self.cfg.get("clk", ()):
            r2 = self.stamp_regs.pop(0); self.stamped.append((k + 40, r2))
            a(f"s_memtime s[90:91]\ns_waitcnt lgkmcnt(0)\ns_mov_b32 s{r2}, s90")
        if k == 1:
            a(f"v_mov_b32 v{vX0}, 0")
            for kk, rr in self.stamped:
                a(f"v_writelane_b32 v{vX0}, s{rr}, {kk}")
            a(f"s_lshl_b32 s92, s2, 3\ns_add_u32 s92, s92, s{sW}\ns_lshl_b32 s92, s92, 8\ns_add_u32 s92, s92, {WS_TS}")
            a(f"v_lshlrev_b32 v{vX1}, 2, v{vL}\nbuffer_store_dword v{vX0}, v{vX1}, {sr(SRD['ws'],4)}, s92 offen", "stamp")
    def t_block(self, i, taddr, mf):
        a = self.a; slot = i % 4; F = vF + 16*(i & 1)
        self.wait_sub(i)
        for ks in range(2):
            for ct in range(2):
                for u in range(2):
                    a(f"ds_read_b64_tr_b16 {vr(F + 8*ks + 4*ct + 2*u, 2)}, v{taddr + 2*ct + u} offset:{slot*4096 + ks*2048}")
        k = 0
        for ks in range(2):
            for ct in range(2):
                k += 1
                a(f"s_waitcnt lgkmcnt({8 - 2*k})")
                mf(ks, ct, F + 8*ks + 4*ct)
        self.free(i)
    def n_reads(self, i, dst):
        return [lambda s_=s_: self.a(f"ds_read_b128 {vr(dst+4*s_,4)}, v{vN+s_} offset:{(i%4)*4096}") for s_ in range(4)]
    def t_reads(self, i, taddr, dst):
        return [lambda ks=ks, ct=ct, u=u: self.a(f"ds_read_b64_tr_b16 {vr(dst + 8*ks + 4*ct + 2*u, 2)}, v{taddr + 2*ct + u} offset:{(i%4)*4096 + ks*2048}")
                for ks in range(2) for ct in range(2) for u in range(2)]
    def landed(self, tag):
        while tag not in self.done_issue:
            assert self.pump(1), f"{tag} cannot be issued"
        if self.a.has_vm(tag): self.a.wait_vm(tag)
    def steps(self, subs, reads, mfmas, LA, keep_last=0, pre=None, post=None, first_done=False):
        a = self.a; n = len(subs)
        Fb = lambda t: vF + 16*(t & 1)
        if not first_done:
            self.landed(("sub", subs[0]))
            for r in reads(subs[0], Fb(0)): r()
        for t in range(n):
            if t + 1 < n: self.landed(("sub", subs[t+1]))
            if pre: pre(t)
            a("s_waitcnt lgkmcnt(0)")
            self.free(subs[t])
            if t >= n - keep_last: self.busy[subs[t] % 4] = True
            fill = reads(subs[t+1], Fb(t+1)) if t + 1 < n else []
            npump = max(0, LA - len(a.vm))
            pumps = [lambda: self.pump(1, wait=False)] * npump
            seq = []
            while fill or pumps:
                if fill: seq.append(fill.pop(0))
                if fill and len(fill) >= len(pumps): seq.append(fill.pop(0))
                if pumps: seq.append(pumps.pop(0))
            mf = mfmas(t, Fb(t))
            for k, m in enumerate(mf):
                m()
                lo, hi = len(seq)*k // len(mf), len(seq)*(k+1) // len(mf)
                for f in seq[lo:hi]: f()
            if post: post(t)
    def mfma(self, d, A, B, zero=False):
        self.a(f"v_mfma_f32_32x32x16_bf16 {vr(d,16)}, {vr(A,4)}, {vr(B,4)}, {'0' if zero else vr(d,16)}")
    def pack(self, dst, src, n):
        for k in range(n):
            self.a(f"v_cvt_pk_bf16_f32 v{dst+k}, v{src+2*k}, v{src+2*k+1}")
    def perm_matrix(self, dst):
        a = self.a; t0, t1 = vX0, vX1
        a(f"v_bfe_u32 v{t0}, v{vL}, 2, 1\nv_lshrrev_b32 v{t1}, 5, v{vL}\nv_xor_b32 v{t0}, v{t0}, v{t1}\nv_bfe_u32 v{t1}, v{vL}, 4, 1\nv_or_b32 v{t0}, v{t0}, v{t1}")
        a(f"v_lshlrev_b32 v{t0}, 2, v{t0}\nv_bfe_u32 v{t1}, v{vL}, 3, 1\nv_lshl_add_u32 v{t0}, v{t1}, 1, v{t0}\nv_bfe_u32 v{t1}, v{vL}, 1, 1\nv_add_u32 v{t0}, v{t0}, v{t1}")
        a(f"v_and_b32 v{t1}, 1, v{vL}\nv_lshlrev_b32 v{t1}, 4, v{t1}\nv_mov_b32 v{dst}, 0x3f80\nv_lshlrev_b32 v{t1}, v{t1}, v{dst}")
        for d in range(4):
            a(f"v_cmp_eq_u32 vcc, {d}, v{t0}\nv_cndmask_b32 v{dst+d}, 0, v{t1}, vcc")
    def msum(self, D, PM, R, n, cnt):
        for p in range(n):
            cnt -= 1
            self.a(f"s_waitcnt lgkmcnt({cnt})")
            self.mfma(D, PM, R + 4*p, zero=(p == 0))
        return cnt
    def bar(self, pump=True):
        if pump: self.pump(self.cfg["redpump"], wait=False)
        self.a("s_waitcnt lgkmcnt(0)\ns_barrier")
    def tr_reads(self, i, taddr, dst):
        for r in self.t_reads(i, taddr, dst): r()
    def queue_w(self, wb, g, ch, ng, sRot, pw):
        a = self.a
        def fw():
            a(f"s_add_u32 s{sD}, s{sRot}, {g}\ns_and_b32 s{sD}, s{sD}, {ng-1}\ns_lshl_b32 s{sD}, s{sD}, 18\ns_add_u32 s{sD}, s{sD}, s{pw}")
            if ch: a(f"s_add_u32 s{sD}, s{sD}, 128")
        return self.queue(fw, wb, vD8192, self.cfg["fl_w"])
    def set_flag(self, sFl, n=1, off=0):
        a = self.a
        a(f"v_mov_b32 v{vX0}, 1\ns_mov_b64 exec, 1")
        for hh in range(n):
            a(f"buffer_store_dword v{vX0}, off, {sr(SRD['ws'],4)}, s{sFl} offset:{off + 128*hh} sc1", "flag")
        a("s_mov_b64 exec, -1")
    def flush_flag(self):
        if self.pend_flag is None: return
        tag, sFl, n, off = self.pend_flag
        if self.a.has_vm(tag): self.a.wait_vm(tag)
        self.set_flag(sFl, n, off)
        self.pend_flag = None
    def pick(self, abuf, wbuf, sSel=None, abuf2=None, wbuf2=None):
        a = self.a
        for k in range(3):
            if sSel is None:
                a(f"s_cmp_lt_u32 s{sW}, 4\ns_cselect_b32 s{sG+k}, s{SRD[abuf]+k}, s{SRD[wbuf]+k}")
            else:
                a(f"s_cmp_eq_u32 s{sSel}, 0\ns_cselect_b32 s{sT}, s{SRD[abuf]+k}, s{SRD[abuf2]+k}\ns_cselect_b32 s{sT2}, s{SRD[wbuf]+k}, s{SRD[wbuf2]+k}")
                a(f"s_cmp_lt_u32 s{sW}, 4\ns_cselect_b32 s{sG+k}, s{sT}, s{sT2}")
        a(f"s_mov_b32 s{sG+3}, 0x20000")
    def queue_cg(self, nst, p, first, flags, gate=None):
        a = self.a; l = []
        if gate: self.queue_ld(lambda: None, ("gate", gate), gate)
        for st in range(nst):
            def f(st=st):
                if st == 0: first()
                a(f"s_add_u32 s{sD}, s{p+2}, {st}\ns_and_b32 s{sD}, s{sD}, {nst-1}\ns_lshl_b32 s{sD}, s{sD}, s{p+1}\ns_add_u32 s{sD}, s{sD}, s{p}")
            l.append(self.queue(f, "G", vGa, flags))
        return l
    def cg_addr(self, linear, taddr):
        a = self.a
        a(f"s_and_b32 s{sT}, s{sW}, 3\ns_lshl_b32 s{sT}, s{sT}, 14\ns_lshr_b32 s{sT2}, s{sW}, 2\ns_add_u32 s{sT2}, s{sT2}, 4\ns_lshl_b32 s{sT2}, s{sT2}, 14\ns_sub_u32 s{sT2}, s{sT2}, s{sRB}")
        if linear:
            a(f"v_add_u32 v{vCA}, s{sT}, v{vL16}")
        else:
            a(f"s_sub_u32 s{sT}, s{sT}, s{sRB}")
            for k in range(4): a(f"v_add_u32 v{vCA+k}, s{sT}, v{vN+k}")
        for k in range(4): a(f"v_add_u32 v{vCW+k}, s{sT2}, v{taddr+k}")
    def run_cg(self, subs, linear, ACC, LA, stamp0=None, hooks=None):
        a = self.a; n = len(subs)
        FB = lambda t: vB2 + 48*(t & 1)
        def reads(t):
            F = FB(t); so = (subs[t] % 4)*4096; out = []
            for kk in range(4):
                g, ks = kk >> 1, kk & 1
                out.append(lambda kk=kk: a(f"ds_read_b128 {vr(F+4*kk,4)}, v{vCA if linear else vCA+kk} offset:{so + (1024*kk if linear else 0)}"))
                for ct in range(2):
                    for u in range(2):
                        out.append(lambda g=g, ks=ks, ct=ct, u=u, kk=kk: a(f"ds_read_b64_tr_b16 {vr(F + 16 + 8*kk + 4*ct + 2*u, 2)}, v{vCW + 2*ct + u} offset:{so + g*32768 + ks*2048}"))
            return out
        self.landed(("sub", subs[0])); a("s_barrier")
        r0 = reads(0)
        for k, r in enumerate(r0):
            if k == 12: a("s_waitcnt lgkmcnt(4)")
            r()
        for t in range(n):
            if t + 1 < n: self.landed(("sub", subs[t+1]))
            if hooks and t in hooks: hooks[t]()
            a("s_waitcnt lgkmcnt(0)\ns_barrier")
            self.free(subs[t])
            fill = reads(t+1) if t + 1 < n else []
            pumps = [lambda: self.pump(1, wait=False)] * max(0, LA - len(a.vm))
            seq = pumps[:1] + fill[:5] + pumps[1:2] + fill[5:10] + pumps[2:3] + [lambda: a("s_waitcnt lgkmcnt(5)")] * bool(fill) + fill[10:15] + pumps[3:] + fill[15:]
            F = FB(t)
            mf = [lambda kk=kk, ct=ct: self.mfma(ACC + 16*ct, F + 16 + 8*kk + 4*ct, F + 4*kk, zero=(t == 0 and kk == 0)) for kk in range(4) for ct in range(2)]
            nsp = self.cfg["cgspread"]
            for k, m in enumerate(mf):
                m()
                if k < nsp:
                    for f in seq[len(seq)*k // nsp: len(seq)*(k+1) // nsp]: f()
            if stamp0 is not None: self.stamp(stamp0 + t)
    def queue_attn(self, kb, vb, sUnit, sRot, p, fl, between=None, afterV3=None):
        a = self.a
        a(f"s_lshl_b32 s{p}, s{sUnit}, 18\ns_lshl_b32 s{sT}, s{sW}, 13\ns_add_u32 s{p}, s{p}, s{sT}")
        out = []
        for buf in (kb, vb):
            l = []
            for i in range(4):
                for dh in range(2):
                    def f(i=i, dh=dh):
                        if sRot is None:
                            a(f"s_add_u32 s{sD}, s{p}, {i*65536 + dh*128}")
                        else:
                            a(f"s_add_u32 s{sD}, s{sRot}, {i}\ns_and_b32 s{sD}, s{sD}, 3\ns_lshl_b32 s{sD}, s{sD}, 16\ns_add_u32 s{sD}, s{sD}, s{p}")
                            if dh: a(f"s_add_u32 s{sD}, s{sD}, 128")
                    l.append(self.queue(f, buf, vD256, fl))
                    if buf == vb and i == 1 and dh == 1 and afterV3: afterV3()
            out.append(l)
            if buf == kb and between: between()
        return out
    def row_max(self, S_, m):
        a = self.a; T = vF
        for c in range(4):
            b = S_ + 16*c
            a(f"v_max3_f32 v{T+c}, v{b}, v{b+1}, v{b+2}")
        for k in range(6):
            for c in range(4):
                b = S_ + 16*c + 3 + 2*k
                a(f"v_max3_f32 v{T+c}, v{T+c}, v{b}, v{b+1}")
        a(f"v_max3_f32 v{T}, v{T}, v{S_+15}, v{S_+31}\nv_max3_f32 v{T+1}, v{T+1}, v{S_+47}, v{S_+63}")
        a(f"v_max3_f32 v{T}, v{T}, v{T+2}, v{T+3}\nv_max_f32 v{m}, v{T}, v{T+1}\nv_mov_b32 v{T}, v{m}")
        a(f"v_permlane32_swap_b32 v{m}, v{T}\nv_max_f32 v{m}, v{m}, v{T}")
    def row_exp(self, S_, P, m, l, npump):
        a = self.a; T = vF
        for k in range(0, 64, 8):
            for j in range(8): a(f"v_sub_f32 v{S_+k+j}, v{S_+k+j}, v{m}")
            for j in range(8): a(f"v_exp_f32 v{S_+k+j}, v{S_+k+j}")
            for j in range(8):
                c = j & 3
                if k == 0 and j < 4: continue
                a(f"v_add_f32 v{T+c}, v{S_+c if k == 0 else T+c}, v{S_+k+j}")
            self.pack(P + k//2, S_ + k, 4)
            self.pump(npump*(k//8 + 1)//8 - npump*(k//8)//8, wait=False)
        a(f"v_add_f32 v{T}, v{T}, v{T+1}\nv_add_f32 v{T+2}, v{T+2}, v{T+3}\nv_add_f32 v{l}, v{T}, v{T+2}\nv_mov_b32 v{T}, v{l}")
        a(f"v_permlane32_swap_b32 v{l}, v{T}\nv_add_f32 v{l}, v{l}, v{T}")
    def qk(self, n, ks_, hooks=None):
        a = self.a; piped = n == 2
        def preK(t):
            if t == self.cfg['flagt']: self.flush_flag()
            if hooks and t in hooks: hooks[t]()
        if piped:
            def mfK(t, F):
                ti, dh = t >> 1, t & 1
                return [lambda s_=s_, hh=hh: self.mfma(vB2 + 64*hh + 16*ti, F+4*s_, vB1 + 32*hh + 16*dh + 4*s_, zero=(dh == 0 and s_ == 0))
                        for s_ in range(4) for hh in range(n)]
            self.steps(ks_, self.n_reads, mfK, self.cfg["LAa"], pre=preK, post=lambda t: None if self.cfg.get('qasel') else self.stamp(32 + t))
            return
        for t, i in enumerate(ks_):
            ti, dh = t >> 1, t & 1; F = vF + 16*(i & 1)
            self.wait_sub(i); preK(t); self.stamp(42 + t) if not self.cfg.get('qasel') else None
            for r in self.n_reads(i, F): r()
            for s_ in range(4):
                a(f"s_waitcnt lgkmcnt({3-s_})")
                self.mfma(vB2 + 16*ti, F+4*s_, vB1 + 16*dh + 4*s_, zero=(dh == 0 and s_ == 0))
            self.free(i)
    def attn_rest(self, n, vs_, Sb, Pb, sOunit, sFlag, st, keep=2, after_softmax=None, after_first_barrier=None, urgent=False, after_v=None):
        a = self.a
        MA = vM + 1 if n == 1 else None
        self.stamp(st[0])
        a(f"v_and_b32 v{vX1}, 31, v{vL}\nv_lshlrev_b32 v{vX1}, 5, v{vX1}\nv_add_u32 v{vX1}, {ML}, v{vX1}\ns_lshl_b32 s{sT}, s{sW}, 2\nv_add_u32 v{vX0}, s{sT}, v{vX1}")
        for hh in range(n):
            self.row_max(Sb + 64*hh, vM + hh)
            a(f"ds_write_b32 v{vX0}, v{vM+hh} offset:{hh*2048}")
        self.bar()
        for hh in range(n):
            a(f"ds_read_b128 {vr(vF+8*hh,4)}, v{vX1} offset:{hh*2048}\nds_read_b128 {vr(vF+8*hh+4,4)}, v{vX1} offset:{hh*2048+16}")
        for hh in range(n):
            b = vF + 8*hh
            a(f"s_waitcnt lgkmcnt({2*(n-1-hh)})")
            a(f"v_max3_f32 v{b}, v{b}, v{b+1}, v{b+2}\nv_max3_f32 v{b+3}, v{b+3}, v{b+4}, v{b+5}\nv_max3_f32 v{b}, v{b}, v{b+6}, v{b+7}\nv_max_f32 v{vM+hh}, v{b}, v{b+3}")
        for hh in range(n):
            self.row_exp(Sb + 64*hh, Pb + 32*hh, vM + hh, vS + hh, self.cfg["smpump"] // n)
            a(f"ds_write_b32 v{vX0}, v{vS+hh} offset:{hh*2048 + 1024}")
        if after_softmax:
            a("s_waitcnt lgkmcnt(0)"); after_softmax()
        self.stamp(st[1])
        if n == 2:
            def mfV(t, F):
                ti, dh = t >> 1, t & 1
                return [lambda ks=ks, ct=ct, hh=hh: self.mfma(vB2 + 64*hh + 16*(2*dh+ct), F + 8*ks + 4*ct, Pb + 32*hh + 8*ti + 4*ks, zero=(ti == 0 and ks == 0))
                        for ks in range(2) for ct in range(2) for hh in range(n)]
            self.steps(vs_, lambda i, F: self.t_reads(i, vT, F), mfV, self.cfg["LAa"], keep_last=keep, post=lambda t: None if self.cfg.get('qasel') else self.stamp(40 + t))
        else:
            a("s_waitcnt lgkmcnt(0)")
            for t, i in enumerate(vs_):
                ti, dh = t >> 1, t & 1
                self.t_block(i, vT, lambda ks, ct, A: self.mfma(vB2 + 16*(2*dh+ct), A, Pb + 8*ti + 4*ks, zero=(ti == 0 and ks == 0)))
                if t >= len(vs_) - keep: self.busy[i % 4] = True
                if st[0] == 11: self.stamp(50 + t)
        self.stamp(st[2])
        if after_v: after_v()
        rs = vs_[-keep] % 4
        so = [rs*4096, ((rs+2) % 4)*4096]
        PM, WA, RA, LA_ = vF, vF + 8, vF + 9, vF + 11
        a(f"v_add_u32 v{WA}, s{sRB}, v{vL16}\ns_lshl_b32 s{sT}, s{sW}, 10\nv_add_u32 v{RA}, s{sT}, v{vL16}\nv_add_u32 v{RA+1}, 0x10000, v{RA}")
        a(f"v_and_b32 v{LA_}, 31, v{vL}\nv_lshlrev_b32 v{LA_}, 5, v{LA_}\nv_add_u32 v{LA_}, {ML + 1024}, v{LA_}")
        self.perm_matrix(PM)
        for hh in range(n):
            self.pack(vB1 + 32*hh, vB2 + 64*hh, 32)
            for f in range(8):
                a(f"ds_write_b128 v{WA}, {vr(vB1+32*hh+4*f,4)} offset:{so[hh] + f*1024}")
            if hh < n - 1: a("s_waitcnt lgkmcnt(6)")
        self.bar()
        for hh in range(n):
            R = vB2 + 64*hh; D = R + 32; Lr = R + 48
            a(f"ds_read_b128 {vr(Lr,4)}, v{LA_} offset:{hh*2048}\nds_read_b128 {vr(Lr+4,4)}, v{LA_} offset:{hh*2048+16}")
            for p in range(8):
                a(f"ds_read_b128 {vr(R+4*p,4)}, v{RA + (p>>2)} offset:{(p&3)*16384 + so[hh]}")
            if hh == 0 and after_first_barrier: after_first_barrier()
            a("s_waitcnt lgkmcnt(8)")
            a(f"v_add_f32 v{Lr}, v{Lr}, v{Lr+1}\nv_add_f32 v{Lr+2}, v{Lr+2}, v{Lr+3}\nv_add_f32 v{Lr+4}, v{Lr+4}, v{Lr+5}\nv_add_f32 v{Lr+6}, v{Lr+6}, v{Lr+7}")
            a(f"v_add_f32 v{Lr}, v{Lr}, v{Lr+2}\nv_add_f32 v{Lr+4}, v{Lr+4}, v{Lr+6}\nv_add_f32 v{Lr}, v{Lr}, v{Lr+4}\nv_rcp_f32 v{Lr}, v{Lr}")
            self.msum(D, PM, R, 8, 8)
        for hh in range(n):
            R = vB2 + 64*hh; D = R + 32; Lr = R + 48
            for j in range(8): a(f"v_mul_f32 v{D+j}, v{Lr}, v{D+j}")
            self.pack(D + 8, D, 4)
            if hh: a(f"s_add_u32 s{sT}, s{sOunit}, 8192")
            a(f"buffer_store_dwordx4 {vr(D+8,4)}, v{RA}, {sr(SRD['ws'],4)}, s{sT if hh else sOunit} offen sc1", ("ostore", hh))
        a("s_barrier")
        for k in range(keep): self.busy[(rs + k) % 4] = False
        self.pend_flag = (("ostore", n-1), sFlag, n, 0)
        if urgent: self.flush_flag()
        self.fill()
    def queue_wo(self, wb, nsub, head0, sRot, p, sCt, inserts=None):
        a = self.a
        a(f"s_lshl_b32 s{p}, s{sW}, 20\ns_lshl_b32 s{sT}, s{sCt}, 7\ns_add_u32 s{p}, s{p}, s{sT}")
        if head0 is not None: a(f"s_lshl_b32 s{sT}, s{head0}, 18\ns_add_u32 s{p}, s{p}, s{sT}")
        l = []
        for t in range(nsub):
            l.append(self.queue(lambda t=t: a(f"s_add_u32 s{sD}, s{sRot}, {t}\ns_and_b32 s{sD}, s{sD}, {nsub-1}\ns_lshl_b32 s{sD}, s{sD}, 16\ns_add_u32 s{sD}, s{sD}, s{p}"),
                                wb, vD2048, self.cfg["fl_wo"]))
            if inserts and t in inserts: inserts[t]()
        return l
    def queue_o(self, oreg, t, nsub, sRot, sO, name, gate=None):
        a = self.a
        for ks in range(2):
            def f(ks=ks):
                if ks == 0: a(f"s_add_u32 s{sD2}, s{sRot}, {t}\ns_and_b32 s{sD2}, s{sD2}, {nsub-1}\ns_lshl_b32 s{sD2}, s{sD2}, 11\ns_add_u32 s{sD2}, s{sD2}, s{sO}")
                a(f"buffer_load_dwordx4 {vr(oreg(t) + 4*ks, 4)}, v{vL16}, {sr(SRD['ws'],4)}, s{sD2} offen offset:{ks*1024} sc1", (name, t, ks))
            self.queue_ld(f, (name, t, ks), gate or name)
    def touch(self, buf, lg, sOff, dummy):
        self.a(f"v_lshlrev_b32 v{vX0}, {lg}, v{vL}\nbuffer_load_dword v{dummy}, v{vX0}, {sr(SRD[buf],4)}, s{sOff} offen", "touch")
    def queue_touch(self, buf, vaddr_fn, soff_fn, dummy, gate=None):
        a = self.a
        def f():
            v = vaddr_fn(); soff_fn()
            a(f"buffer_load_dword v{dummy}, v{v}, {sr(SRD[buf],4)}, s{sD2} offen", "touch")
        self.queue_ld(f, "touch", gate)
    def flag_lanes(self, v, geo):
        a = self.a; W, NL, NB = geo
        wide = W*NL*NB > 64
        lw = (W // (2 if wide else 1)).bit_length() - 1; ll = NL.bit_length() - 1
        a(f"v_and_b32 v{v}, {(1 << lw) - 1}, v{vL}\nv_lshlrev_b32 v{v}, {3 if wide else 2}, v{v}")
        if NL > 1: a(f"v_bfe_u32 v{vX0 if v != vX0 else vX1}, v{vL}, {lw}, {ll}\nv_lshl_add_u32 v{v}, v{vX0 if v != vX0 else vX1}, 7, v{v}")
        if NB > 1: a(f"v_bfe_u32 v{vX0 if v != vX0 else vX1}, v{vL}, {lw + ll}, 2\nv_lshl_add_u32 v{v}, v{vX0 if v != vX0 else vX1}, 12, v{v}")
        return wide
    def chk_issue(self, v, sOff, geo):
        wide = self.flag_lanes(v + 2, geo)
        self.a(f"buffer_load_dword{'x2' if wide else ''} {vr(v, 2 if wide else 1)}, v{v+2}, {sr(SRD['ws'],4)}, s{sOff} offen sc1", ("chk", v))
        self.chk = (v, sOff, wide)
    def chk_wait(self, nap=None, before_spin=None):
        a = self.a; v, sOff, wide = self.chk
        L = self.newlabel("L_chk"); D = self.newlabel("L_ok")
        if a.has_vm(("chk", v)): a.wait_vm(("chk", v))
        a(f"s_mov_b32 s{sT2}, 0")
        a.fence(); a.label(L)
        if wide: a(f"v_and_b32 v{v}, v{v}, v{v+1}")
        a(f"v_cmp_ne_u32 vcc, 1, v{v}\ns_add_u32 s{sT2}, s{sT2}, 1\ns_nop 2\ns_cbranch_vccz {D}")
        a(f"s_cmp_lt_u32 s{sT2}, {self.cfg['spin']}\ns_cbranch_scc0 {D}\ns_sleep {self.cfg['nap'] if nap is None else nap}")
        a(f"buffer_load_dword{'x2' if wide else ''} {vr(v, 2 if wide else 1)}, v{v+2}, {sr(SRD['ws'],4)}, s{sOff} offen sc1\ns_waitcnt vmcnt(0)\ns_branch {L}")
        a.vm.pop()
        a.label(D)
    def chk_issue_cleared(self, v):
        self.a(f"v_lshlrev_b32 v{v}, 2, v{vL}\nbuffer_load_dword v{v}, v{v}, {sr(SRD['dbg'],4)}, 0 offen sc1", ("chk", v))
    def chk_cleared(self, v):
        a = self.a; D = self.newlabel("L_ok")
        if a.has_vm(("chk", v)): a.wait_vm(("chk", v))
        a(f"v_cmp_gt_u32 vcc, 4, v{v}")
        a.fence()
        a(f"s_cbranch_vccz {D}")
        keep = list(a.vm); self.poll_cleared(); a.vm = keep
        a.label(D)
    def poll_cleared(self):
        a = self.a; L = self.newlabel("L_pollc"); D = self.newlabel("L_pcdone")
        a(f"s_mov_b32 s{sT2}, 0\nv_lshlrev_b32 v{vX0}, 2, v{vL}")
        a.fence()
        a.label(L)
        a(f"buffer_load_dword v{vX1}, v{vX0}, {sr(SRD['dbg'],4)}, 0 offen sc1", "poll")
        a("s_waitcnt vmcnt(0)"); a.vm = []
        a(f"v_cmp_gt_u32 vcc, 4, v{vX1}\ns_add_u32 s{sT2}, s{sT2}, 1\ns_nop 2\ns_cbranch_vccz {D}")
        a(f"s_cmp_lt_u32 s{sT2}, {self.cfg['spin']}\ns_cbranch_scc0 {D}\ns_sleep {self.cfg['nap']}\ns_branch {L}")
        a.label(D)
    def run_oproj(self, subs, oreg, ACC, gate, zero_first, keep_last, hooks=None):
        def pre(t):
            self.wait_tag((gate, t, 1))
            if hooks and t in hooks: hooks[t]()
            if gate == "oa" and self.cfg.get("oasel"): self.stamp(48 + t)
        def mf(t, F):
            return [lambda ks=ks, ct=ct: self.mfma(ACC + 16*ct, F + 8*ks + 4*ct, oreg(t) + 4*ks, zero=(zero_first and t == 0 and ks == 0))
                    for ks in range(2) for ct in range(2)]
        self.steps(subs, lambda i, F: self.t_reads(i, vT, F), mf, self.cfg["LAo"], keep_last=keep_last, pre=pre)
        return subs[-2] % 4
    def out_reduce(self, ACC, rs, TMP, sOutOff=None, add=None, sPart=None):
        a = self.a
        a(f"v_lshrrev_b32 v{vX1}, 5, v{vL}\nv_and_b32 v{vX0}, 31, v{vL}\nv_xor_b32 v{vX0}, v{vX0}, v{vX1}\nv_lshlrev_b32 v{vX0}, 4, v{vX0}")
        a(f"v_lshlrev_b32 v{vX1}, 9, v{vX1}\nv_add3_u32 v{vX0}, v{vX0}, v{vX1}, s{sRB}")
        for i in range(1, 8):
            a(f"v_xor_b32 v{vF+i}, {32*i}, v{vX0}")
        a(f"v_lshrrev_b32 v{vF+8}, 4, v{vL}\ns_lshl_b32 s{sT}, s{sW}, 2\nv_add_u32 v{vF+8}, s{sT}, v{vF+8}\nv_and_b32 v{vF+9}, 15, v{vL}")
        a(f"v_xor_b32 v{vF+10}, v{vF+8}, v{vF+9}\nv_lshlrev_b32 v{vF+10}, 4, v{vF+10}\nv_lshl_add_u32 v{vF+10}, v{vF+9}, 9, v{vF+10}\nv_add_u32 v{vF+11}, 0x10000, v{vF+10}")
        a(f"v_lshlrev_b32 v{vF+8}, 12, v{vF+8}\nv_lshl_add_u32 v{vF+8}, v{vF+9}, 3, v{vF+8}")
        for i in range(8):
            a(f"ds_write_b128 v{vF+i if i else vX0}, {vr(ACC+4*i,4)} offset:{rs*4096 + i*1024}")
        self.bar()
        for p in range(8):
            a(f"ds_read_b128 {vr(TMP+4*p,4)}, v{vF+10 + (p>>2)} offset:{(p&3)*16384 + rs*4096}")
        for p in range(0 if add is not None else 1, 8):
            a(f"s_waitcnt lgkmcnt({7-p})")
            for j in range(4):
                a(f"v_add_f32 v{TMP+j}, v{TMP+j}, v{(TMP+4*p+j) if p else (add+j)}")
        if sPart is not None:
            a(f"buffer_store_dwordx4 {vr(TMP,4)}, v{vL16}, {sr(SRD['ws'],4)}, s{sPart} offen sc1", "pstore")
            a("s_barrier")
            self.busy[rs] = self.busy[rs+1] = False
        else:
            self.pack(TMP + 4, TMP, 2)
            a(f"buffer_store_dwordx2 {vr(TMP+4,2)}, v{vF+8}, {sr(SRD['out'],4)}, s{sOutOff} offen", "out")
    def prologue(self):
        a = self.a
        if self.cfg.get("early0"): a("s_memrealtime s[94:95]")
        a("s_cmp_ge_u32 s2, 256\ns_cbranch_scc1 L_end")
        a(f"s_load_dwordx16 s[{KA}:{KA+15}], s[0:1], 0\ns_load_dwordx8 s[{KA+16}:{KA+23}], s[0:1], 64\ns_load_dwordx2 s[{KA+24}:{KA+25}], s[0:1], 96")
        a(f"v_lshrrev_b32 v1, 6, v0\nv_and_b32 v{vL}, 63, v0\nv_readfirstlane_b32 s{sW}, v1")
        for k in ORDER:
            a(f"s_mov_b32 s{SRD[k]+2}, {SIZE[k]:#x}\ns_mov_b32 s{SRD[k]+3}, 0x20000")
        a(f"s_lshl_b32 s{sRB}, s{sW}, 14\ns_and_b32 s{sX}, s2, 7\ns_bfe_u32 s{sJJ}, s2, 0x40003")
        a(f"v_lshlrev_b32 v{vL16}, 4, v{vL}")
        t0, t1, t2 = vF, vF+1, vF+2
        a(f"v_bfe_u32 v{t0}, v{vL}, 4, 1\nv_lshlrev_b32 v{t0}, 2, v{t0}\nv_lshrrev_b32 v{t1}, 5, v{vL}\nv_or_b32 v{t0}, v{t0}, v{t1}")
        a(f"v_and_b32 v{t1}, 7, v{vL}\nv_xor_b32 v{t0}, v{t0}, v{t1}\nv_lshlrev_b32 v{t0}, 4, v{t0}")
        a(f"v_xor_b32 v{t1}, 32, v{t0}\nv_lshrrev_b32 v{t2}, 3, v{vL}")
        for vs, lg in ((vD2048, 11), (vD8192, 13), (vD256, 8)):
            for i in range(4):
                a(f"v_lshl_add_u32 v{vs+i}, v{t2}, {lg}, v{t1 if i & 1 else t0}")
                if i: a(f"v_add_u32 v{vs+i}, {(8*i << lg) - 1024*i}, v{vs+i}")
    def copy_ptrs(self, names):
        for k in names:
            o = KA + 2*ORDER.index(k)
            self.a(f"s_mov_b32 s{SRD[k]}, s{o}\ns_mov_b32 s{SRD[k]+1}, s{o+1}")
    def read_addrs(self, need_q=True):
        a = self.a; t0, t1, t2, t3 = vF, vF+1, vF+2, vF+3
        a(f"v_bfe_u32 v{t0}, v{vL}, 1, 1\nv_lshlrev_b32 v{t0}, 2, v{t0}\nv_bfe_u32 v{t1}, v{vL}, 2, 2\nv_or_b32 v{t0}, v{t0}, v{t1}")
        a(f"v_lshrrev_b32 v{t1}, 5, v{vL}\nv_xor_b32 v{t0}, v{t0}, v{t1}\nv_lshlrev_b32 v{t0}, 4, v{t0}")
        a(f"v_and_b32 v{t1}, 31, v{vL}\nv_lshl_add_u32 v{t0}, v{t1}, 7, v{t0}\nv_add_u32 v{vN}, s{sRB}, v{t0}")
        for s in range(1, 4): a(f"v_xor_b32 v{vN+s}, {32*s}, v{vN}")
        for base, nat in ((vT, False), (vTq, True))[:2 if need_q else 1]:
            if nat:
                a(f"v_and_b32 v{t0}, 1, v{vL}\nv_bfe_u32 v{t1}, v{vL}, 1, 1")
            else:
                a(f"v_bfe_u32 v{t0}, v{vL}, 1, 1\nv_and_b32 v{t1}, 1, v{vL}")
            a(f"v_bfe_u32 v{t2}, v{vL}, 4, 1\nv_lshl_add_u32 v{t0}, v{t2}, 1, v{t0}")
            a(f"v_bfe_u32 v{t2}, v{vL}, 3, 1\nv_lshlrev_b32 v{t2}, 2, v{t2}\nv_xor_b32 v{t0}, v{t0}, v{t2}")
            a(f"v_lshrrev_b32 v{t2}, 5, v{vL}")
            if nat: a(f"v_lshlrev_b32 v{t3}, 1, v{t2}\nv_xor_b32 v{t0}, v{t0}, v{t3}")
            else:   a(f"v_xor_b32 v{t0}, v{t0}, v{t2}")
            a(f"v_lshlrev_b32 v{t0}, 4, v{t0}\nv_lshl_add_u32 v{t0}, v{t1}, 3, v{t0}")
            a(f"v_bfe_u32 v{t1}, v{vL}, 2, 2\nv_lshl_add_u32 v{t1}, v{t2}, {3 if nat else 2}, v{t1}")
            a(f"v_lshl_add_u32 v{t0}, v{t1}, 7, v{t0}\nv_add_u32 v{base}, s{sRB}, v{t0}")
            ux, ur = (16, 4*128) if nat else (32, 8*128)
            a(f"v_xor_b32 v{base+1}, {ux}, v{base}\nv_add_u32 v{base+1}, {ur}, v{base+1}")
            a(f"v_xor_b32 v{base+2}, 64, v{base}\nv_xor_b32 v{base+3}, 64, v{base+1}")
    def flag_off(self, dst, branch, sB, sH, base=WS_FLAG):
        a = self.a
        a(f"s_lshl_b32 s{dst}, s{sB}, 12\ns_lshl_b32 s{sT}, s{sH}, 7\ns_add_u32 s{dst}, s{dst}, s{sT}\ns_add_u32 s{dst}, s{dst}, {base + branch*32768}")
    def clear_flags(self, offs):
        a = self.a; L = self.newlabel("L_clr")
        a(f"s_cmp_lg_u32 s{sW}, 0\ns_cbranch_scc1 {L}")
        a(f"v_mov_b32 v{vX1}, 0")
        for s_, nl, code in offs:
            a(code or f"v_lshlrev_b32 v{vX0}, 2, v{vL}")
            a(f"s_mov_b64 exec, {(1 << nl) - 1:#x}\nbuffer_store_dword v{vX1}, v{vX0}, {sr(SRD['ws'],4)}, s{s_} offen sc1\ns_mov_b64 exec, -1")
            a.vm.pop()
        a.label(L)
    def signal_cleared(self):
        a = self.a; L = self.newlabel("L_sig")
        a(f"s_cmp_lg_u32 s{sW}, 0\ns_cbranch_scc1 {L}")
        a(f"v_mov_b32 v{vX1}, 1\ns_mov_b64 exec, 1\ns_and_b32 s{sT}, s2, 63\ns_lshl_b32 s{sT}, s{sT}, 2\nbuffer_atomic_add v{vX1}, off, {sr(SRD['dbg'],4)}, s{sT} sc1\ns_mov_b64 exec, -1")
        a.vm.pop()
        a.label(L)
    def role_common_B(self):
        pass
    def oproj_params(self, sBo, sCt, sO_, sF_, sOut, branch):
        a = self.a
        a(f"s_lshr_b32 s{sBo}, s{sJJ}, 1\ns_and_b32 s{sT}, s{sJJ}, 1\ns_lshl_b32 s{sCt}, s{sX}, 1\ns_add_u32 s{sCt}, s{sCt}, s{sT}")
        a(f"s_lshl_b32 s{sO_}, s{sBo}, 18\ns_lshl_b32 s{sT}, s{sW}, 15\ns_add_u32 s{sO_}, s{sO_}, s{sT}")
        a(f"s_lshl_b32 s{sF_}, s{sBo}, 12\ns_lshl_b32 s{sT}, s{sW}, 9\ns_add_u32 s{sF_}, s{sF_}, s{sT}\ns_add_u32 s{sF_}, s{sF_}, {WS_FLAG + branch*32768}")
        a(f"s_lshl_b32 s{sOut}, s{sBo}, 17\ns_lshl_b32 s{sT}, s{sCt}, 7\ns_add_u32 s{sOut}, s{sOut}, s{sT}")
        if branch: a(f"s_add_u32 s{sO_}, s{sO_}, {2 << 20}\ns_add_u32 s{sOut}, s{sOut}, 2048")
    def unit_ids(self):
        a = self.a
        a(f"s_and_b32 s{sT}, s{sJJ}, 3\ns_lshl_b32 s{sHB}, s{sX}, 2\ns_add_u32 s{sHB}, s{sHB}, s{sT}")
        a(f"s_and_b32 s{sT}, s{sJJ}, 2\ns_lshl_b32 s{sT}, s{sT}, 1\ns_lshr_b32 s{sBB}, s{sJJ}, 2\ns_add_u32 s{sBB}, s{sBB}, s{sT}")
    def load_q(self, dst, sQo):
        a = self.a
        a(f"s_add_u32 s{sT}, s{sQo}, 4096")
        for f in range(8):
            a(f"buffer_load_dwordx4 {vr(dst+4*f,4)}, v{vL16}, {sr(SRD['ws'],4)}, s{sT if f >= 4 else sQo} offen offset:{(f&3)*1024} sc1", ("q", f))
    def half_params(self, sBo, sH, sO_, sF_, late):
        a = self.a
        a(f"s_lshr_b32 s{sH}, s{sBo}, 2\ns_lshl_b32 s{sH}, s{sH}, 1")
        if late: a(f"s_xor_b32 s{sH}, s{sH}, 2")
        a(f"s_lshl_b32 s{sT}, s{sH}, 7\ns_add_u32 s{sF_}, s{sF_}, s{sT}\ns_lshl_b32 s{sT}, s{sH}, 13\ns_add_u32 s{sO_}, s{sO_}, s{sT}")
    def lanes2(self, T, lgrow):
        def f():
            self.a(f"v_lshrrev_b32 v{T}, 1, v{vL}\nv_lshlrev_b32 v{T}, {lgrow}, v{T}\nv_and_b32 v{T+1}, 1, v{vL}\nv_lshl_add_u32 v{T}, v{T+1}, 7, v{T}"); return T
        return f
    def lin(self, T, lg):
        def f():
            self.a(f"v_lshlrev_b32 v{T}, {lg}, v{vL}"); return T
        return f
    def part_off(self, sPo, sPf, sB, sCt, sKq, branch):
        a = self.a
        a(f"s_lshl_b32 s{sT}, s{sB}, 4\ns_add_u32 s{sT}, s{sT}, s{sCt}\ns_lshl_b32 s{sPf}, s{sT}, 7\ns_lshl_b32 s{sT}, s{sT}, 3\ns_add_u32 s{sT}, s{sT}, s{sKq}")
        a(f"s_lshl_b32 s{sPo}, s{sT}, 12\ns_add_u32 s{sPo}, s{sPo}, {WS_P + branch*(4 << 20)}\ns_lshl_b32 s{sT}, s{sKq}, 2\ns_add_u32 s{sPf}, s{sPf}, s{sT}\ns_add_u32 s{sPf}, s{sPf}, {WS_PFLAG + branch*16384}")
    def move4(self, op, reg, sOff, tag):
        for f in range(4):
            self.a(f"buffer_{op}_dwordx4 {vr(reg+4*f,4)}, v{vL16}, {sr(SRD['ws'],4)}, s{sOff} offen offset:{f*1024} sc1", tag)
    def unpack(self, dst, src, n):
        a = self.a
        a(f"s_mov_b32 s{sT2}, 0xffff0000")
        for k in range(n):
            a(f"v_lshlrev_b32 v{dst+2*k}, 16, v{src+k}\nv_and_b32 v{dst+2*k+1}, s{sT2}, v{src+k}")
    def fetch_q(self, sQo, nk):
        a = self.a
        a(f"s_lshl_b32 s{sT}, s{sW}, {10 + nk - 1}\ns_add_u32 s{sT2}, s{sT}, {QX}\ns_add_u32 s{sT}, s{sT}, s{sQo}\ns_mov_b32 s{sT3}, m0\ns_mov_b32 m0, s{sT2}")
        for k in range(nk):
            a(f"buffer_load_dwordx4 v{vL16}, {sr(SRD['ws'],4)}, s{sT} offen offset:{1024*k} sc1 lds", "qdma")
        a(f"s_mov_b32 m0, s{sT3}")
    def read_q(self, dst, nf):
        a = self.a
        if a.has_vm("qdma"): a.wait_vm("qdma")
        a(f"v_add_u32 v{vX0}, {QX}, v{vL16}\ns_barrier")
        for f in range(nf):
            if f == 12: a("s_waitcnt lgkmcnt(4)")
            a(f"ds_read_b128 {vr(dst+4*f,4)}, v{vX0} offset:{f*1024}")
    def role_S(self):
        a = self.a; c = self.cfg
        self.start_role()
        self.stamp_regs = list(range(24, 28)) + list(range(85, 89)) + [100, 101, 95] + list(range(12, 20)) + list(range(8, 12)) + list(range(28, 32)) + list(range(20, 24)) + list(range(40, 44)); self.stamped = []
        P = sP
        self.unit_ids()
        a("s_waitcnt lgkmcnt(0)")
        self.copy_ptrs(ORDER)
        (sU1, sU2, sO1, sO2, sF1, sF2, sB2, sQo, sQf, sBo, sCt, sOC, sFC, sOut, sH2, sPo, sPf, p1, p2, pwo, sRot) = range(P, P + 21)
        T2, D2 = vTq, vTq + 2
        self.K = c["K0"]
        if c["touchX"]:
            a(f"s_lshl_b32 s{sT}, s{sJJ}, 15\ns_and_b32 s{sT2}, s{sW}, 3\ns_lshl_b32 s{sT2}, s{sT2}, 13\ns_add_u32 s{sT}, s{sT}, s{sT2}\nv_lshlrev_b32 v{T2}, 7, v{vL}")
            L1 = self.newlabel("L_xb"); L2 = self.newlabel("L_xd")
            a(f"s_cmp_ge_u32 s{sW}, 4\ns_cbranch_scc1 {L1}\nbuffer_load_dword v{D2}, v{T2}, {sr(SRD['xA'],4)}, s{sT} offen\ns_branch {L2}", "touch")
            a.label(L1); a(f"buffer_load_dword v{D2}, v{T2}, {sr(SRD['xB'],4)}, s{sT} offen"); a.vm.pop(); a.label(L2)
        if c["touchWA"]:
            a(f"s_lshr_b32 s{sT3}, s{sJJ}, 3")
            for k in range(3):
                a(f"s_cmp_eq_u32 s{sT3}, 0\ns_cselect_b32 s{sG+k}, s{SRD['wqA']+k}, s{SRD['wqB']+k}")
            a(f"s_mov_b32 s{sG+3}, 0x20000")
            a(f"s_and_b32 s{sT}, s{sJJ}, 3\ns_lshl_b32 s{sT}, s{sT}, 3\ns_and_b32 s{sT2}, s{sJJ}, 4\ns_lshl_b32 s{sT2}, s{sT2}, 2\ns_add_u32 s{sT}, s{sT}, s{sT2}")
            a(f"s_add_u32 s{sT}, s{sT}, s{sW}\ns_add_u32 s{sT}, s{sT}, 8\ns_and_b32 s{sT2}, s{sX}, 3\ns_lshl_b32 s{sT2}, s{sT2}, 1\ns_add_u32 s{sT}, s{sT}, s{sT2}\ns_and_b32 s{sT}, s{sT}, 31\ns_lshl_b32 s{sD2}, s{sT}, 18\ns_lshl_b32 s{sT}, s{sHB}, 8\ns_add_u32 s{sD2}, s{sD2}, s{sT}")
            self.queue_touch("G", self.lanes2(T2, 13), lambda: None, D2)
            self.pump(1)
        a(f"s_lshl_b32 s{sU1}, s{sBB}, 5\ns_add_u32 s{sU1}, s{sU1}, s{sHB}\ns_xor_b32 s{sU2}, s{sU1}, 128\ns_xor_b32 s{sB2}, s{sBB}, 4")
        a1 = self.queue_attn("kB", "vB", sU1, None, p1, c["fl_kvB"])
        self.fill()
        self.flag_off(sF1, 1, sBB, sHB); self.flag_off(sF2, 1, sB2, sHB)
        self.clear_flags([(sF1, 8, None), (sF2, 8, None)])
        self.stamp(0)
        self.read_addrs(need_q=False)
        self.flag_off(sQf, 1, sBB, sHB, WS_QFLAG)
        a(f"s_lshl_b32 s{sO1}, s{sU1}, 13\ns_add_u32 s{sQo}, s{sO1}, {WS_Q + (2 << 20)}\ns_add_u32 s{sO1}, s{sO1}, {WS_O + (2 << 20)}\ns_xor_b32 s{sO2}, s{sO1}, {1 << 20}")
        a(f"s_lshl_b32 s{sT}, s{sW}, 2\ns_add_u32 s{sF1}, s{sF1}, s{sT}\ns_add_u32 s{sF2}, s{sF2}, s{sT}")
        a2 = self.queue_attn("kB", "vB", sU2, None, p2, c["fl_kvB"])
        self.oproj_params(sBo, sCt, sOC, sFC, sOut, 1)
        self.half_params(sBo, sH2, sOC, sFC, True)
        a(f"s_lshl_b32 s{sPf}, s2, 7\ns_lshl_b32 s{sT}, s{sW}, 2\ns_add_u32 s{sPf}, s{sPf}, s{sT}\ns_add_u32 s{sPf}, s{sPf}, {WS_PFLAG + 16384}")
        a(f"s_lshl_b32 s{sPo}, s2, 3\ns_add_u32 s{sPo}, s{sPo}, s{sW}\ns_lshl_b32 s{sPo}, s{sPo}, 10\ns_add_u32 s{sPo}, s{sPo}, {WS_P + (4 << 20)}")
        a(f"s_and_b32 s{sT}, s{sCt}, 1\ns_lshl_b32 s{sT}, s{sT}, 2\ns_add_u32 s{sRot}, s{sBo}, s{sT}")
        wB2 = self.queue_wo("woB", 8, sH2, sRot, pwo, sCt)
        oregC = lambda t: (vB1 + 32 + 8*t) if t < 4 else (vF + 8*(t-4))
        for t in range(8): self.queue_o(oregC, t, 8, sRot, sOC, "oc")
        CK = vD8192 + 1
        for t, i in enumerate(a1[0]):
            self.wait_sub(i); self.stamp(34 + t)
            if t == 0: self.signal_cleared()
            if t == c["K0n"]: self.K = c["K"]
            if t == 4: self.chk_issue_cleared(CK)
            if t == 6: self.chk_cleared(CK)
            if t == 7: self.chk_issue(CK, sQf, (2, 1, 1))
            for r in self.n_reads(i, vB2 + 16*t): r()
            a("s_waitcnt lgkmcnt(0)")
            self.free(i)
        self.stamp(16)
        self.chk_wait(nap=c["napq"])
        self.stamp(17)
        self.fetch_q(sQo, 1); self.read_q(vF, 8)
        for t in range(8):
            ti, dh = t >> 1, t & 1
            for s_ in range(4):
                if t < 2: a(f"s_waitcnt lgkmcnt({7 - 4*dh - s_})")
                self.mfma(vB1 + 16*ti, vB2 + 16*t + 4*s_, vF + 16*dh + 4*s_, zero=(dh == 0 and s_ == 0))
            if t >= 1: self.pump(1, wait=False)
        def chkq2():
            a(f"s_xor_b32 s{sQf}, s{sQf}, 16384\ns_xor_b32 s{sQo}, s{sQo}, {1 << 20}")
            self.chk_issue(CK, sQf, (2, 1, 1))
        def loadq2():
            self.chk_wait(); self.fetch_q(sQo, 1)
        self.attn_rest(1, a1[1], vB1, vB2 + 64, sO1, sF1, (7, 8, 9), after_softmax=chkq2, after_first_barrier=loadq2)
        self.stamp(10)
        self.read_q(vB1, 8); a("s_waitcnt lgkmcnt(0)")
        self.qk(1, a2[0])
        self.attn_rest(1, a2[1], vB2, vB1, sO2, sF2, (11, 12, 13), urgent=True)
        self.stamp(14)
        self.K = c["Khit"]
        W = vB2; ACC = vB1
        for t, i in enumerate(wB2):
            self.wait_sub(i)
            if t == 1: self.chk_issue(CK, sPf, (1, 1, 1))
            if t == c["pbt"]:
                self.chk_wait(nap=c["napq"])
                a(f"buffer_load_dwordx4 {vr(vM,4)}, v{vL16}, {sr(SRD['ws'],4)}, s{sPo} offen sc1", "pb")
            self.tr_reads(i, vT, W + 16*t)
            a("s_waitcnt lgkmcnt(0)")
            self.free(i)
        self.chk_issue(CK, sFC, (8, 2, 1))
        self.stamp(15)
        self.chk_wait(nap=c["naptail"])
        self.stamp(18)
        self.gates.add("oc"); self.K = c["Ktail"]
        for t in range(8):
            for ks in range(2):
                self.wait_tag(("oc", t, ks))
                for ct in range(2):
                    self.mfma(ACC + 16*ct, W + 16*t + 8*ks + 4*ct, oregC(t) + 4*ks, zero=(t == 0 and ks == 0))
        self.out_reduce(ACC, 0, vB2, sOut, add=vM)
        self.stamp(1)
        a("s_endpgm")
        a.reset_keep_t()
    def role_G(self):
        a = self.a; c = self.cfg
        self.start_role()
        self.stamp_regs = list(range(32, 40)) + [100, 101, 95] + list(range(84, 89)); self.stamped = []
        P = sP
        (sBr, sHq, sBh, sBA, sHA, sRotK, sUA, sOa, sFa, sQo, sQf, sCq, pg, pg1, pg2, paa, sA, sB_, sC, sE) = range(P, P + 20)
        a("s_waitcnt lgkmcnt(0)")
        self.copy_ptrs(ORDER)
        a(f"s_lshr_b32 s{sBr}, s{sJJ}, 3\ns_and_b32 s{sT}, s{sJJ}, 3\ns_lshl_b32 s{sHq}, s{sX}, 2\ns_add_u32 s{sHq}, s{sHq}, s{sT}\ns_bfe_u32 s{sBh}, s{sJJ}, 0x10002")
        a(f"s_lshl_b32 s{pg2}, s{sT}, 2\ns_lshl_b32 s{sT}, s{sBh}, 3\ns_add_u32 s{pg2}, s{pg2}, s{sT}\ns_and_b32 s{sT}, s{sX}, 3\ns_add_u32 s{pg2}, s{pg2}, s{sT}")
        a(f"s_lshl_b32 s{sT}, s{sBh}, 2\ns_add_u32 s{sT}, s{sT}, s{sW}\ns_lshl_b32 s{sT}, s{sT}, 16")
        a(f"s_bfe_u32 s{sT2}, s{sW}, 0x10001\ns_lshl_b32 s{sT2}, s{sT2}, 18\ns_and_b32 s{sT3}, s{sW}, 1\ns_lshl_b32 s{sT3}, s{sT3}, 7\ns_add_u32 s{sT2}, s{sT2}, s{sT3}\ns_lshl_b32 s{sT3}, s{sHq}, 8\ns_add_u32 s{sT2}, s{sT2}, s{sT3}")
        a(f"s_cmp_lt_u32 s{sW}, 4\ns_cselect_b32 s{pg}, s{sT}, s{sT2}\ns_cselect_b32 s{pg1}, 7, 19\ns_cselect_b64 vcc, -1, 0")
        for k in range(4): a(f"v_cndmask_b32 v{vGa+k}, v{vD8192+k}, v{vD2048+k}, vcc")
        qs = self.queue_cg(16, pg, lambda: self.pick("xA", "wqA", sBr, "xB", "wqB"), c["fl_w"])
        self.K = 16
        for k in range(c["KG0"] // 4):
            if k and c["barfill"]: a("s_barrier")
            self.pump(4, wait=False)
        a(f"s_and_b32 s{sT3}, s{sX}, 1\ns_lshl_b32 s{sBA}, s{sT3}, 2\ns_lshr_b32 s{sT}, s{sJJ}, 2\ns_add_u32 s{sBA}, s{sBA}, s{sT}")
        a(f"s_and_b32 s{sRotK}, s{sJJ}, 3\ns_lshr_b32 s{sT2}, s{sX}, 1\ns_lshl_b32 s{sHA}, s{sT2}, 3\ns_lshl_b32 s{sT}, s{sRotK}, 1\ns_add_u32 s{sHA}, s{sHA}, s{sT}")
        a(f"s_lshl_b32 s{sUA}, s{sBA}, 2\ns_add_u32 s{sUA}, s{sUA}, s{sT2}\ns_and_b32 s{sCq}, s{sJJ}, 7")
        self.flag_off(sFa, 0, sBA, sHA)
        a(f"s_lshl_b32 s{sA}, s{sBr}, 3\ns_lshl_b32 s{sT}, s{sBh}, 2\ns_add_u32 s{sA}, s{sA}, s{sT}")
        self.flag_off(sQf, 0, sA, sHq, WS_QFLAG)
        a(f"s_lshl_b32 s{sA}, s{sBr}, 13\ns_lshl_b32 s{sT}, s{sCq}, 8\ns_add_u32 s{sA}, s{sA}, s{sT}\ns_lshl_b32 s{sT}, s{sX}, 2\ns_add_u32 s{sA}, s{sA}, s{sT}\ns_add_u32 s{sA}, s{sA}, {WS_PFLAG}")
        a(f"s_and_b32 s{sB_}, s2, 127\ns_lshl_b32 s{sB_}, s{sB_}, 7\ns_add_u32 s{sB_}, s{sB_}, {WS_PFLAG + 16384}")
        self.clear_flags([(sFa, 16, f"v_lshrrev_b32 v{vX0}, 3, v{vL}\nv_lshlrev_b32 v{vX0}, 7, v{vX0}\nv_and_b32 v{vF}, 7, v{vL}\nv_lshl_add_u32 v{vX0}, v{vF}, 2, v{vX0}"),
                          (sQf, 8, f"v_lshrrev_b32 v{vX0}, 1, v{vL}\nv_lshlrev_b32 v{vX0}, 12, v{vX0}\nv_and_b32 v{vF}, 1, v{vL}\nv_lshl_add_u32 v{vX0}, v{vF}, 2, v{vX0}"),
                          (sA, 8, f"v_bfe_u32 v{vF}, v{vL}, 1, 2\nv_lshlrev_b32 v{vX0}, 11, v{vF}\nv_and_b32 v{vF}, 1, v{vL}\nv_lshl_add_u32 v{vX0}, v{vF}, 7, v{vX0}"),
                          (sB_, 8, None)])
        self.stamp(0)
        self.read_addrs()
        self.cg_addr(False, vTq)
        a(f"s_lshl_b32 s{sOa}, s{sBA}, 5\ns_add_u32 s{sOa}, s{sOa}, s{sHA}\ns_lshl_b32 s{sOa}, s{sOa}, 13")
        a(f"s_lshl_b32 s{sT}, s{sW}, 2\ns_add_u32 s{sFa}, s{sFa}, s{sT}")
        a(f"s_and_b32 s{sT}, s{sW}, 3\ns_lshl_b32 s{sT2}, s{sT}, 12\ns_add_u32 s{sQf}, s{sQf}, s{sT2}\ns_lshr_b32 s{sT3}, s{sW}, 2\ns_lshl_b32 s{sT2}, s{sT3}, 2\ns_add_u32 s{sQf}, s{sQf}, s{sT2}")
        a(f"s_lshl_b32 s{sQo}, s{sBr}, 3\ns_lshl_b32 s{sT2}, s{sBh}, 2\ns_add_u32 s{sQo}, s{sQo}, s{sT2}\ns_add_u32 s{sQo}, s{sQo}, s{sT}\ns_lshl_b32 s{sQo}, s{sQo}, 5\ns_add_u32 s{sQo}, s{sQo}, s{sHq}\ns_lshl_b32 s{sQo}, s{sQo}, 1\ns_add_u32 s{sQo}, s{sQo}, s{sT3}\ns_lshl_b32 s{sQo}, s{sQo}, 12\ns_add_u32 s{sQo}, s{sQo}, {WS_Q}")
        self.queue_ld(lambda: None, ("gate", "ka"), "ka")
        aa = self.queue_attn("kA", "vA", sUA, sRotK, paa, c["fl_kvA"])
        CK = vD8192 + 1
        ACC = vB1
        self.run_cg(qs, False, ACC, c["LAq"], stamp0=32 if c.get("qasel") else None,
                    hooks={0: self.signal_cleared, 9: lambda: self.chk_issue_cleared(CK), 13: lambda: self.chk_cleared(CK)})
        self.stamp(20)
        a(f"s_mov_b32 s{sT3}, {f2u(SCALE):#x}")
        for f in range(4):
            for j in range(8): a(f"v_mul_f32 v{ACC+8*f+j}, s{sT3}, v{ACC+8*f+j}")
            self.pack(ACC + 32 + 4*f, ACC + 8*f, 4)
            a(f"buffer_store_dwordx4 {vr(ACC+32+4*f,4)}, v{vL16}, {sr(SRD['ws'],4)}, s{sQo} offen offset:{f*1024} sc1", "qstore")
        self.gates.add("ka")
        self.pump(c["preA0"], wait=False)
        a.wait_vm("qstore"); self.set_flag(sQf)
        self.stamp(22)
        self.K = c["Khit"]
        self.pump(c["preA"])
        self.flag_off(sQf, 0, sBA, sHA, WS_QFLAG)
        self.chk_issue(CK, sQf, (2, 2, 1)); self.chk_wait(nap=c["napq"])
        self.stamp(7)
        a(f"s_add_u32 s{sQo}, s{sOa}, {WS_Q}")
        self.fetch_q(sQo, 2)
        sPo, sPf, sFl, sFb, sBo, sCt, sPo2, sPf2, sOut = sQo, sQf, sHq, sBh, sA, sB_, sC, sE, sBA
        def og_first(branch):
            def f():
                self.pick("ws", "woB" if branch else "woA")
                a(f"s_lshl_b32 s{sT3}, s{sX}, 2")
                if branch: a(f"s_lshl_b32 s{sT}, s{sBr}, 1\ns_add_u32 s{sT3}, s{sT3}, s{sT}")
                a(f"s_lshl_b32 s{sT}, s{sBr}, 2\ns_add_u32 s{sT}, s{sT}, s{sW}\ns_lshl_b32 s{sT}, s{sT}, 5\ns_add_u32 s{sT}, s{sT}, s{sT3}\ns_lshl_b32 s{sT}, s{sT}, 13\ns_add_u32 s{sT}, s{sT}, {WS_O + branch*(2 << 20)}")
                a(f"s_lshl_b32 s{sT3}, s{sT3}, 18\ns_bfe_u32 s{sT2}, s{sW}, 0x10001\ns_lshl_b32 s{sT2}, s{sT2}, 16\ns_add_u32 s{sT3}, s{sT3}, s{sT2}\ns_and_b32 s{sT2}, s{sW}, 1\ns_lshl_b32 s{sT2}, s{sT2}, 7\ns_add_u32 s{sT3}, s{sT3}, s{sT2}\ns_lshl_b32 s{sT2}, s{sCq}, 8\ns_add_u32 s{sT3}, s{sT3}, s{sT2}")
                a(f"s_lshl_b32 s{pg2}, s{sBr}, 2\ns_add_u32 s{pg2}, s{pg2}, s{sCq}\ns_cmp_lt_u32 s{sW}, 4\ns_cselect_b32 s{pg}, s{sT}, s{sT3}\ns_cselect_b32 s{pg1}, 12, 17\ns_cselect_b64 vcc, -1, 0")
                for k in range(4): a(f"v_cndmask_b32 v{vGa+k}, v{vD2048+k}, v{vL16}, vcc")
            return f
        sBo1, sCt1, sO1, sF1, sH1, sRot, pw, sPb, sPbf = sA, sB_, sC, sE, sBA, sHA, sUA, 6, 7
        self.oproj_params(sBo1, sCt1, sO1, sF1, sPb, 1)
        self.half_params(sBo1, sH1, sO1, sF1, False)
        a(f"s_and_b32 s{sT}, s{sCt1}, 1\ns_lshl_b32 s{sT}, s{sT}, 2\ns_add_u32 s{sRot}, s{sBo1}, s{sT}")
        a(f"s_and_b32 s{sPb}, s2, 127\ns_lshl_b32 s{sPbf}, s{sPb}, 7\ns_lshl_b32 s{sT}, s{sW}, 2\ns_add_u32 s{sPbf}, s{sPbf}, s{sT}\ns_add_u32 s{sPbf}, s{sPbf}, {WS_PFLAG + 16384}")
        a(f"s_lshl_b32 s{sPb}, s{sPb}, 3\ns_add_u32 s{sPb}, s{sPb}, s{sW}\ns_lshl_b32 s{sPb}, s{sPb}, 10\ns_add_u32 s{sPb}, s{sPb}, {WS_P + (4 << 20)}")
        oregB = lambda t: vB2 + 8*t
        T2, D2 = vTq, vTq + 2
        if c["touchOB"]:
            self.queue_touch("ws", self.lin(T2, 7), lambda: a(f"s_and_b32 s{sD2}, s{sCt1}, 1\ns_lshl_b32 s{sD2}, s{sD2}, 13\ns_add_u32 s{sD2}, s{sD2}, s{sO1}"), D2, gate="tob")
        wB1 = self.queue_wo("woB", 8, sH1, sRot, pw, sCt1, {c["aheadB"]-1: lambda: [self.queue_o(oregB, t, 8, sRot, sO1, "ob") for t in range(8)]})
        oa = self.queue_cg(8, pg, og_first(0), "sc1", gate="oa")
        a(f"s_lshl_b32 s{sFl}, s{sBr}, 14\ns_lshl_b32 s{sT}, s{sX}, 9\ns_add_u32 s{sFl}, s{sFl}, s{sT}\ns_add_u32 s{sFl}, s{sFl}, {WS_FLAG}")
        self.read_q(vB1, 16); a("s_waitcnt lgkmcnt(0)")
        self.stamp(5)
        self.qk(2, aa[0])
        def afb():
            if c["touchOB"]:
                self.chk_wait(); self.gates.add("tob"); self.pump(1, wait=False)
        self.attn_rest(2, aa[1], vB2, vB1, sOa, sFa, (2, 3, 4), keep=4, after_v=lambda: self.chk_issue(CK, sF1, (8, 2, 1)), after_first_barrier=afb, urgent=c["urgA"])
        self.stamp(6)
        if not c["touchOB"]: self.chk_wait()
        self.gates.add("ob")
        self.stamp(14)
        rs = self.run_oproj(wB1, oregB, ACC, "ob", True, 2, hooks={0: self.flush_flag, 5: lambda: self.chk_issue(CK, sFl, (8, 4, 4))})
        self.stamp(13)
        self.chk_wait(); self.gates.add("oa")
        self.out_reduce(ACC, rs, vB2, sPart=sPb)
        self.pend_flag = ("pstore", sPbf, 1, 0)
        self.cg_addr(True, vT)
        self.K = 16; self.pump(c["og0"], wait=False)
        a(f"s_lshl_b32 s{sBo}, s{sBr}, 2\ns_and_b32 s{sT}, s{sW}, 3\ns_add_u32 s{sBo}, s{sBo}, s{sT}\ns_lshl_b32 s{sCt}, s{sCq}, 1\ns_lshr_b32 s{sT}, s{sW}, 2\ns_add_u32 s{sCt}, s{sCt}, s{sT}")
        self.part_off(sPo, sPf, sBo, sCt, sX, 0)
        ACC2 = vB1 + 32
        self.run_cg(oa, True, ACC2, c["LAo"], hooks={0: self.flush_flag})
        self.pack(vF + 16, ACC2, 16)
        self.move4("store", vF + 16, sPo, "pst")
        self.stamp(15)
        a(f"s_lshr_b32 s{sBo}, s{sJJ}, 1\ns_and_b32 s{sT}, s{sJJ}, 1\ns_lshl_b32 s{sCt}, s{sX}, 1\ns_add_u32 s{sCt}, s{sCt}, s{sT}")
        a(f"s_lshl_b32 s{sOut}, s{sBo}, 17\ns_lshl_b32 s{sT}, s{sCt}, 7\ns_add_u32 s{sOut}, s{sOut}, s{sT}")
        self.part_off(sPo2, sPf2, sBo, sCt, sW, 0)
        a.wait_vm("pst"); self.set_flag(sPf)
        self.chk_issue(CK, sPf2, (1, 1, 1)); self.chk_wait(nap=c["napq"])
        self.stamp(12)
        self.move4("load", vB1 + 32, sPo2, "pa")
        a.wait_vm("pa")
        self.unpack(ACC, vB1 + 32, 16)
        self.out_reduce(ACC, 0, vB2, sOut)
        self.stamp(1)
        a("s_endpgm")
        a.reset_keep_t()
    def build(self):
        a = self.a
        self.prologue()
        a("s_cmp_ge_u32 s2, 128\ns_cbranch_scc1 L_roleG")
        sv = (a.t, dict(a.valu_w), dict(a.valu_sw))
        self.role_S()
        a.label("L_roleG")
        a.nop(2)
        self.role_G()
        a.label("L_end")
        a("s_endpgm")
        body = a.text()
        return (HDR + f"; @launch grid=(256,1,1) block=(512,1,1) lds=163840\n"
                + '.amdgcn_target "amdgcn-amd-amdhsa--gfx950"\n.text\n'
                + f".globl {NAME}_kernel\n.p2align 8\n.type {NAME}_kernel,@function\n{NAME}_kernel:\n" + body
                + f""".section .rodata,"a"
.p2align 6
.amdhsa_kernel {NAME}_kernel
  .amdhsa_next_free_vgpr 256
  .amdhsa_next_free_sgpr 102
  .amdhsa_accum_offset 256
  .amdhsa_group_segment_fixed_size 0
  .amdhsa_kernarg_size 104
  .amdhsa_user_sgpr_count 2
  .amdhsa_user_sgpr_kernarg_segment_ptr 1
  .amdhsa_system_sgpr_workgroup_id_x 1
.end_amdhsa_kernel
""")

DEFAULT = dict(touchOB=0, barfill=1, pbt=6, og0=12, oaI=1, rotO=1, touchX=1, nap=40, naptail=2, napq=4, rotQ=3, cgspread=5, holdS=0, gateKA=1, preA0=4, KG0=16, preA=12, urgA=True, gateW=None, aheadB=4, gateWA=1, K0=4, K0n=3, Khit=6, prepoll=0, touchWA=1, touchWB=1, touchO=1, pipe1=False, LAq=8, LAa=6, LAb=6, LAo=8, touchK=None, touchV=0, touchW=1, flagt=0, redpump=2, K=4, Ktail=6, smpump=8, fl_x="", fl_w="", fl_wo="", fl_kvA="", fl_kvB="nt", oproj=True, stamps=False, spin=20000)
def make(**kw):
    c = dict(DEFAULT); c.update(kw)
    return Gen(c).build()
if __name__ == "__main__":
    out = sys.argv[1] if len(sys.argv) > 1 else "cdna_kernels/" + NAME + ".s"
    kw = eval("dict(" + (sys.argv[2] if len(sys.argv) > 2 else "") + ")")
    open(out, "w").write(make(**kw))
```

```python
import sys, math
from collections import deque
from asmlib import Asm, vr, sr

NAME = "concat_heads__gqa_block_cached__mha_block_cached__near_ridge"
HDR = open("cdna_kernels/" + NAME + ".s.ref").read().split("; Override launch")[0]

SRD = dict(G=96, xA=8, kA=12, vA=16, wqA=20, woA=24, xB=28, kB=32, vB=36, wqB=40, woB=44, out=48, dbg=52, ws=56)
SIZE = dict(xA=1<<19, kA=1<<23, vA=1<<23, wqA=1<<23, woA=1<<23, xB=1<<19, kB=1<<26, vB=1<<26, wqB=1<<23, woB=1<<23,
            out=1<<20, dbg=256, ws=1<<28)
ORDER = ["xA", "kA", "vA", "wqA", "woA", "xB", "kB", "vB", "wqB", "woB", "out", "dbg", "ws"]
sW = 3; sRB = 60; sT = 61; sT2 = 62; sT3 = 63; sD = 93; sD2 = 89; sG = 96
sX = 4; sJJ = 5; sBB = 6; sHB = 7
KA = 64
sP = 64
vL = 0
vD256 = 1; vD2048 = 5; vD8192 = 9
vN = 13
vT = 17; vTq = 21
vL16 = 25
vM = 26; vS = 28
vF = 30
vB1 = 62
vB2 = 126
vX0 = 254; vX1 = 255
vGa = vB2 + 96; vCA = vB2 + 100; vCW = vB2 + 104
SPARE = 131072
QX = SPARE
ML = SPARE + 16384
WS_O = 0
WS_Q = 4 << 20
WS_TS = 8 << 20
WS_FLAG = 10 << 20
WS_QFLAG = WS_FLAG + 65536
WS_PFLAG = WS_FLAG + 131072
WS_P = 16 << 20
SCALE = math.log2(math.e) / math.sqrt(128.0)

def f2u(x):
    import struct
    return struct.unpack("<I", struct.pack("<f", x))[0]

class Gen:
    def __init__(self, cfg):
        self.cfg = cfg
        self.a = Asm()
        self.lbl = 0
    def newlabel(self, p="L"):
        self.lbl += 1
        return f"{p}_{self.lbl}"
    def start_role(self):
        self.q = deque(); self.nqueued = 0
        self.busy = [False]*4
        self.a.vm = []
        self.pend_flag = None
        self.gates = set()
        self.K = self.cfg["K"]
        self.done_issue = set()
    def queue(self, setup, buf, vset, flags):
        i = self.nqueued; self.nqueued += 1
        for k in range(4):
            self.q.append(("dma", i, k, setup, buf, vset, flags))
        return i
    def queue_ld(self, fn, tag, gate=None):
        self.q.append(("ld", fn, tag, gate))
    def can_issue(self):
        if not self.q: return False
        e = self.q[0]
        if e[0] == "dma": return e[2] > 0 or not self.busy[e[1] % 4]
        return e[3] is None or e[3] in self.gates
    def pump(self, n=1, wait=True):
        a = self.a; done = 0
        while done < n and self.can_issue():
            e = self.q.popleft()
            if e[0] == "dma":
                _, i, k, setup, buf, vset, flags = e
                if k == 0:
                    self.busy[i % 4] = True
                    a(f"s_add_u32 m0, s{sRB}, {(i%4)*4096}")
                    setup()
            if len(a.vm) > self.K - 1:
                if wait: a(f"s_waitcnt vmcnt({self.K-1})"); a.vm = a.vm[len(a.vm)-(self.K-1):]
            if e[0] == "dma":
                a(f"buffer_load_dwordx4 v{vset+k}, {sr(SRD[buf],4)}, s{sD} offen offset:{1024*k} {flags} lds", ("sub", i))
                if k == 3: self.done_issue.add(("sub", i))
            else:
                e[1](); self.done_issue.add(e[2])
            done += 1
        return done
    def fill(self):
        while len(self.a.vm) < self.K and self.can_issue():
            self.pump(1)
    def free(self, i):
        self.busy[i % 4] = False
    def wait_tag(self, tag):
        while tag not in self.done_issue:
            assert self.pump(1), f"{tag} cannot be issued"
        while self.a.has_vm(tag):
            if not self.pump(1): self.a.wait_vm(tag)
    def wait_sub(self, i):
        self.wait_tag(("sub", i))
    def stamp(self, k):
        if not self.cfg.get("stamps"): return
        sel = self.cfg.get("sel")
        if sel is None:
            if k >= 32: return
        elif k not in sel and k > 1: return
        a = self.a
        if len(self.stamp_regs) <= 1 and k != 1: return
        r = self.stamp_regs.pop(0); self.stamped.append((k, r))
        if k == 0 and self.cfg.get("early0"):
            a(f"s_mov_b32 s{r}, s94")
        else:
            a(f"s_memrealtime s[90:91]\ns_waitcnt lgkmcnt(0)\ns_mov_b32 s{r}, s90")
        if k in self.cfg.get("clk", ()):
            r2 = self.stamp_regs.pop(0); self.stamped.append((k + 40, r2))
            a(f"s_memtime s[90:91]\ns_waitcnt lgkmcnt(0)\ns_mov_b32 s{r2}, s90")
        if k == 1:
            a(f"v_mov_b32 v{vX0}, 0")
            for kk, rr in self.stamped:
                a(f"v_writelane_b32 v{vX0}, s{rr}, {kk}")
            a(f"s_lshl_b32 s92, s2, 3\ns_add_u32 s92, s92, s{sW}\ns_lshl_b32 s92, s92, 8\ns_add_u32 s92, s92, {WS_TS}")
            a(f"v_lshlrev_b32 v{vX1}, 2, v{vL}\nbuffer_store_dword v{vX0}, v{vX1}, {sr(SRD['ws'],4)}, s92 offen", "stamp")
    def t_block(self, i, taddr, mf):
        a = self.a; slot = i % 4; F = vF + 16*(i & 1)
        self.wait_sub(i)
        for ks in range(2):
            for ct in range(2):
                for u in range(2):
                    a(f"ds_read_b64_tr_b16 {vr(F + 8*ks + 4*ct + 2*u, 2)}, v{taddr + 2*ct + u} offset:{slot*4096 + ks*2048}")
        k = 0
        for ks in range(2):
            for ct in range(2):
                k += 1
                a(f"s_waitcnt lgkmcnt({8 - 2*k})")
                mf(ks, ct, F + 8*ks + 4*ct)
        self.free(i)
    def n_reads(self, i, dst):
        return [lambda s_=s_: self.a(f"ds_read_b128 {vr(dst+4*s_,4)}, v{vN+s_} offset:{(i%4)*4096}") for s_ in range(4)]
    def t_reads(self, i, taddr, dst):
        return [lambda ks=ks, ct=ct, u=u: self.a(f"ds_read_b64_tr_b16 {vr(dst + 8*ks + 4*ct + 2*u, 2)}, v{taddr + 2*ct + u} offset:{(i%4)*4096 + ks*2048}")
                for ks in range(2) for ct in range(2) for u in range(2)]
    def landed(self, tag):
        while tag not in self.done_issue:
            assert self.pump(1), f"{tag} cannot be issued"
        if self.a.has_vm(tag): self.a.wait_vm(tag)
    def steps(self, subs, reads, mfmas, LA, keep_last=0, pre=None, post=None, first_done=False):
        a = self.a; n = len(subs)
        Fb = lambda t: vF + 16*(t & 1)
        if not first_done:
            self.landed(("sub", subs[0]))
            for r in reads(subs[0], Fb(0)): r()
        for t in range(n):
            if t + 1 < n: self.landed(("sub", subs[t+1]))
            if pre: pre(t)
            a("s_waitcnt lgkmcnt(0)")
            self.free(subs[t])
            if t >= n - keep_last: self.busy[subs[t] % 4] = True
            fill = reads(subs[t+1], Fb(t+1)) if t + 1 < n else []
            npump = max(0, LA - len(a.vm))
            pumps = [lambda: self.pump(1, wait=False)] * npump
            seq = []
            while fill or pumps:
                if fill: seq.append(fill.pop(0))
                if fill and len(fill) >= len(pumps): seq.append(fill.pop(0))
                if pumps: seq.append(pumps.pop(0))
            mf = mfmas(t, Fb(t))
            for k, m in enumerate(mf):
                m()
                lo, hi = len(seq)*k // len(mf), len(seq)*(k+1) // len(mf)
                for f in seq[lo:hi]: f()
            if post: post(t)
    def mfma(self, d, A, B, zero=False):
        self.a(f"v_mfma_f32_32x32x16_bf16 {vr(d,16)}, {vr(A,4)}, {vr(B,4)}, {'0' if zero else vr(d,16)}")
    def pack(self, dst, src, n):
        for k in range(n):
            self.a(f"v_cvt_pk_bf16_f32 v{dst+k}, v{src+2*k}, v{src+2*k+1}")
    def perm_matrix(self, dst):
        a = self.a; t0, t1 = vX0, vX1
        a(f"v_bfe_u32 v{t0}, v{vL}, 2, 1\nv_lshrrev_b32 v{t1}, 5, v{vL}\nv_xor_b32 v{t0}, v{t0}, v{t1}\nv_bfe_u32 v{t1}, v{vL}, 4, 1\nv_or_b32 v{t0}, v{t0}, v{t1}")
        a(f"v_lshlrev_b32 v{t0}, 2, v{t0}\nv_bfe_u32 v{t1}, v{vL}, 3, 1\nv_lshl_add_u32 v{t0}, v{t1}, 1, v{t0}\nv_bfe_u32 v{t1}, v{vL}, 1, 1\nv_add_u32 v{t0}, v{t0}, v{t1}")
        a(f"v_and_b32 v{t1}, 1, v{vL}\nv_lshlrev_b32 v{t1}, 4, v{t1}\nv_mov_b32 v{dst}, 0x3f80\nv_lshlrev_b32 v{t1}, v{t1}, v{dst}")
        for d in range(4):
            a(f"v_cmp_eq_u32 vcc, {d}, v{t0}\nv_cndmask_b32 v{dst+d}, 0, v{t1}, vcc")
    def msum(self, D, PM, R, n, cnt):
        for p in range(n):
            cnt -= 1
            self.a(f"s_waitcnt lgkmcnt({cnt})")
            self.mfma(D, PM, R + 4*p, zero=(p == 0))
        return cnt
    def bar(self, pump=True):
        if pump: self.pump(self.cfg["redpump"], wait=False)
        self.a("s_waitcnt lgkmcnt(0)\ns_barrier")
    def tr_reads(self, i, taddr, dst):
        for r in self.t_reads(i, taddr, dst): r()
    def queue_w(self, wb, g, ch, ng, sRot, pw):
        a = self.a
        def fw():
            a(f"s_add_u32 s{sD}, s{sRot}, {g}\ns_and_b32 s{sD}, s{sD}, {ng-1}\ns_lshl_b32 s{sD}, s{sD}, 18\ns_add_u32 s{sD}, s{sD}, s{pw}")
            if ch: a(f"s_add_u32 s{sD}, s{sD}, 128")
        return self.queue(fw, wb, vD8192, self.cfg["fl_w"])
    def set_flag(self, sFl, n=1, off=0):
        a = self.a
        a(f"v_mov_b32 v{vX0}, 1\ns_mov_b64 exec, 1")
        for hh in range(n):
            a(f"buffer_store_dword v{vX0}, off, {sr(SRD['ws'],4)}, s{sFl} offset:{off + 128*hh} sc1", "flag")
        a("s_mov_b64 exec, -1")
    def flush_flag(self):
        if self.pend_flag is None: return
        tag, sFl, n, off = self.pend_flag
        if self.a.has_vm(tag): self.a.wait_vm(tag)
        self.set_flag(sFl, n, off)
        self.pend_flag = None
    def pick(self, abuf, wbuf, sSel=None, abuf2=None, wbuf2=None):
        a = self.a
        for k in range(3):
            if sSel is None:
                a(f"s_cmp_lt_u32 s{sW}, 4\ns_cselect_b32 s{sG+k}, s{SRD[abuf]+k}, s{SRD[wbuf]+k}")
            else:
                a(f"s_cmp_eq_u32 s{sSel}, 0\ns_cselect_b32 s{sT}, s{SRD[abuf]+k}, s{SRD[abuf2]+k}\ns_cselect_b32 s{sT2}, s{SRD[wbuf]+k}, s{SRD[wbuf2]+k}")
                a(f"s_cmp_lt_u32 s{sW}, 4\ns_cselect_b32 s{sG+k}, s{sT}, s{sT2}")
        a(f"s_mov_b32 s{sG+3}, 0x20000")
    def queue_cg(self, nst, p, first, flags, gate=None):
        a = self.a; l = []
        if gate: self.queue_ld(lambda: None, ("gate", gate), gate)
        for st in range(nst):
            def f(st=st):
                if st == 0: first()
                a(f"s_add_u32 s{sD}, s{p+2}, {st}\ns_and_b32 s{sD}, s{sD}, {nst-1}\ns_lshl_b32 s{sD}, s{sD}, s{p+1}\ns_add_u32 s{sD}, s{sD}, s{p}")
            l.append(self.queue(f, "G", vGa, flags))
        return l
    def cg_addr(self, linear, taddr):
        a = self.a
        a(f"s_and_b32 s{sT}, s{sW}, 3\ns_lshl_b32 s{sT}, s{sT}, 14\ns_lshr_b32 s{sT2}, s{sW}, 2\ns_add_u32 s{sT2}, s{sT2}, 4\ns_lshl_b32 s{sT2}, s{sT2}, 14\ns_sub_u32 s{sT2}, s{sT2}, s{sRB}")
        if linear:
            a(f"v_add_u32 v{vCA}, s{sT}, v{vL16}")
        else:
            a(f"s_sub_u32 s{sT}, s{sT}, s{sRB}")
            for k in range(4): a(f"v_add_u32 v{vCA+k}, s{sT}, v{vN+k}")
        for k in range(4): a(f"v_add_u32 v{vCW+k}, s{sT2}, v{taddr+k}")
    def run_cg(self, subs, linear, ACC, LA, stamp0=None, hooks=None):
        a = self.a; n = len(subs)
        FB = lambda t: vB2 + 48*(t & 1)
        def reads(t):
            F = FB(t); so = (subs[t] % 4)*4096; out = []
            for kk in range(4):
                g, ks = kk >> 1, kk & 1
                out.append(lambda kk=kk: a(f"ds_read_b128 {vr(F+4*kk,4)}, v{vCA if linear else vCA+kk} offset:{so + (1024*kk if linear else 0)}"))
                for ct in range(2):
                    for u in range(2):
                        out.append(lambda g=g, ks=ks, ct=ct, u=u, kk=kk: a(f"ds_read_b64_tr_b16 {vr(F + 16 + 8*kk + 4*ct + 2*u, 2)}, v{vCW + 2*ct + u} offset:{so + g*32768 + ks*2048}"))
            return out
        self.landed(("sub", subs[0])); a("s_barrier")
        r0 = reads(0)
        for k, r in enumerate(r0):
            if k == 12: a("s_waitcnt lgkmcnt(4)")
            r()
        for t in range(n):
            if t + 1 < n: self.landed(("sub", subs[t+1]))
            if hooks and t in hooks: hooks[t]()
            a("s_waitcnt lgkmcnt(0)\ns_barrier")
            self.free(subs[t])
            fill = reads(t+1) if t + 1 < n else []
            pumps = [lambda: self.pump(1, wait=False)] * max(0, LA - len(a.vm))
            seq = pumps[:1] + fill[:5] + pumps[1:2] + fill[5:10] + pumps[2:3] + [lambda: a("s_waitcnt lgkmcnt(5)")] * bool(fill) + fill[10:15] + pumps[3:] + fill[15:]
            F = FB(t)
            mf = [lambda kk=kk, ct=ct: self.mfma(ACC + 16*ct, F + 16 + 8*kk + 4*ct, F + 4*kk, zero=(t == 0 and kk == 0)) for kk in range(4) for ct in range(2)]
            nsp = self.cfg["cgspread"]
            for k, m in enumerate(mf):
                m()
                if k < nsp:
                    for f in seq[len(seq)*k // nsp: len(seq)*(k+1) // nsp]: f()
            if stamp0 is not None: self.stamp(stamp0 + t)
    def queue_attn(self, kb, vb, sUnit, sRot, p, fl, between=None, afterV3=None):
        a = self.a
        a(f"s_lshl_b32 s{p}, s{sUnit}, 18\ns_lshl_b32 s{sT}, s{sW}, 13\ns_add_u32 s{p}, s{p}, s{sT}")
        out = []
        for buf in (kb, vb):
            l = []
            for i in range(4):
                for dh in range(2):
                    def f(i=i, dh=dh):
                        if sRot is None:
                            a(f"s_add_u32 s{sD}, s{p}, {i*65536 + dh*128}")
                        else:
                            a(f"s_add_u32 s{sD}, s{sRot}, {i}\ns_and_b32 s{sD}, s{sD}, 3\ns_lshl_b32 s{sD}, s{sD}, 16\ns_add_u32 s{sD}, s{sD}, s{p}")
                            if dh: a(f"s_add_u32 s{sD}, s{sD}, 128")
                    l.append(self.queue(f, buf, vD256, fl))
                    if buf == vb and i == 1 and dh == 1 and afterV3: afterV3()
            out.append(l)
            if buf == kb and between: between()
        return out
    def row_max(self, S_, m):
        a = self.a; T = vF
        for c in range(4):
            b = S_ + 16*c
            a(f"v_max3_f32 v{T+c}, v{b}, v{b+1}, v{b+2}")
        for k in range(6):
            for c in range(4):
                b = S_ + 16*c + 3 + 2*k
                a(f"v_max3_f32 v{T+c}, v{T+c}, v{b}, v{b+1}")
        a(f"v_max3_f32 v{T}, v{T}, v{S_+15}, v{S_+31}\nv_max3_f32 v{T+1}, v{T+1}, v{S_+47}, v{S_+63}")
        a(f"v_max3_f32 v{T}, v{T}, v{T+2}, v{T+3}\nv_max_f32 v{m}, v{T}, v{T+1}\nv_mov_b32 v{T}, v{m}")
        a(f"v_permlane32_swap_b32 v{m}, v{T}\nv_max_f32 v{m}, v{m}, v{T}")
    def row_exp(self, S_, P, m, l, npump):
        a = self.a; T = vF
        for k in range(0, 64, 8):
            for j in range(8): a(f"v_sub_f32 v{S_+k+j}, v{S_+k+j}, v{m}")
            for j in range(8): a(f"v_exp_f32 v{S_+k+j}, v{S_+k+j}")
            for j in range(8):
                c = j & 3
                if k == 0 and j < 4: continue
                a(f"v_add_f32 v{T+c}, v{S_+c if k == 0 else T+c}, v{S_+k+j}")
            self.pack(P + k//2, S_ + k, 4)
            self.pump(npump*(k//8 + 1)//8 - npump*(k//8)//8, wait=False)
        a(f"v_add_f32 v{T}, v{T}, v{T+1}\nv_add_f32 v{T+2}, v{T+2}, v{T+3}\nv_add_f32 v{l}, v{T}, v{T+2}\nv_mov_b32 v{T}, v{l}")
        a(f"v_permlane32_swap_b32 v{l}, v{T}\nv_add_f32 v{l}, v{l}, v{T}")
    def qk(self, n, ks_, hooks=None):
        a = self.a; piped = n == 2
        def preK(t):
            if t == self.cfg['flagt']: self.flush_flag()
            if hooks and t in hooks: hooks[t]()
        if piped:
            def mfK(t, F):
                ti, dh = t >> 1, t & 1
                return [lambda s_=s_, hh=hh: self.mfma(vB2 + 64*hh + 16*ti, F+4*s_, vB1 + 32*hh + 16*dh + 4*s_, zero=(dh == 0 and s_ == 0))
                        for s_ in range(4) for hh in range(n)]
            self.steps(ks_, self.n_reads, mfK, self.cfg["LAa"], pre=preK, post=lambda t: None if self.cfg.get('qasel') else self.stamp(32 + t))
            return
        for t, i in enumerate(ks_):
            ti, dh = t >> 1, t & 1; F = vF + 16*(i & 1)
            self.wait_sub(i); preK(t); self.stamp(42 + t) if not self.cfg.get('qasel') else None
            for r in self.n_reads(i, F): r()
            for s_ in range(4):
                a(f"s_waitcnt lgkmcnt({3-s_})")
                self.mfma(vB2 + 16*ti, F+4*s_, vB1 + 16*dh + 4*s_, zero=(dh == 0 and s_ == 0))
            self.free(i)
    def attn_rest(self, n, vs_, Sb, Pb, sOunit, sFlag, st, keep=2, after_softmax=None, after_first_barrier=None, urgent=False, after_v=None, before_ack=None):
        a = self.a
        MA = vM + 1 if n == 1 else None
        self.stamp(st[0])
        a(f"v_and_b32 v{vX1}, 31, v{vL}\nv_lshlrev_b32 v{vX1}, 5, v{vX1}\nv_add_u32 v{vX1}, {ML}, v{vX1}\ns_lshl_b32 s{sT}, s{sW}, 2\nv_add_u32 v{vX0}, s{sT}, v{vX1}")
        for hh in range(n):
            self.row_max(Sb + 64*hh, vM + hh)
            a(f"ds_write_b32 v{vX0}, v{vM+hh} offset:{hh*2048}")
        self.bar()
        for hh in range(n):
            a(f"ds_read_b128 {vr(vF+8*hh,4)}, v{vX1} offset:{hh*2048}\nds_read_b128 {vr(vF+8*hh+4,4)}, v{vX1} offset:{hh*2048+16}")
        for hh in range(n):
            b = vF + 8*hh
            a(f"s_waitcnt lgkmcnt({2*(n-1-hh)})")
            a(f"v_max3_f32 v{b}, v{b}, v{b+1}, v{b+2}\nv_max3_f32 v{b+3}, v{b+3}, v{b+4}, v{b+5}\nv_max3_f32 v{b}, v{b}, v{b+6}, v{b+7}\nv_max_f32 v{vM+hh}, v{b}, v{b+3}")
        for hh in range(n):
            self.row_exp(Sb + 64*hh, Pb + 32*hh, vM + hh, vS + hh, self.cfg["smpump"] // n)
            a(f"ds_write_b32 v{vX0}, v{vS+hh} offset:{hh*2048 + 1024}")
        if after_softmax:
            a("s_waitcnt lgkmcnt(0)"); after_softmax()
        self.stamp(st[1])
        if n == 2:
            def mfV(t, F):
                ti, dh = t >> 1, t & 1
                return [lambda ks=ks, ct=ct, hh=hh: self.mfma(vB2 + 64*hh + 16*(2*dh+ct), F + 8*ks + 4*ct, Pb + 32*hh + 8*ti + 4*ks, zero=(ti == 0 and ks == 0))
                        for ks in range(2) for ct in range(2) for hh in range(n)]
            self.steps(vs_, lambda i, F: self.t_reads(i, vT, F), mfV, self.cfg["LAa"], keep_last=keep, post=lambda t: None if self.cfg.get('qasel') else self.stamp(40 + t))
        else:
            a("s_waitcnt lgkmcnt(0)")
            for t, i in enumerate(vs_):
                ti, dh = t >> 1, t & 1
                self.t_block(i, vT, lambda ks, ct, A: self.mfma(vB2 + 16*(2*dh+ct), A, Pb + 8*ti + 4*ks, zero=(ti == 0 and ks == 0)))
                if t >= len(vs_) - keep: self.busy[i % 4] = True
                if st[0] == 11: self.stamp(50 + t)
        self.stamp(st[2])
        if after_v: after_v()
        rs = vs_[-keep] % 4
        so = [rs*4096, ((rs+2) % 4)*4096]
        PM, WA, RA, LA_ = vF, vF + 8, vF + 9, vF + 11
        a(f"v_add_u32 v{WA}, s{sRB}, v{vL16}\ns_lshl_b32 s{sT}, s{sW}, 10\nv_add_u32 v{RA}, s{sT}, v{vL16}\nv_add_u32 v{RA+1}, 0x10000, v{RA}")
        a(f"v_and_b32 v{LA_}, 31, v{vL}\nv_lshlrev_b32 v{LA_}, 5, v{LA_}\nv_add_u32 v{LA_}, {ML + 1024}, v{LA_}")
        self.perm_matrix(PM)
        for hh in range(n):
            self.pack(vB1 + 32*hh, vB2 + 64*hh, 32)
            for f in range(8):
                a(f"ds_write_b128 v{WA}, {vr(vB1+32*hh+4*f,4)} offset:{so[hh] + f*1024}")
            if hh < n - 1: a("s_waitcnt lgkmcnt(6)")
        self.bar()
        for hh in range(n):
            R = vB2 + 64*hh; D = R + 32; Lr = R + 48
            a(f"ds_read_b128 {vr(Lr,4)}, v{LA_} offset:{hh*2048}\nds_read_b128 {vr(Lr+4,4)}, v{LA_} offset:{hh*2048+16}")
            for p in range(8):
                a(f"ds_read_b128 {vr(R+4*p,4)}, v{RA + (p>>2)} offset:{(p&3)*16384 + so[hh]}")
            if hh == 0 and after_first_barrier: after_first_barrier()
            a("s_waitcnt lgkmcnt(8)")
            a(f"v_add_f32 v{Lr}, v{Lr}, v{Lr+1}\nv_add_f32 v{Lr+2}, v{Lr+2}, v{Lr+3}\nv_add_f32 v{Lr+4}, v{Lr+4}, v{Lr+5}\nv_add_f32 v{Lr+6}, v{Lr+6}, v{Lr+7}")
            a(f"v_add_f32 v{Lr}, v{Lr}, v{Lr+2}\nv_add_f32 v{Lr+4}, v{Lr+4}, v{Lr+6}\nv_add_f32 v{Lr}, v{Lr}, v{Lr+4}\nv_rcp_f32 v{Lr}, v{Lr}")
            self.msum(D, PM, R, 8, 8)
        for hh in range(n):
            R = vB2 + 64*hh; D = R + 32; Lr = R + 48
            for j in range(8): a(f"v_mul_f32 v{D+j}, v{Lr}, v{D+j}")
            self.pack(D + 8, D, 4)
            if hh: a(f"s_add_u32 s{sT}, s{sOunit}, 8192")
            a(f"buffer_store_dwordx4 {vr(D+8,4)}, v{RA}, {sr(SRD['ws'],4)}, s{sT if hh else sOunit} offen sc1", ("ostore", hh))
        a("s_barrier")
        for k in range(keep): self.busy[(rs + k) % 4] = False
        self.pend_flag = (("ostore", n-1), sFlag, n, 0)
        if before_ack: before_ack()
        if urgent: self.flush_flag()
        self.fill()
    def queue_wo(self, wb, nsub, head0, sRot, p, sCt, inserts=None):
        a = self.a
        a(f"s_lshl_b32 s{p}, s{sW}, 20\ns_lshl_b32 s{sT}, s{sCt}, 7\ns_add_u32 s{p}, s{p}, s{sT}")
        if head0 is not None: a(f"s_lshl_b32 s{sT}, s{head0}, 18\ns_add_u32 s{p}, s{p}, s{sT}")
        l = []
        for t in range(nsub):
            l.append(self.queue(lambda t=t: a(f"s_add_u32 s{sD}, s{sRot}, {t}\ns_and_b32 s{sD}, s{sD}, {nsub-1}\ns_lshl_b32 s{sD}, s{sD}, 16\ns_add_u32 s{sD}, s{sD}, s{p}"),
                                wb, vD2048, self.cfg["fl_wo"]))
            if inserts and t in inserts: inserts[t]()
        return l
    def queue_o(self, oreg, t, nsub, sRot, sO, name, gate=None):
        a = self.a
        for ks in range(2):
            def f(ks=ks):
                if ks == 0: a(f"s_add_u32 s{sD2}, s{sRot}, {t}\ns_and_b32 s{sD2}, s{sD2}, {nsub-1}\ns_lshl_b32 s{sD2}, s{sD2}, 11\ns_add_u32 s{sD2}, s{sD2}, s{sO}")
                a(f"buffer_load_dwordx4 {vr(oreg(t) + 4*ks, 4)}, v{vL16}, {sr(SRD['ws'],4)}, s{sD2} offen offset:{ks*1024} sc1", (name, t, ks))
            self.queue_ld(f, (name, t, ks), gate or name)
    def touch(self, buf, lg, sOff, dummy):
        self.a(f"v_lshlrev_b32 v{vX0}, {lg}, v{vL}\nbuffer_load_dword v{dummy}, v{vX0}, {sr(SRD[buf],4)}, s{sOff} offen", "touch")
    def queue_touch(self, buf, vaddr_fn, soff_fn, dummy, gate=None):
        a = self.a
        def f():
            v = vaddr_fn(); soff_fn()
            a(f"buffer_load_dword v{dummy}, v{v}, {sr(SRD[buf],4)}, s{sD2} offen", "touch")
        self.queue_ld(f, "touch", gate)
    def flag_lanes(self, v, geo):
        a = self.a; W, NL, NB = geo
        wide = W*NL*NB > 64
        lw = (W // (2 if wide else 1)).bit_length() - 1; ll = NL.bit_length() - 1
        a(f"v_and_b32 v{v}, {(1 << lw) - 1}, v{vL}\nv_lshlrev_b32 v{v}, {3 if wide else 2}, v{v}")
        if NL > 1: a(f"v_bfe_u32 v{vX0 if v != vX0 else vX1}, v{vL}, {lw}, {ll}\nv_lshl_add_u32 v{v}, v{vX0 if v != vX0 else vX1}, 7, v{v}")
        if NB > 1: a(f"v_bfe_u32 v{vX0 if v != vX0 else vX1}, v{vL}, {lw + ll}, 2\nv_lshl_add_u32 v{v}, v{vX0 if v != vX0 else vX1}, 12, v{v}")
        return wide
    def chk_issue(self, v, sOff, geo):
        wide = self.flag_lanes(v + 2, geo)
        self.a(f"buffer_load_dword{'x2' if wide else ''} {vr(v, 2 if wide else 1)}, v{v+2}, {sr(SRD['ws'],4)}, s{sOff} offen sc1", ("chk", v))
        self.chk = (v, sOff, wide)
    def chk_wait(self, nap=None, before_spin=None):
        a = self.a; v, sOff, wide = self.chk
        L = self.newlabel("L_chk"); D = self.newlabel("L_ok")
        if a.has_vm(("chk", v)): a.wait_vm(("chk", v))
        a(f"s_mov_b32 s{sT2}, 0")
        a.fence(); a.label(L)
        if wide: a(f"v_and_b32 v{v}, v{v}, v{v+1}")
        a(f"v_cmp_ne_u32 vcc, 1, v{v}\ns_add_u32 s{sT2}, s{sT2}, 1\ns_nop 2\ns_cbranch_vccz {D}")
        a(f"s_cmp_lt_u32 s{sT2}, {self.cfg['spin']}\ns_cbranch_scc0 {D}\ns_sleep {self.cfg['nap'] if nap is None else nap}")
        a(f"buffer_load_dword{'x2' if wide else ''} {vr(v, 2 if wide else 1)}, v{v+2}, {sr(SRD['ws'],4)}, s{sOff} offen sc1\ns_waitcnt vmcnt(0)\ns_branch {L}")
        a.vm.pop()
        a.label(D)
    def chk_issue_cleared(self, v):
        self.a(f"v_lshlrev_b32 v{v}, 2, v{vL}\nbuffer_load_dword v{v}, v{v}, {sr(SRD['dbg'],4)}, 0 offen sc1", ("chk", v))
    def chk_cleared(self, v):
        a = self.a; D = self.newlabel("L_ok")
        if a.has_vm(("chk", v)): a.wait_vm(("chk", v))
        a(f"v_cmp_gt_u32 vcc, 4, v{v}")
        a.fence()
        a(f"s_cbranch_vccz {D}")
        keep = list(a.vm); self.poll_cleared(); a.vm = keep
        a.label(D)
    def poll_cleared(self):
        a = self.a; L = self.newlabel("L_pollc"); D = self.newlabel("L_pcdone")
        a(f"s_mov_b32 s{sT2}, 0\nv_lshlrev_b32 v{vX0}, 2, v{vL}")
        a.fence()
        a.label(L)
        a(f"buffer_load_dword v{vX1}, v{vX0}, {sr(SRD['dbg'],4)}, 0 offen sc1", "poll")
        a("s_waitcnt vmcnt(0)"); a.vm = []
        a(f"v_cmp_gt_u32 vcc, 4, v{vX1}\ns_add_u32 s{sT2}, s{sT2}, 1\ns_nop 2\ns_cbranch_vccz {D}")
        a(f"s_cmp_lt_u32 s{sT2}, {self.cfg['spin']}\ns_cbranch_scc0 {D}\ns_sleep {self.cfg['nap']}\ns_branch {L}")
        a.label(D)
    def run_oproj(self, subs, oreg, ACC, gate, zero_first, keep_last, hooks=None):
        def pre(t):
            self.wait_tag((gate, t, 1))
            if hooks and t in hooks: hooks[t]()
            if gate == "oa" and self.cfg.get("oasel"): self.stamp(48 + t)
        def mf(t, F):
            return [lambda ks=ks, ct=ct: self.mfma(ACC + 16*ct, F + 8*ks + 4*ct, oreg(t) + 4*ks, zero=(zero_first and t == 0 and ks == 0))
                    for ks in range(2) for ct in range(2)]
        self.steps(subs, lambda i, F: self.t_reads(i, vT, F), mf, self.cfg["LAo"], keep_last=keep_last, pre=pre)
        return subs[-2] % 4
    def out_reduce(self, ACC, rs, TMP, sOutOff=None, add=None, sPart=None):
        a = self.a
        a(f"v_lshrrev_b32 v{vX1}, 5, v{vL}\nv_and_b32 v{vX0}, 31, v{vL}\nv_xor_b32 v{vX0}, v{vX0}, v{vX1}\nv_lshlrev_b32 v{vX0}, 4, v{vX0}")
        a(f"v_lshlrev_b32 v{vX1}, 9, v{vX1}\nv_add3_u32 v{vX0}, v{vX0}, v{vX1}, s{sRB}")
        for i in range(1, 8):
            a(f"v_xor_b32 v{vF+i}, {32*i}, v{vX0}")
        a(f"v_lshrrev_b32 v{vF+8}, 4, v{vL}\ns_lshl_b32 s{sT}, s{sW}, 2\nv_add_u32 v{vF+8}, s{sT}, v{vF+8}\nv_and_b32 v{vF+9}, 15, v{vL}")
        a(f"v_xor_b32 v{vF+10}, v{vF+8}, v{vF+9}\nv_lshlrev_b32 v{vF+10}, 4, v{vF+10}\nv_lshl_add_u32 v{vF+10}, v{vF+9}, 9, v{vF+10}\nv_add_u32 v{vF+11}, 0x10000, v{vF+10}")
        a(f"v_lshlrev_b32 v{vF+8}, 12, v{vF+8}\nv_lshl_add_u32 v{vF+8}, v{vF+9}, 3, v{vF+8}")
        for i in range(8):
            a(f"ds_write_b128 v{vF+i if i else vX0}, {vr(ACC+4*i,4)} offset:{rs*4096 + i*1024}")
        self.bar()
        for p in range(8):
            a(f"ds_read_b128 {vr(TMP+4*p,4)}, v{vF+10 + (p>>2)} offset:{(p&3)*16384 + rs*4096}")
        for p in range(0 if add is not None else 1, 8):
            a(f"s_waitcnt lgkmcnt({7-p})")
            for j in range(4):
                a(f"v_add_f32 v{TMP+j}, v{TMP+j}, v{(TMP+4*p+j) if p else (add+j)}")
        if sPart is not None:
            a(f"buffer_store_dwordx4 {vr(TMP,4)}, v{vL16}, {sr(SRD['ws'],4)}, s{sPart} offen sc1", "pstore")
            a("s_barrier")
            self.busy[rs] = self.busy[rs+1] = False
        else:
            self.pack(TMP + 4, TMP, 2)
            a(f"buffer_store_dwordx2 {vr(TMP+4,2)}, v{vF+8}, {sr(SRD['out'],4)}, s{sOutOff} offen", "out")
    def prologue(self):
        a = self.a
        if self.cfg.get("early0"): a("s_memrealtime s[94:95]")
        a("s_cmp_ge_u32 s2, 256\ns_cbranch_scc1 L_end")
        a(f"s_load_dwordx16 s[{KA}:{KA+15}], s[0:1], 0\ns_load_dwordx8 s[{KA+16}:{KA+23}], s[0:1], 64\ns_load_dwordx2 s[{KA+24}:{KA+25}], s[0:1], 96")
        a(f"v_lshrrev_b32 v1, 6, v0\nv_and_b32 v{vL}, 63, v0\nv_readfirstlane_b32 s{sW}, v1")
        for k in ORDER:
            a(f"s_mov_b32 s{SRD[k]+2}, {SIZE[k]:#x}\ns_mov_b32 s{SRD[k]+3}, 0x20000")
        a(f"s_lshl_b32 s{sRB}, s{sW}, 14\ns_and_b32 s{sX}, s2, 7\ns_bfe_u32 s{sJJ}, s2, 0x40003")
        a(f"v_lshlrev_b32 v{vL16}, 4, v{vL}")
        t0, t1, t2 = vF, vF+1, vF+2
        a(f"v_bfe_u32 v{t0}, v{vL}, 4, 1\nv_lshlrev_b32 v{t0}, 2, v{t0}\nv_lshrrev_b32 v{t1}, 5, v{vL}\nv_or_b32 v{t0}, v{t0}, v{t1}")
        a(f"v_and_b32 v{t1}, 7, v{vL}\nv_xor_b32 v{t0}, v{t0}, v{t1}\nv_lshlrev_b32 v{t0}, 4, v{t0}")
        a(f"v_xor_b32 v{t1}, 32, v{t0}\nv_lshrrev_b32 v{t2}, 3, v{vL}")
        for vs, lg in ((vD2048, 11), (vD8192, 13), (vD256, 8)):
            for i in range(4):
                a(f"v_lshl_add_u32 v{vs+i}, v{t2}, {lg}, v{t1 if i & 1 else t0}")
                if i: a(f"v_add_u32 v{vs+i}, {(8*i << lg) - 1024*i}, v{vs+i}")
    def copy_ptrs(self, names):
        for k in names:
            o = KA + 2*ORDER.index(k)
            self.a(f"s_mov_b32 s{SRD[k]}, s{o}\ns_mov_b32 s{SRD[k]+1}, s{o+1}")
    def read_addrs(self, need_q=True):
        a = self.a; t0, t1, t2, t3 = vF, vF+1, vF+2, vF+3
        a(f"v_bfe_u32 v{t0}, v{vL}, 1, 1\nv_lshlrev_b32 v{t0}, 2, v{t0}\nv_bfe_u32 v{t1}, v{vL}, 2, 2\nv_or_b32 v{t0}, v{t0}, v{t1}")
        a(f"v_lshrrev_b32 v{t1}, 5, v{vL}\nv_xor_b32 v{t0}, v{t0}, v{t1}\nv_lshlrev_b32 v{t0}, 4, v{t0}")
        a(f"v_and_b32 v{t1}, 31, v{vL}\nv_lshl_add_u32 v{t0}, v{t1}, 7, v{t0}\nv_add_u32 v{vN}, s{sRB}, v{t0}")
        for s in range(1, 4): a(f"v_xor_b32 v{vN+s}, {32*s}, v{vN}")
        for base, nat in ((vT, False), (vTq, True))[:2 if need_q else 1]:
            if nat:
                a(f"v_and_b32 v{t0}, 1, v{vL}\nv_bfe_u32 v{t1}, v{vL}, 1, 1")
            else:
                a(f"v_bfe_u32 v{t0}, v{vL}, 1, 1\nv_and_b32 v{t1}, 1, v{vL}")
            a(f"v_bfe_u32 v{t2}, v{vL}, 4, 1\nv_lshl_add_u32 v{t0}, v{t2}, 1, v{t0}")
            a(f"v_bfe_u32 v{t2}, v{vL}, 3, 1\nv_lshlrev_b32 v{t2}, 2, v{t2}\nv_xor_b32 v{t0}, v{t0}, v{t2}")
            a(f"v_lshrrev_b32 v{t2}, 5, v{vL}")
            if nat: a(f"v_lshlrev_b32 v{t3}, 1, v{t2}\nv_xor_b32 v{t0}, v{t0}, v{t3}")
            else:   a(f"v_xor_b32 v{t0}, v{t0}, v{t2}")
            a(f"v_lshlrev_b32 v{t0}, 4, v{t0}\nv_lshl_add_u32 v{t0}, v{t1}, 3, v{t0}")
            a(f"v_bfe_u32 v{t1}, v{vL}, 2, 2\nv_lshl_add_u32 v{t1}, v{t2}, {3 if nat else 2}, v{t1}")
            a(f"v_lshl_add_u32 v{t0}, v{t1}, 7, v{t0}\nv_add_u32 v{base}, s{sRB}, v{t0}")
            ux, ur = (16, 4*128) if nat else (32, 8*128)
            a(f"v_xor_b32 v{base+1}, {ux}, v{base}\nv_add_u32 v{base+1}, {ur}, v{base+1}")
            a(f"v_xor_b32 v{base+2}, 64, v{base}\nv_xor_b32 v{base+3}, 64, v{base+1}")
    def flag_off(self, dst, branch, sB, sH, base=WS_FLAG):
        a = self.a
        a(f"s_lshl_b32 s{dst}, s{sB}, 12\ns_lshl_b32 s{sT}, s{sH}, 7\ns_add_u32 s{dst}, s{dst}, s{sT}\ns_add_u32 s{dst}, s{dst}, {base + branch*32768}")
    def clear_flags(self, offs):
        a = self.a; L = self.newlabel("L_clr")
        a(f"s_cmp_lg_u32 s{sW}, 0\ns_cbranch_scc1 {L}")
        a(f"v_mov_b32 v{vX1}, 0")
        for s_, nl, code in offs:
            a(code or f"v_lshlrev_b32 v{vX0}, 2, v{vL}")
            a(f"s_mov_b64 exec, {(1 << nl) - 1:#x}\nbuffer_store_dword v{vX1}, v{vX0}, {sr(SRD['ws'],4)}, s{s_} offen sc1\ns_mov_b64 exec, -1")
            a.vm.pop()
        a.label(L)
    def signal_cleared(self):
        a = self.a; L = self.newlabel("L_sig")
        a(f"s_cmp_lg_u32 s{sW}, 0\ns_cbranch_scc1 {L}")
        a(f"v_mov_b32 v{vX1}, 1\ns_mov_b64 exec, 1\ns_and_b32 s{sT}, s2, 63\ns_lshl_b32 s{sT}, s{sT}, 2\nbuffer_atomic_add v{vX1}, off, {sr(SRD['dbg'],4)}, s{sT} sc1\ns_mov_b64 exec, -1")
        a.vm.pop()
        a.label(L)
    def role_common_B(self):
        pass
    def oproj_params(self, sBo, sCt, sO_, sF_, sOut, branch):
        a = self.a
        a(f"s_lshr_b32 s{sBo}, s{sJJ}, 1\ns_and_b32 s{sT}, s{sJJ}, 1\ns_lshl_b32 s{sCt}, s{sX}, 1\ns_add_u32 s{sCt}, s{sCt}, s{sT}")
        a(f"s_lshl_b32 s{sO_}, s{sBo}, 18\ns_lshl_b32 s{sT}, s{sW}, 15\ns_add_u32 s{sO_}, s{sO_}, s{sT}")
        a(f"s_lshl_b32 s{sF_}, s{sBo}, 12\ns_lshl_b32 s{sT}, s{sW}, 9\ns_add_u32 s{sF_}, s{sF_}, s{sT}\ns_add_u32 s{sF_}, s{sF_}, {WS_FLAG + branch*32768}")
        a(f"s_lshl_b32 s{sOut}, s{sBo}, 17\ns_lshl_b32 s{sT}, s{sCt}, 7\ns_add_u32 s{sOut}, s{sOut}, s{sT}")
        if branch: a(f"s_add_u32 s{sO_}, s{sO_}, {2 << 20}\ns_add_u32 s{sOut}, s{sOut}, 2048")
    def unit_ids(self):
        a = self.a
        a(f"s_and_b32 s{sT}, s{sJJ}, 3\ns_lshl_b32 s{sHB}, s{sX}, 2\ns_add_u32 s{sHB}, s{sHB}, s{sT}")
        a(f"s_and_b32 s{sT}, s{sJJ}, 2\ns_lshl_b32 s{sT}, s{sT}, 1\ns_lshr_b32 s{sBB}, s{sJJ}, 2\ns_add_u32 s{sBB}, s{sBB}, s{sT}")
    def load_q(self, dst, sQo):
        a = self.a
        a(f"s_add_u32 s{sT}, s{sQo}, 4096")
        for f in range(8):
            a(f"buffer_load_dwordx4 {vr(dst+4*f,4)}, v{vL16}, {sr(SRD['ws'],4)}, s{sT if f >= 4 else sQo} offen offset:{(f&3)*1024} sc1", ("q", f))
    def half_params(self, sBo, sH, sO_, sF_, late):
        a = self.a
        a(f"s_lshr_b32 s{sH}, s{sBo}, 2\ns_lshl_b32 s{sH}, s{sH}, 1")
        if late: a(f"s_xor_b32 s{sH}, s{sH}, 2")
        a(f"s_lshl_b32 s{sT}, s{sH}, 7\ns_add_u32 s{sF_}, s{sF_}, s{sT}\ns_lshl_b32 s{sT}, s{sH}, 13\ns_add_u32 s{sO_}, s{sO_}, s{sT}")
    def lanes2(self, T, lgrow):
        def f():
            self.a(f"v_lshrrev_b32 v{T}, 1, v{vL}\nv_lshlrev_b32 v{T}, {lgrow}, v{T}\nv_and_b32 v{T+1}, 1, v{vL}\nv_lshl_add_u32 v{T}, v{T+1}, 7, v{T}"); return T
        return f
    def lin(self, T, lg):
        def f():
            self.a(f"v_lshlrev_b32 v{T}, {lg}, v{vL}"); return T
        return f
    def part_off(self, sPo, sPf, sB, sCt, sKq, branch):
        a = self.a
        a(f"s_lshl_b32 s{sT}, s{sB}, 4\ns_add_u32 s{sT}, s{sT}, s{sCt}\ns_lshl_b32 s{sPf}, s{sT}, 7\ns_lshl_b32 s{sT}, s{sT}, 3\ns_add_u32 s{sT}, s{sT}, s{sKq}")
        a(f"s_lshl_b32 s{sPo}, s{sT}, 12\ns_add_u32 s{sPo}, s{sPo}, {WS_P + branch*(4 << 20)}\ns_lshl_b32 s{sT}, s{sKq}, 2\ns_add_u32 s{sPf}, s{sPf}, s{sT}\ns_add_u32 s{sPf}, s{sPf}, {WS_PFLAG + branch*16384}")
    def move4(self, op, reg, sOff, tag):
        for f in range(4):
            self.a(f"buffer_{op}_dwordx4 {vr(reg+4*f,4)}, v{vL16}, {sr(SRD['ws'],4)}, s{sOff} offen offset:{f*1024} sc1", tag)
    def unpack(self, dst, src, n):
        a = self.a
        a(f"s_mov_b32 s{sT2}, 0xffff0000")
        for k in range(n):
            a(f"v_lshlrev_b32 v{dst+2*k}, 16, v{src+k}\nv_and_b32 v{dst+2*k+1}, s{sT2}, v{src+k}")
    def fetch_q(self, sQo, nk):
        a = self.a
        a(f"s_lshl_b32 s{sT}, s{sW}, {10 + nk - 1}\ns_add_u32 s{sT2}, s{sT}, {QX}\ns_add_u32 s{sT}, s{sT}, s{sQo}\ns_mov_b32 s{sT3}, m0\ns_mov_b32 m0, s{sT2}")
        for k in range(nk):
            a(f"buffer_load_dwordx4 v{vL16}, {sr(SRD['ws'],4)}, s{sT} offen offset:{1024*k} sc1 lds", "qdma")
        a(f"s_mov_b32 m0, s{sT3}")
    def read_q(self, dst, nf):
        a = self.a
        if a.has_vm("qdma"): a.wait_vm("qdma")
        a(f"v_add_u32 v{vX0}, {QX}, v{vL16}\ns_barrier")
        for f in range(nf):
            if f == 12: a("s_waitcnt lgkmcnt(4)")
            a(f"ds_read_b128 {vr(dst+4*f,4)}, v{vX0} offset:{f*1024}")
    def role_S(self):
        a = self.a; c = self.cfg
        self.start_role()
        self.stamp_regs = list(range(24, 28)) + list(range(85, 89)) + [100, 101, 95] + list(range(12, 20)) + list(range(8, 12)) + list(range(28, 32)) + list(range(20, 24)) + list(range(40, 44)); self.stamped = []
        P = sP
        self.unit_ids()
        a("s_waitcnt lgkmcnt(0)")
        self.copy_ptrs(ORDER)
        (sU1, sU2, sO1, sO2, sF1, sF2, sB2, sQo, sQf, sBo, sCt, sOC, sFC, sOut, sH2, sPo, sPf, p1, p2, pwo, sRot) = range(P, P + 21)
        T2, D2 = vTq, vTq + 2
        self.K = c["K0"]
        for names, touch in ((("xA", "xB"), c["touchX"]), (("wqA", "wqB"), c["touchWA"])):
            if not touch: continue
            a(f"s_cmp_lt_u32 s{sX}, 4")
            for k in range(3): a(f"s_cselect_b32 s{sG+k}, s{SRD[names[0]]+k}, s{SRD[names[1]]+k}")
            a(f"s_mov_b32 s{sG+3}, 0x20000")
            if names[0] == "xA":
                a(f"s_lshl_b32 s{sD2}, s{sJJ}, 15\ns_lshl_b32 s{sT}, s{sW}, 12\ns_add_u32 s{sD2}, s{sD2}, s{sT}")
                self.queue_touch("G", self.lin(T2, 6), lambda: None, D2)
            else:
                a(f"s_and_b32 s{sT}, s{sJJ}, 7\ns_lshl_b32 s{sT2}, s{sT}, 2\ns_and_b32 s{sT3}, s{sJJ}, 8\ns_lshl_b32 s{sT3}, s{sT3}, 1\ns_add_u32 s{sT2}, s{sT2}, s{sT3}\ns_and_b32 s{sT3}, s{sX}, 1\ns_lshl_b32 s{sT3}, s{sT3}, 1\ns_add_u32 s{sT2}, s{sT2}, s{sT3}")
                a(f"s_add_u32 s{sT2}, s{sT2}, s{sW}\ns_add_u32 s{sT2}, s{sT2}, 8\ns_and_b32 s{sT2}, s{sT2}, 31\ns_lshl_b32 s{sD2}, s{sT2}, 18\ns_and_b32 s{sT3}, s{sX}, 3\ns_lshl_b32 s{sT3}, s{sT3}, 3\ns_add_u32 s{sT}, s{sT}, s{sT3}\ns_lshl_b32 s{sT}, s{sT}, 8\ns_add_u32 s{sD2}, s{sD2}, s{sT}")
                self.queue_touch("G", self.lanes2(T2, 13), lambda: None, D2)
            self.pump(1)
        a(f"s_lshl_b32 s{sU1}, s{sBB}, 5\ns_add_u32 s{sU1}, s{sU1}, s{sHB}\ns_xor_b32 s{sU2}, s{sU1}, 128\ns_xor_b32 s{sB2}, s{sBB}, 4")
        a1 = self.queue_attn("kB", "vB", sU1, None, p1, c["fl_kvB"])
        self.fill()
        self.flag_off(sF1, 1, sBB, sHB); self.flag_off(sF2, 1, sB2, sHB)
        self.clear_flags([(sF1, 8, None), (sF2, 8, None)])
        self.stamp(0)
        self.read_addrs(need_q=False)
        self.flag_off(sQf, 1, sBB, sHB, WS_QFLAG)
        a(f"s_lshl_b32 s{sO1}, s{sU1}, 13\ns_add_u32 s{sQo}, s{sO1}, {WS_Q + (2 << 20)}\ns_add_u32 s{sO1}, s{sO1}, {WS_O + (2 << 20)}\ns_xor_b32 s{sO2}, s{sO1}, {1 << 20}")
        a(f"s_lshl_b32 s{sT}, s{sW}, 2\ns_add_u32 s{sF1}, s{sF1}, s{sT}\ns_add_u32 s{sF2}, s{sF2}, s{sT}")
        a2 = self.queue_attn("kB", "vB", sU2, None, p2, c["fl_kvB"])
        self.oproj_params(sBo, sCt, sOC, sFC, sOut, 1)
        self.half_params(sBo, sH2, sOC, sFC, True)
        a(f"s_lshl_b32 s{sPf}, s2, 7\ns_lshl_b32 s{sT}, s{sW}, 2\ns_add_u32 s{sPf}, s{sPf}, s{sT}\ns_add_u32 s{sPf}, s{sPf}, {WS_PFLAG + 16384}")
        a(f"s_lshl_b32 s{sPo}, s2, 3\ns_add_u32 s{sPo}, s{sPo}, s{sW}\ns_lshl_b32 s{sPo}, s{sPo}, 10\ns_add_u32 s{sPo}, s{sPo}, {WS_P + (4 << 20)}")
        a(f"s_and_b32 s{sT}, s{sCt}, 1\ns_lshl_b32 s{sT}, s{sT}, 2\ns_add_u32 s{sRot}, s{sBo}, s{sT}")
        wB2 = self.queue_wo("woB", 8, sH2, sRot, pwo, sCt)
        oregC = lambda t: (vB1 + 32 + 8*t) if t < 4 else (vF + 8*(t-4))
        for t in range(8): self.queue_o(oregC, t, 8, sRot, sOC, "oc")
        CK = vD8192 + 1
        for t, i in enumerate(a1[0]):
            self.wait_sub(i); self.stamp(34 + t)
            if t == 0: self.signal_cleared()
            if t == c["K0n"]: self.K = c["K"]
            if t == 4: self.chk_issue_cleared(CK)
            if t == 6: self.chk_cleared(CK)
            if t == 7: self.chk_issue(CK, sQf, (2, 1, 1))
            for r in self.n_reads(i, vB2 + 16*t): r()
            a("s_waitcnt lgkmcnt(0)")
            self.free(i)
        self.stamp(16)
        self.chk_wait(nap=c["napq"])
        self.stamp(17)
        self.fetch_q(sQo, 1); self.read_q(vF, 8)
        for t in range(8):
            ti, dh = t >> 1, t & 1
            for s_ in range(4):
                if t < 2: a(f"s_waitcnt lgkmcnt({7 - 4*dh - s_})")
                self.mfma(vB1 + 16*ti, vB2 + 16*t + 4*s_, vF + 16*dh + 4*s_, zero=(dh == 0 and s_ == 0))
            if t >= 1: self.pump(1, wait=False)
        def chkq2():
            a(f"s_xor_b32 s{sQf}, s{sQf}, 16384\ns_xor_b32 s{sQo}, s{sQo}, {1 << 20}")
            self.chk_issue(CK, sQf, (2, 1, 1))
        def loadq2():
            self.chk_wait(); self.fetch_q(sQo, 1)
        self.attn_rest(1, a1[1], vB1, vB2 + 64, sO1, sF1, (7, 8, 9), after_softmax=chkq2, after_first_barrier=loadq2)
        self.stamp(10)
        self.read_q(vB1, 8); a("s_waitcnt lgkmcnt(0)")
        self.qk(1, a2[0])
        W = vB2; ACC = vB1
        wreg = lambda t: vB2 + 16*((t + 4) % 8)
        def grab(t):
            self.tr_reads(wB2[t], vT, wreg(t)); a("s_waitcnt lgkmcnt(0)"); self.free(wB2[t])
        def early():
            self.pump(8, wait=False)
            for t in range(c["earlyW"]):
                self.landed(("sub", wB2[t])); grab(t); self.pump(4, wait=False)
        self.attn_rest(1, a2[1], vB2, vB1, sO2, sF2, (11, 12, 13), urgent=True, before_ack=early if c["earlyW"] else None)
        self.stamp(14)
        self.K = c["Khit"]
        for t, i in enumerate(wB2):
            if t < c["earlyW"]: continue
            self.wait_sub(i)
            if t == 2: self.chk_issue(CK, sPf, (1, 1, 1))
            if t == c["pbt"]:
                self.chk_wait(nap=c["napq"])
                a(f"buffer_load_dwordx4 {vr(vM,4)}, v{vL16}, {sr(SRD['ws'],4)}, s{sPo} offen sc1", "pb")
            grab(t)
        self.chk_issue(CK, sFC, (8, 2, 1))
        self.stamp(15)
        self.chk_wait(nap=c["naptail"])
        self.stamp(18)
        self.gates.add("oc"); self.K = c["Ktail"]
        for t in range(8):
            for ks in range(2):
                self.wait_tag(("oc", t, ks))
                for ct in range(2):
                    self.mfma(ACC + 16*ct, wreg(t) + 8*ks + 4*ct, oregC(t) + 4*ks, zero=(t == 0 and ks == 0))
        self.out_reduce(ACC, 0, vB2, sOut, add=vM)
        self.stamp(1)
        a("s_endpgm")
        a.reset_keep_t()
    def role_G(self):
        a = self.a; c = self.cfg
        self.start_role()
        self.stamp_regs = list(range(32, 40)) + [100, 101, 95] + list(range(84, 89)); self.stamped = []
        P = sP
        (sBr, sHq, sBh, sBA, sHA, sRotK, sUA, sOa, sFa, sQo, sQf, sCq, pg, pg1, pg2, paa, sA, sB_, sC, sE) = range(P, P + 20)
        a("s_waitcnt lgkmcnt(0)")
        self.copy_ptrs(ORDER)
        a(f"s_lshr_b32 s{sBr}, s{sX}, 2\ns_and_b32 s{sT}, s{sJJ}, 7\ns_and_b32 s{sHq}, s{sX}, 3\ns_lshl_b32 s{sHq}, s{sHq}, 3\ns_add_u32 s{sHq}, s{sHq}, s{sT}\ns_lshr_b32 s{sBh}, s{sJJ}, 3")
        a(f"s_lshl_b32 s{pg2}, s{sT}, 1\ns_lshl_b32 s{sT}, s{sBh}, 3\ns_add_u32 s{pg2}, s{pg2}, s{sT}\ns_and_b32 s{sT}, s{sX}, 1\ns_add_u32 s{pg2}, s{pg2}, s{sT}")
        a(f"s_lshl_b32 s{sT}, s{sBh}, 2\ns_add_u32 s{sT}, s{sT}, s{sW}\ns_lshl_b32 s{sT}, s{sT}, 16")
        a(f"s_bfe_u32 s{sT2}, s{sW}, 0x10001\ns_lshl_b32 s{sT2}, s{sT2}, 18\ns_and_b32 s{sT3}, s{sW}, 1\ns_lshl_b32 s{sT3}, s{sT3}, 7\ns_add_u32 s{sT2}, s{sT2}, s{sT3}\ns_lshl_b32 s{sT3}, s{sHq}, 8\ns_add_u32 s{sT2}, s{sT2}, s{sT3}")
        a(f"s_cmp_lt_u32 s{sW}, 4\ns_cselect_b32 s{pg}, s{sT}, s{sT2}\ns_cselect_b32 s{pg1}, 7, 19\ns_cselect_b64 vcc, -1, 0")
        for k in range(4): a(f"v_cndmask_b32 v{vGa+k}, v{vD8192+k}, v{vD2048+k}, vcc")
        qs = self.queue_cg(16, pg, lambda: self.pick("xA", "wqA", sBr, "xB", "wqB"), c["fl_w"])
        self.K = 16
        for k in range(c["KG0"] // 4):
            if k and c["barfill"]: a("s_barrier")
            self.pump(4, wait=False)
        a(f"s_and_b32 s{sT3}, s{sX}, 1\ns_lshl_b32 s{sBA}, s{sT3}, 2\ns_lshr_b32 s{sT}, s{sJJ}, 2\ns_add_u32 s{sBA}, s{sBA}, s{sT}")
        a(f"s_and_b32 s{sRotK}, s{sJJ}, 3\ns_lshr_b32 s{sT2}, s{sX}, 1\ns_lshl_b32 s{sHA}, s{sT2}, 3\ns_lshl_b32 s{sT}, s{sRotK}, 1\ns_add_u32 s{sHA}, s{sHA}, s{sT}")
        a(f"s_lshl_b32 s{sUA}, s{sBA}, 2\ns_add_u32 s{sUA}, s{sUA}, s{sT2}\ns_and_b32 s{sCq}, s{sJJ}, 7")
        self.flag_off(sFa, 0, sBA, sHA)
        a(f"s_lshl_b32 s{sA}, s{sBr}, 3\ns_lshl_b32 s{sT}, s{sBh}, 2\ns_add_u32 s{sA}, s{sA}, s{sT}")
        self.flag_off(sQf, 0, sA, sHq, WS_QFLAG)
        a(f"s_lshl_b32 s{sA}, s{sBh}, 13\ns_lshl_b32 s{sT}, s{sCq}, 8\ns_add_u32 s{sA}, s{sA}, s{sT}\ns_lshl_b32 s{sT}, s{sX}, 2\ns_add_u32 s{sA}, s{sA}, s{sT}\ns_add_u32 s{sA}, s{sA}, {WS_PFLAG}")
        a(f"s_and_b32 s{sB_}, s2, 127\ns_lshl_b32 s{sB_}, s{sB_}, 7\ns_add_u32 s{sB_}, s{sB_}, {WS_PFLAG + 16384}")
        self.clear_flags([(sFa, 16, f"v_lshrrev_b32 v{vX0}, 3, v{vL}\nv_lshlrev_b32 v{vX0}, 7, v{vX0}\nv_and_b32 v{vF}, 7, v{vL}\nv_lshl_add_u32 v{vX0}, v{vF}, 2, v{vX0}"),
                          (sQf, 8, f"v_lshrrev_b32 v{vX0}, 1, v{vL}\nv_lshlrev_b32 v{vX0}, 12, v{vX0}\nv_and_b32 v{vF}, 1, v{vL}\nv_lshl_add_u32 v{vX0}, v{vF}, 2, v{vX0}"),
                          (sA, 8, f"v_bfe_u32 v{vF}, v{vL}, 1, 2\nv_lshlrev_b32 v{vX0}, 11, v{vF}\nv_and_b32 v{vF}, 1, v{vL}\nv_lshl_add_u32 v{vX0}, v{vF}, 7, v{vX0}"),
                          (sB_, 8, None)])
        self.stamp(0)
        self.read_addrs()
        self.cg_addr(False, vTq)
        a(f"s_lshl_b32 s{sOa}, s{sBA}, 5\ns_add_u32 s{sOa}, s{sOa}, s{sHA}\ns_lshl_b32 s{sOa}, s{sOa}, 13")
        a(f"s_lshl_b32 s{sT}, s{sW}, 2\ns_add_u32 s{sFa}, s{sFa}, s{sT}")
        a(f"s_and_b32 s{sT}, s{sW}, 3\ns_lshl_b32 s{sT2}, s{sT}, 12\ns_add_u32 s{sQf}, s{sQf}, s{sT2}\ns_lshr_b32 s{sT3}, s{sW}, 2\ns_lshl_b32 s{sT2}, s{sT3}, 2\ns_add_u32 s{sQf}, s{sQf}, s{sT2}")
        a(f"s_lshl_b32 s{sQo}, s{sBr}, 3\ns_lshl_b32 s{sT2}, s{sBh}, 2\ns_add_u32 s{sQo}, s{sQo}, s{sT2}\ns_add_u32 s{sQo}, s{sQo}, s{sT}\ns_lshl_b32 s{sQo}, s{sQo}, 5\ns_add_u32 s{sQo}, s{sQo}, s{sHq}\ns_lshl_b32 s{sQo}, s{sQo}, 1\ns_add_u32 s{sQo}, s{sQo}, s{sT3}\ns_lshl_b32 s{sQo}, s{sQo}, 12\ns_add_u32 s{sQo}, s{sQo}, {WS_Q}")
        a(f"s_mov_b32 s{sBr}, s{sBh}")
        self.queue_ld(lambda: None, ("gate", "ka"), "ka")
        aa = self.queue_attn("kA", "vA", sUA, sRotK, paa, c["fl_kvA"])
        CK = vD8192 + 1
        ACC = vB1
        self.run_cg(qs, False, ACC, c["LAq"], stamp0=32 if c.get("qasel") else None,
                    hooks={0: self.signal_cleared, 9: lambda: self.chk_issue_cleared(CK), 13: lambda: self.chk_cleared(CK)})
        self.stamp(20)
        a(f"s_mov_b32 s{sT3}, {f2u(SCALE):#x}")
        for f in range(4):
            for j in range(8): a(f"v_mul_f32 v{ACC+8*f+j}, s{sT3}, v{ACC+8*f+j}")
            self.pack(ACC + 32 + 4*f, ACC + 8*f, 4)
            a(f"buffer_store_dwordx4 {vr(ACC+32+4*f,4)}, v{vL16}, {sr(SRD['ws'],4)}, s{sQo} offen offset:{f*1024} sc1", "qstore")
        self.gates.add("ka")
        self.pump(c["preA0"], wait=False)
        a.wait_vm("qstore"); self.set_flag(sQf)
        self.stamp(22)
        self.K = c["Khit"]
        self.pump(c["preA"])
        self.flag_off(sQf, 0, sBA, sHA, WS_QFLAG)
        self.chk_issue(CK, sQf, (2, 2, 1)); self.pump(c["preA2"]); self.chk_wait(nap=c["napq"])
        self.stamp(7)
        a(f"s_add_u32 s{sQo}, s{sOa}, {WS_Q}")
        self.fetch_q(sQo, 2)
        self.pump(c["preA3"], wait=False)
        sPo, sPf, sFl, sFb, sBo, sCt, sPo2, sPf2, sOut = sQo, sQf, sHq, sBh, sA, sB_, sC, sE, sBA
        def og_first(branch):
            def f():
                self.pick("ws", "woB" if branch else "woA")
                a(f"s_lshl_b32 s{sT3}, s{sX}, 2")
                if branch: a(f"s_lshl_b32 s{sT}, s{sBr}, 1\ns_add_u32 s{sT3}, s{sT3}, s{sT}")
                a(f"s_lshl_b32 s{sT}, s{sBr}, 2\ns_add_u32 s{sT}, s{sT}, s{sW}\ns_lshl_b32 s{sT}, s{sT}, 5\ns_add_u32 s{sT}, s{sT}, s{sT3}\ns_lshl_b32 s{sT}, s{sT}, 13\ns_add_u32 s{sT}, s{sT}, {WS_O + branch*(2 << 20)}")
                a(f"s_lshl_b32 s{sT3}, s{sT3}, 18\ns_bfe_u32 s{sT2}, s{sW}, 0x10001\ns_lshl_b32 s{sT2}, s{sT2}, 16\ns_add_u32 s{sT3}, s{sT3}, s{sT2}\ns_and_b32 s{sT2}, s{sW}, 1\ns_lshl_b32 s{sT2}, s{sT2}, 7\ns_add_u32 s{sT3}, s{sT3}, s{sT2}\ns_lshl_b32 s{sT2}, s{sCq}, 8\ns_add_u32 s{sT3}, s{sT3}, s{sT2}")
                a(f"s_lshl_b32 s{pg2}, s{sBr}, 2\ns_add_u32 s{pg2}, s{pg2}, s{sCq}\ns_cmp_lt_u32 s{sW}, 4\ns_cselect_b32 s{pg}, s{sT}, s{sT3}\ns_cselect_b32 s{pg1}, 12, 17\ns_cselect_b64 vcc, -1, 0")
                for k in range(4): a(f"v_cndmask_b32 v{vGa+k}, v{vD2048+k}, v{vL16}, vcc")
            return f
        sBo1, sCt1, sO1, sF1, sH1, sRot, pw, sPb, sPbf = sA, sB_, sC, sE, sBA, sHA, sUA, 6, 7
        self.oproj_params(sBo1, sCt1, sO1, sF1, sPb, 1)
        self.half_params(sBo1, sH1, sO1, sF1, False)
        a(f"s_and_b32 s{sT}, s{sCt1}, 1\ns_lshl_b32 s{sT}, s{sT}, 2\ns_add_u32 s{sRot}, s{sBo1}, s{sT}")
        a(f"s_and_b32 s{sPb}, s2, 127\ns_lshl_b32 s{sPbf}, s{sPb}, 7\ns_lshl_b32 s{sT}, s{sW}, 2\ns_add_u32 s{sPbf}, s{sPbf}, s{sT}\ns_add_u32 s{sPbf}, s{sPbf}, {WS_PFLAG + 16384}")
        a(f"s_lshl_b32 s{sPb}, s{sPb}, 3\ns_add_u32 s{sPb}, s{sPb}, s{sW}\ns_lshl_b32 s{sPb}, s{sPb}, 10\ns_add_u32 s{sPb}, s{sPb}, {WS_P + (4 << 20)}")
        oregB = lambda t: vB2 + 8*t
        T2, D2 = vTq, vTq + 2
        if c["touchOB"]:
            self.queue_touch("ws", self.lin(T2, 7), lambda: a(f"s_and_b32 s{sD2}, s{sCt1}, 1\ns_lshl_b32 s{sD2}, s{sD2}, 13\ns_add_u32 s{sD2}, s{sD2}, s{sO1}"), D2, gate="tob")
        wB1 = self.queue_wo("woB", 8, sH1, sRot, pw, sCt1, {c["aheadB"]-1: lambda: [self.queue_o(oregB, t, 8, sRot, sO1, "ob") for t in range(8)]})
        oa = self.queue_cg(8, pg, og_first(0), "sc1", gate="oa")
        a(f"s_lshl_b32 s{sFl}, s{sBr}, 14\ns_lshl_b32 s{sT}, s{sX}, 9\ns_add_u32 s{sFl}, s{sFl}, s{sT}\ns_add_u32 s{sFl}, s{sFl}, {WS_FLAG}")
        self.read_q(vB1, 16); a("s_waitcnt lgkmcnt(0)")
        self.stamp(5)
        self.qk(2, aa[0])
        def afb():
            if c["touchOB"]:
                self.chk_wait(); self.gates.add("tob"); self.pump(1, wait=False)
        self.attn_rest(2, aa[1], vB2, vB1, sOa, sFa, (2, 3, 4), keep=4, after_v=lambda: self.chk_issue(CK, sF1, (8, 2, 1)), after_first_barrier=afb, urgent=c["urgA"])
        self.stamp(6)
        if not c["touchOB"]: self.chk_wait()
        self.gates.add("ob")
        self.pump(c["ob0"], wait=False)
        self.stamp(14)
        rs = self.run_oproj(wB1, oregB, ACC, "ob", True, 2, hooks={0: self.flush_flag, 5: lambda: self.chk_issue(CK, sFl, (8, 4, 4))})
        self.stamp(13)
        self.chk_wait(); self.gates.add("oa")
        self.out_reduce(ACC, rs, vB2, sPart=sPb)
        self.pend_flag = ("pstore", sPbf, 1, 0)
        self.cg_addr(True, vT)
        self.K = 16; self.pump(c["og0"], wait=False)
        a(f"s_lshl_b32 s{sBo}, s{sBr}, 2\ns_and_b32 s{sT}, s{sW}, 3\ns_add_u32 s{sBo}, s{sBo}, s{sT}\ns_lshl_b32 s{sCt}, s{sCq}, 1\ns_lshr_b32 s{sT}, s{sW}, 2\ns_add_u32 s{sCt}, s{sCt}, s{sT}")
        self.part_off(sPo, sPf, sBo, sCt, sX, 0)
        ACC2 = vB1 + 32
        self.run_cg(oa, True, ACC2, c["LAo"], hooks={0: self.flush_flag})
        self.pack(vF + 16, ACC2, 16)
        self.move4("store", vF + 16, sPo, "pst")
        self.stamp(15)
        a(f"s_lshr_b32 s{sBo}, s{sJJ}, 1\ns_and_b32 s{sT}, s{sJJ}, 1\ns_lshl_b32 s{sCt}, s{sX}, 1\ns_add_u32 s{sCt}, s{sCt}, s{sT}")
        a(f"s_lshl_b32 s{sOut}, s{sBo}, 17\ns_lshl_b32 s{sT}, s{sCt}, 7\ns_add_u32 s{sOut}, s{sOut}, s{sT}")
        self.part_off(sPo2, sPf2, sBo, sCt, sW, 0)
        a.wait_vm("pst"); self.set_flag(sPf)
        self.chk_issue(CK, sPf2, (1, 1, 1)); self.chk_wait(nap=c["napq"])
        self.stamp(12)
        self.move4("load", vB1 + 32, sPo2, "pa")
        a.wait_vm("pa")
        self.unpack(ACC, vB1 + 32, 16)
        self.out_reduce(ACC, 0, vB2, sOut)
        self.stamp(1)
        a("s_endpgm")
        a.reset_keep_t()
    def build(self):
        a = self.a
        self.prologue()
        a("s_cmp_ge_u32 s2, 128\ns_cbranch_scc1 L_roleG")
        sv = (a.t, dict(a.valu_w), dict(a.valu_sw))
        self.role_S()
        a.label("L_roleG")
        a.nop(2)
        self.role_G()
        a.label("L_end")
        a("s_endpgm")
        body = a.text()
        return (HDR + f"; @launch grid=(256,1,1) block=(512,1,1) lds=163840\n"
                + '.amdgcn_target "amdgcn-amd-amdhsa--gfx950"\n.text\n'
                + f".globl {NAME}_kernel\n.p2align 8\n.type {NAME}_kernel,@function\n{NAME}_kernel:\n" + body
                + f""".section .rodata,"a"
.p2align 6
.amdhsa_kernel {NAME}_kernel
  .amdhsa_next_free_vgpr 256
  .amdhsa_next_free_sgpr 102
  .amdhsa_accum_offset 256
  .amdhsa_group_segment_fixed_size 0
  .amdhsa_kernarg_size 104
  .amdhsa_user_sgpr_count 2
  .amdhsa_user_sgpr_kernarg_segment_ptr 1
  .amdhsa_system_sgpr_workgroup_id_x 1
.end_amdhsa_kernel
""")

DEFAULT = dict(preA2=0, preA3=0, earlyW=2, ob0=0, touchOB=0, barfill=1, pbt=6, og0=12, oaI=1, rotO=1, touchX=1, nap=8, naptail=2, napq=4, rotQ=3, cgspread=5, holdS=0, gateKA=1, preA0=4, KG0=16, preA=12, urgA=True, gateW=None, aheadB=4, gateWA=1, K0=4, K0n=3, Khit=6, prepoll=0, touchWA=1, touchWB=1, touchO=1, pipe1=False, LAq=8, LAa=6, LAb=6, LAo=8, touchK=None, touchV=0, touchW=1, flagt=0, redpump=2, K=4, Ktail=6, smpump=8, fl_x="", fl_w="", fl_wo="", fl_kvA="", fl_kvB="nt", oproj=True, stamps=False, spin=20000)
def make(**kw):
    c = dict(DEFAULT); c.update(kw)
    return Gen(c).build()
if __name__ == "__main__":
    out = sys.argv[1] if len(sys.argv) > 1 else "cdna_kernels/" + NAME + ".s"
    kw = eval("dict(" + (sys.argv[2] if len(sys.argv) > 2 else "") + ")")
    open(out, "w").write(make(**kw))
```

```python
import sys, math
from collections import deque
from asmlib import Asm, vr, sr

NAME = "concat_heads__gqa_block_cached__mha_block_cached__near_ridge"
HDR = open("cdna_kernels/" + NAME + ".s.ref").read().split("; Override launch")[0]

SRD = dict(G=96, xA=8, kA=12, vA=16, wqA=20, woA=24, xB=28, kB=32, vB=36, wqB=40, woB=44, out=48, dbg=52, ws=56)
SIZE = dict(xA=1<<19, kA=1<<23, vA=1<<23, wqA=1<<23, woA=1<<23, xB=1<<19, kB=1<<26, vB=1<<26, wqB=1<<23, woB=1<<23,
            out=1<<20, dbg=256, ws=1<<28)
ORDER = ["xA", "kA", "vA", "wqA", "woA", "xB", "kB", "vB", "wqB", "woB", "out", "dbg", "ws"]
sW = 3; sRB = 60; sT = 61; sT2 = 62; sT3 = 63; sD = 93; sD2 = 89; sG = 96
sX = 4; sJJ = 5; sBB = 6; sHB = 7
KA = 64
sP = 64
vL = 0
vD256 = 1; vD2048 = 5; vD8192 = 9
vN = 13
vT = 17; vTq = 21
vL16 = 25
vM = 26; vS = 28
vF = 30
vB1 = 62
vB2 = 126
vX0 = 254; vX1 = 255
vGa = vB2 + 96; vCA = vB2 + 100; vCW = vB2 + 104
SPARE = 131072
QX = SPARE
ML = SPARE + 16384
WS_O = 0
WS_Q = 4 << 20
WS_TS = 8 << 20
WS_FLAG = 10 << 20
WS_QFLAG = WS_FLAG + 65536
WS_PFLAG = WS_FLAG + 131072
WS_P = 16 << 20
SCALE = math.log2(math.e) / math.sqrt(128.0)

def f2u(x):
    import struct
    return struct.unpack("<I", struct.pack("<f", x))[0]

class Gen:
    def __init__(self, cfg):
        self.cfg = cfg
        self.a = Asm()
        self.lbl = 0
    def newlabel(self, p="L"):
        self.lbl += 1
        return f"{p}_{self.lbl}"
    def start_role(self):
        self.q = deque(); self.nqueued = 0
        self.busy = [False]*4
        self.a.vm = []
        self.pend_flag = None
        self.gates = set()
        self.K = self.cfg["K"]
        self.done_issue = set()
    def queue(self, setup, buf, vset, flags):
        i = self.nqueued; self.nqueued += 1
        for k in range(4):
            self.q.append(("dma", i, k, setup, buf, vset, flags))
        return i
    def queue_ld(self, fn, tag, gate=None):
        self.q.append(("ld", fn, tag, gate))
    def can_issue(self):
        if not self.q: return False
        e = self.q[0]
        if e[0] == "dma": return e[2] > 0 or not self.busy[e[1] % 4]
        return e[3] is None or e[3] in self.gates
    def pump(self, n=1, wait=True):
        a = self.a; done = 0
        while done < n and self.can_issue():
            e = self.q.popleft()
            if e[0] == "dma":
                _, i, k, setup, buf, vset, flags = e
                if k == 0:
                    self.busy[i % 4] = True
                    a(f"s_add_u32 m0, s{sRB}, {(i%4)*4096}")
                    setup()
            if len(a.vm) > self.K - 1:
                if wait: a(f"s_waitcnt vmcnt({self.K-1})"); a.vm = a.vm[len(a.vm)-(self.K-1):]
            if e[0] == "dma":
                a(f"buffer_load_dwordx4 v{vset+k}, {sr(SRD[buf],4)}, s{sD} offen offset:{1024*k} {flags} lds", ("sub", i))
                if k == 3: self.done_issue.add(("sub", i))
            else:
                e[1](); self.done_issue.add(e[2])
            done += 1
        return done
    def fill(self):
        while len(self.a.vm) < self.K and self.can_issue():
            self.pump(1)
    def free(self, i):
        self.busy[i % 4] = False
    def wait_tag(self, tag):
        while tag not in self.done_issue:
            assert self.pump(1), f"{tag} cannot be issued"
        while self.a.has_vm(tag):
            if not self.pump(1): self.a.wait_vm(tag)
    def wait_sub(self, i):
        self.wait_tag(("sub", i))
    def stamp(self, k):
        if not self.cfg.get("stamps"): return
        sel = self.cfg.get("sel")
        if sel is None:
            if k >= 32: return
        elif k not in sel and k > 1: return
        a = self.a
        if len(self.stamp_regs) <= 1 and k != 1: return
        r = self.stamp_regs.pop(0); self.stamped.append((k, r))
        if k == 0 and self.cfg.get("early0"):
            a(f"s_mov_b32 s{r}, s94")
        else:
            a(f"s_memrealtime s[90:91]\ns_waitcnt lgkmcnt(0)\ns_mov_b32 s{r}, s90")
        if k in self.cfg.get("clk", ()):
            r2 = self.stamp_regs.pop(0); self.stamped.append((k + 40, r2))
            a(f"s_memtime s[90:91]\ns_waitcnt lgkmcnt(0)\ns_mov_b32 s{r2}, s90")
        if k == 1:
            a(f"v_mov_b32 v{vX0}, 0")
            for kk, rr in self.stamped:
                a(f"v_writelane_b32 v{vX0}, s{rr}, {kk}")
            a(f"s_lshl_b32 s92, s2, 3\ns_add_u32 s92, s92, s{sW}\ns_lshl_b32 s92, s92, 8\ns_add_u32 s92, s92, {WS_TS}")
            a(f"v_lshlrev_b32 v{vX1}, 2, v{vL}\nbuffer_store_dword v{vX0}, v{vX1}, {sr(SRD['ws'],4)}, s92 offen", "stamp")
    def t_block(self, i, taddr, mf):
        a = self.a; slot = i % 4; F = vF + 16*(i & 1)
        self.wait_sub(i)
        for ks in range(2):
            for ct in range(2):
                for u in range(2):
                    a(f"ds_read_b64_tr_b16 {vr(F + 8*ks + 4*ct + 2*u, 2)}, v{taddr + 2*ct + u} offset:{slot*4096 + ks*2048}")
        k = 0
        for ks in range(2):
            for ct in range(2):
                k += 1
                a(f"s_waitcnt lgkmcnt({8 - 2*k})")
                mf(ks, ct, F + 8*ks + 4*ct)
        self.free(i)
    def n_reads(self, i, dst):
        return [lambda s_=s_: self.a(f"ds_read_b128 {vr(dst+4*s_,4)}, v{vN+s_} offset:{(i%4)*4096}") for s_ in range(4)]
    def t_reads(self, i, taddr, dst):
        return [lambda ks=ks, ct=ct, u=u: self.a(f"ds_read_b64_tr_b16 {vr(dst + 8*ks + 4*ct + 2*u, 2)}, v{taddr + 2*ct + u} offset:{(i%4)*4096 + ks*2048}")
                for ks in range(2) for ct in range(2) for u in range(2)]
    def landed(self, tag):
        while tag not in self.done_issue:
            assert self.pump(1), f"{tag} cannot be issued"
        if self.a.has_vm(tag): self.a.wait_vm(tag)
    def steps(self, subs, reads, mfmas, LA, keep_last=0, pre=None, post=None, first_done=False):
        a = self.a; n = len(subs)
        Fb = lambda t: vF + 16*(t & 1)
        if not first_done:
            self.landed(("sub", subs[0]))
            for r in reads(subs[0], Fb(0)): r()
        for t in range(n):
            if t + 1 < n: self.landed(("sub", subs[t+1]))
            if pre: pre(t)
            a("s_waitcnt lgkmcnt(0)")
            self.free(subs[t])
            if t >= n - keep_last: self.busy[subs[t] % 4] = True
            fill = reads(subs[t+1], Fb(t+1)) if t + 1 < n else []
            npump = max(0, LA - len(a.vm))
            pumps = [lambda: self.pump(1, wait=False)] * npump
            seq = []
            while fill or pumps:
                if fill: seq.append(fill.pop(0))
                if fill and len(fill) >= len(pumps): seq.append(fill.pop(0))
                if pumps: seq.append(pumps.pop(0))
            mf = mfmas(t, Fb(t))
            for k, m in enumerate(mf):
                m()
                lo, hi = len(seq)*k // len(mf), len(seq)*(k+1) // len(mf)
                for f in seq[lo:hi]: f()
            if post: post(t)
    def mfma(self, d, A, B, zero=False):
        self.a(f"v_mfma_f32_32x32x16_bf16 {vr(d,16)}, {vr(A,4)}, {vr(B,4)}, {'0' if zero else vr(d,16)}")
    def pack(self, dst, src, n):
        for k in range(n):
            self.a(f"v_cvt_pk_bf16_f32 v{dst+k}, v{src+2*k}, v{src+2*k+1}")
    def perm_matrix(self, dst):
        a = self.a; t0, t1 = vX0, vX1
        a(f"v_bfe_u32 v{t0}, v{vL}, 2, 1\nv_lshrrev_b32 v{t1}, 5, v{vL}\nv_xor_b32 v{t0}, v{t0}, v{t1}\nv_bfe_u32 v{t1}, v{vL}, 4, 1\nv_or_b32 v{t0}, v{t0}, v{t1}")
        a(f"v_lshlrev_b32 v{t0}, 2, v{t0}\nv_bfe_u32 v{t1}, v{vL}, 3, 1\nv_lshl_add_u32 v{t0}, v{t1}, 1, v{t0}\nv_bfe_u32 v{t1}, v{vL}, 1, 1\nv_add_u32 v{t0}, v{t0}, v{t1}")
        a(f"v_and_b32 v{t1}, 1, v{vL}\nv_lshlrev_b32 v{t1}, 4, v{t1}\nv_mov_b32 v{dst}, 0x3f80\nv_lshlrev_b32 v{t1}, v{t1}, v{dst}")
        for d in range(4):
            a(f"v_cmp_eq_u32 vcc, {d}, v{t0}\nv_cndmask_b32 v{dst+d}, 0, v{t1}, vcc")
    def msum(self, D, PM, R, n, cnt):
        for p in range(n):
            cnt -= 1
            self.a(f"s_waitcnt lgkmcnt({cnt})")
            self.mfma(D, PM, R + 4*p, zero=(p == 0))
        return cnt
    def bar(self, pump=True):
        if pump: self.pump(self.cfg["redpump"], wait=False)
        self.a("s_waitcnt lgkmcnt(0)\ns_barrier")
    def tr_reads(self, i, taddr, dst):
        for r in self.t_reads(i, taddr, dst): r()
    def queue_w(self, wb, g, ch, ng, sRot, pw):
        a = self.a
        def fw():
            a(f"s_add_u32 s{sD}, s{sRot}, {g}\ns_and_b32 s{sD}, s{sD}, {ng-1}\ns_lshl_b32 s{sD}, s{sD}, 18\ns_add_u32 s{sD}, s{sD}, s{pw}")
            if ch: a(f"s_add_u32 s{sD}, s{sD}, 128")
        return self.queue(fw, wb, vD8192, self.cfg["fl_w"])
    def set_flag(self, sFl, n=1, off=0):
        a = self.a
        a(f"v_mov_b32 v{vX0}, 1\ns_mov_b64 exec, 1")
        for hh in range(n):
            a(f"buffer_store_dword v{vX0}, off, {sr(SRD['ws'],4)}, s{sFl} offset:{off + 128*hh} sc1", "flag")
        a("s_mov_b64 exec, -1")
    def flush_flag(self):
        if self.pend_flag is None: return
        tag, sFl, n, off = self.pend_flag
        if self.a.has_vm(tag): self.a.wait_vm(tag)
        self.set_flag(sFl, n, off)
        self.pend_flag = None
    def pick(self, abuf, wbuf, sSel=None, abuf2=None, wbuf2=None):
        a = self.a
        for k in range(3):
            if sSel is None:
                a(f"s_cmp_lt_u32 s{sW}, 4\ns_cselect_b32 s{sG+k}, s{SRD[abuf]+k}, s{SRD[wbuf]+k}")
            else:
                a(f"s_cmp_eq_u32 s{sSel}, 0\ns_cselect_b32 s{sT}, s{SRD[abuf]+k}, s{SRD[abuf2]+k}\ns_cselect_b32 s{sT2}, s{SRD[wbuf]+k}, s{SRD[wbuf2]+k}")
                a(f"s_cmp_lt_u32 s{sW}, 4\ns_cselect_b32 s{sG+k}, s{sT}, s{sT2}")
        a(f"s_mov_b32 s{sG+3}, 0x20000")
    def queue_cg(self, nst, p, first, flags, gate=None, nfirst=0):
        a = self.a; l = []
        if gate: self.queue_ld(lambda: None, ("gate", gate), gate)
        for st in range(nst):
            def f(st=st):
                if st == 0: first()
                a(f"s_add_u32 s{sD}, s{p+2}, {st}\ns_and_b32 s{sD}, s{sD}, {nst-1}\ns_lshl_b32 s{sD}, s{sD}, s{p+1}\ns_add_u32 s{sD}, s{sD}, s{p}")
            l.append(self.queue(f, "G", vGa, flags + (" nt" if st < nfirst else "")))
        return l
    def cg_addr(self, linear, taddr):
        a = self.a
        a(f"s_and_b32 s{sT}, s{sW}, 3\ns_lshl_b32 s{sT}, s{sT}, 14\ns_lshr_b32 s{sT2}, s{sW}, 2\ns_add_u32 s{sT2}, s{sT2}, 4\ns_lshl_b32 s{sT2}, s{sT2}, 14\ns_sub_u32 s{sT2}, s{sT2}, s{sRB}")
        if linear:
            a(f"v_add_u32 v{vCA}, s{sT}, v{vL16}")
        else:
            a(f"s_sub_u32 s{sT}, s{sT}, s{sRB}")
            for k in range(4): a(f"v_add_u32 v{vCA+k}, s{sT}, v{vN+k}")
        for k in range(4): a(f"v_add_u32 v{vCW+k}, s{sT2}, v{taddr+k}")
    def run_cg(self, subs, linear, ACC, LA, stamp0=None, hooks=None):
        a = self.a; n = len(subs)
        FB = lambda t: vB2 + 48*(t & 1)
        def reads(t):
            F = FB(t); so = (subs[t] % 4)*4096; out = []
            for kk in range(4):
                g, ks = kk >> 1, kk & 1
                out.append(lambda kk=kk: a(f"ds_read_b128 {vr(F+4*kk,4)}, v{vCA if linear else vCA+kk} offset:{so + (1024*kk if linear else 0)}"))
                for ct in range(2):
                    for u in range(2):
                        out.append(lambda g=g, ks=ks, ct=ct, u=u, kk=kk: a(f"ds_read_b64_tr_b16 {vr(F + 16 + 8*kk + 4*ct + 2*u, 2)}, v{vCW + 2*ct + u} offset:{so + g*32768 + ks*2048}"))
            return out
        self.landed(("sub", subs[0])); a("s_barrier")
        r0 = reads(0)
        for k, r in enumerate(r0):
            if k == 12: a("s_waitcnt lgkmcnt(4)")
            r()
        for t in range(n):
            if t + 1 < n: self.landed(("sub", subs[t+1]))
            if hooks and t in hooks: hooks[t]()
            a("s_waitcnt lgkmcnt(0)\ns_barrier")
            self.free(subs[t])
            fill = reads(t+1) if t + 1 < n else []
            pumps = [lambda: self.pump(1, wait=False)] * max(0, LA - len(a.vm))
            seq = pumps[:1] + fill[:5] + pumps[1:2] + fill[5:10] + pumps[2:3] + [lambda: a("s_waitcnt lgkmcnt(5)")] * bool(fill) + fill[10:15] + pumps[3:] + fill[15:]
            F = FB(t)
            mf = [lambda kk=kk, ct=ct: self.mfma(ACC + 16*ct, F + 16 + 8*kk + 4*ct, F + 4*kk, zero=(t == 0 and kk == 0)) for kk in range(4) for ct in range(2)]
            nsp = self.cfg["cgspread"]
            for k, m in enumerate(mf):
                m()
                if k < nsp:
                    for f in seq[len(seq)*k // nsp: len(seq)*(k+1) // nsp]: f()
            if stamp0 is not None: self.stamp(stamp0 + t)
    def queue_attn(self, kb, vb, sUnit, sRot, p, fl, between=None, afterV3=None):
        a = self.a
        a(f"s_lshl_b32 s{p}, s{sUnit}, 18\ns_lshl_b32 s{sT}, s{sW}, 13\ns_add_u32 s{p}, s{p}, s{sT}")
        out = []
        for buf in (kb, vb):
            l = []
            for i in range(4):
                for dh in range(2):
                    def f(i=i, dh=dh):
                        if sRot is None:
                            a(f"s_add_u32 s{sD}, s{p}, {i*65536 + dh*128}")
                        else:
                            a(f"s_add_u32 s{sD}, s{sRot}, {i}\ns_and_b32 s{sD}, s{sD}, 3\ns_lshl_b32 s{sD}, s{sD}, 16\ns_add_u32 s{sD}, s{sD}, s{p}")
                            if dh: a(f"s_add_u32 s{sD}, s{sD}, 128")
                    l.append(self.queue(f, buf, vD256, "nt" if (sRot is not None and i == 0 and (self.cfg["ntKV"] & (1 if buf == kb else 2))) else fl))
                    if buf == vb and i == 1 and dh == 1 and afterV3: afterV3()
            out.append(l)
            if buf == kb and between: between()
        return out
    def row_max(self, S_, m):
        a = self.a; T = vF
        for c in range(4):
            b = S_ + 16*c
            a(f"v_max3_f32 v{T+c}, v{b}, v{b+1}, v{b+2}")
        for k in range(6):
            for c in range(4):
                b = S_ + 16*c + 3 + 2*k
                a(f"v_max3_f32 v{T+c}, v{T+c}, v{b}, v{b+1}")
        a(f"v_max3_f32 v{T}, v{T}, v{S_+15}, v{S_+31}\nv_max3_f32 v{T+1}, v{T+1}, v{S_+47}, v{S_+63}")
        a(f"v_max3_f32 v{T}, v{T}, v{T+2}, v{T+3}\nv_max_f32 v{m}, v{T}, v{T+1}\nv_mov_b32 v{T}, v{m}")
        a(f"v_permlane32_swap_b32 v{m}, v{T}\nv_max_f32 v{m}, v{m}, v{T}")
    def row_exp(self, S_, P, m, l, npump):
        a = self.a; T = vF
        for k in range(0, 64, 8):
            for j in range(8): a(f"v_sub_f32 v{S_+k+j}, v{S_+k+j}, v{m}")
            for j in range(8): a(f"v_exp_f32 v{S_+k+j}, v{S_+k+j}")
            for j in range(8):
                c = j & 3
                if k == 0 and j < 4: continue
                a(f"v_add_f32 v{T+c}, v{S_+c if k == 0 else T+c}, v{S_+k+j}")
            self.pack(P + k//2, S_ + k, 4)
            self.pump(npump*(k//8 + 1)//8 - npump*(k//8)//8, wait=False)
        a(f"v_add_f32 v{T}, v{T}, v{T+1}\nv_add_f32 v{T+2}, v{T+2}, v{T+3}\nv_add_f32 v{l}, v{T}, v{T+2}\nv_mov_b32 v{T}, v{l}")
        a(f"v_permlane32_swap_b32 v{l}, v{T}\nv_add_f32 v{l}, v{l}, v{T}")
    def qk(self, n, ks_, hooks=None):
        a = self.a; piped = n == 2
        def preK(t):
            if t == self.cfg['flagt']: self.flush_flag()
            if hooks and t in hooks: hooks[t]()
        if piped:
            def mfK(t, F):
                ti, dh = t >> 1, t & 1
                return [lambda s_=s_, hh=hh: self.mfma(vB2 + 64*hh + 16*ti, F+4*s_, vB1 + 32*hh + 16*dh + 4*s_, zero=(dh == 0 and s_ == 0))
                        for s_ in range(4) for hh in range(n)]
            self.steps(ks_, self.n_reads, mfK, self.cfg["LAa"], pre=preK, post=lambda t: None if self.cfg.get('qasel') else self.stamp(32 + t))
            return
        for t, i in enumerate(ks_):
            ti, dh = t >> 1, t & 1; F = vF + 16*(i & 1)
            self.wait_sub(i); preK(t); self.stamp(42 + t) if not self.cfg.get('qasel') else None
            for r in self.n_reads(i, F): r()
            for s_ in range(4):
                a(f"s_waitcnt lgkmcnt({3-s_})")
                self.mfma(vB2 + 16*ti, F+4*s_, vB1 + 16*dh + 4*s_, zero=(dh == 0 and s_ == 0))
            self.free(i)
    def attn_rest(self, n, vs_, Sb, Pb, sOunit, sFlag, st, keep=2, after_softmax=None, after_first_barrier=None, urgent=False, after_v=None, before_ack=None):
        a = self.a
        MA = vM + 1 if n == 1 else None
        self.stamp(st[0])
        a(f"v_and_b32 v{vX1}, 31, v{vL}\nv_lshlrev_b32 v{vX1}, 5, v{vX1}\nv_add_u32 v{vX1}, {ML}, v{vX1}\ns_lshl_b32 s{sT}, s{sW}, 2\nv_add_u32 v{vX0}, s{sT}, v{vX1}")
        for hh in range(n):
            self.row_max(Sb + 64*hh, vM + hh)
            a(f"ds_write_b32 v{vX0}, v{vM+hh} offset:{hh*2048}")
        self.bar()
        for hh in range(n):
            a(f"ds_read_b128 {vr(vF+8*hh,4)}, v{vX1} offset:{hh*2048}\nds_read_b128 {vr(vF+8*hh+4,4)}, v{vX1} offset:{hh*2048+16}")
        for hh in range(n):
            b = vF + 8*hh
            a(f"s_waitcnt lgkmcnt({2*(n-1-hh)})")
            a(f"v_max3_f32 v{b}, v{b}, v{b+1}, v{b+2}\nv_max3_f32 v{b+3}, v{b+3}, v{b+4}, v{b+5}\nv_max3_f32 v{b}, v{b}, v{b+6}, v{b+7}\nv_max_f32 v{vM+hh}, v{b}, v{b+3}")
        for hh in range(n):
            self.row_exp(Sb + 64*hh, Pb + 32*hh, vM + hh, vS + hh, self.cfg["smpump"] // n)
            a(f"ds_write_b32 v{vX0}, v{vS+hh} offset:{hh*2048 + 1024}")
        if after_softmax:
            a("s_waitcnt lgkmcnt(0)"); after_softmax()
        self.stamp(st[1])
        if n == 2:
            def mfV(t, F):
                ti, dh = t >> 1, t & 1
                return [lambda ks=ks, ct=ct, hh=hh: self.mfma(vB2 + 64*hh + 16*(2*dh+ct), F + 8*ks + 4*ct, Pb + 32*hh + 8*ti + 4*ks, zero=(ti == 0 and ks == 0))
                        for ks in range(2) for ct in range(2) for hh in range(n)]
            self.steps(vs_, lambda i, F: self.t_reads(i, vT, F), mfV, self.cfg["LAa"], keep_last=keep, post=lambda t: None if self.cfg.get('qasel') else self.stamp(40 + t))
        else:
            a("s_waitcnt lgkmcnt(0)")
            for t, i in enumerate(vs_):
                ti, dh = t >> 1, t & 1
                self.t_block(i, vT, lambda ks, ct, A: self.mfma(vB2 + 16*(2*dh+ct), A, Pb + 8*ti + 4*ks, zero=(ti == 0 and ks == 0)))
                if t >= len(vs_) - keep: self.busy[i % 4] = True
                if st[0] == 11: self.stamp(50 + t)
        self.stamp(st[2])
        if after_v: after_v()
        rs = vs_[-keep] % 4
        so = [rs*4096, ((rs+2) % 4)*4096]
        PM, WA, RA, LA_ = vF, vF + 8, vF + 9, vF + 11
        a(f"v_add_u32 v{WA}, s{sRB}, v{vL16}\ns_lshl_b32 s{sT}, s{sW}, 10\nv_add_u32 v{RA}, s{sT}, v{vL16}\nv_add_u32 v{RA+1}, 0x10000, v{RA}")
        a(f"v_and_b32 v{LA_}, 31, v{vL}\nv_lshlrev_b32 v{LA_}, 5, v{LA_}\nv_add_u32 v{LA_}, {ML + 1024}, v{LA_}")
        self.perm_matrix(PM)
        for hh in range(n):
            self.pack(vB1 + 32*hh, vB2 + 64*hh, 32)
            for f in range(8):
                a(f"ds_write_b128 v{WA}, {vr(vB1+32*hh+4*f,4)} offset:{so[hh] + f*1024}")
            if hh < n - 1: a("s_waitcnt lgkmcnt(6)")
        self.bar()
        for hh in range(n):
            R = vB2 + 64*hh; D = R + 32; Lr = R + 48
            a(f"ds_read_b128 {vr(Lr,4)}, v{LA_} offset:{hh*2048}\nds_read_b128 {vr(Lr+4,4)}, v{LA_} offset:{hh*2048+16}")
            for p in range(8):
                a(f"ds_read_b128 {vr(R+4*p,4)}, v{RA + (p>>2)} offset:{(p&3)*16384 + so[hh]}")
            if hh == 0 and after_first_barrier: after_first_barrier()
            a("s_waitcnt lgkmcnt(8)")
            a(f"v_add_f32 v{Lr}, v{Lr}, v{Lr+1}\nv_add_f32 v{Lr+2}, v{Lr+2}, v{Lr+3}\nv_add_f32 v{Lr+4}, v{Lr+4}, v{Lr+5}\nv_add_f32 v{Lr+6}, v{Lr+6}, v{Lr+7}")
            a(f"v_add_f32 v{Lr}, v{Lr}, v{Lr+2}\nv_add_f32 v{Lr+4}, v{Lr+4}, v{Lr+6}\nv_add_f32 v{Lr}, v{Lr}, v{Lr+4}\nv_rcp_f32 v{Lr}, v{Lr}")
            self.msum(D, PM, R, 8, 8)
        for hh in range(n):
            R = vB2 + 64*hh; D = R + 32; Lr = R + 48
            for j in range(8): a(f"v_mul_f32 v{D+j}, v{Lr}, v{D+j}")
            self.pack(D + 8, D, 4)
            if hh: a(f"s_add_u32 s{sT}, s{sOunit}, 8192")
            a(f"buffer_store_dwordx4 {vr(D+8,4)}, v{RA}, {sr(SRD['ws'],4)}, s{sT if hh else sOunit} offen sc1", ("ostore", hh))
        a("s_barrier")
        for k in range(keep): self.busy[(rs + k) % 4] = False
        self.pend_flag = (("ostore", n-1), sFlag, n, 0)
        if before_ack: before_ack()
        if urgent: self.flush_flag()
        self.fill()
    def queue_wo(self, wb, nsub, head0, sRot, p, sCt, inserts=None):
        a = self.a
        a(f"s_lshl_b32 s{p}, s{sW}, 20\ns_lshl_b32 s{sT}, s{sCt}, 7\ns_add_u32 s{p}, s{p}, s{sT}")
        if head0 is not None: a(f"s_lshl_b32 s{sT}, s{head0}, 18\ns_add_u32 s{p}, s{p}, s{sT}")
        l = []
        for t in range(nsub):
            l.append(self.queue(lambda t=t: a(f"s_add_u32 s{sD}, s{sRot}, {t}\ns_and_b32 s{sD}, s{sD}, {nsub-1}\ns_lshl_b32 s{sD}, s{sD}, 16\ns_add_u32 s{sD}, s{sD}, s{p}"),
                                wb, vD2048, "nt" if (t == 0 and self.cfg["ntW"]) else self.cfg["fl_wo"]))
            if inserts and t in inserts: inserts[t]()
        return l
    def queue_o(self, oreg, t, nsub, sRot, sO, name, gate=None):
        a = self.a
        for ks in range(2):
            def f(ks=ks):
                if ks == 0: a(f"s_add_u32 s{sD2}, s{sRot}, {t}\ns_and_b32 s{sD2}, s{sD2}, {nsub-1}\ns_lshl_b32 s{sD2}, s{sD2}, 11\ns_add_u32 s{sD2}, s{sD2}, s{sO}")
                a(f"buffer_load_dwordx4 {vr(oreg(t) + 4*ks, 4)}, v{vL16}, {sr(SRD['ws'],4)}, s{sD2} offen offset:{ks*1024} sc1", (name, t, ks))
            self.queue_ld(f, (name, t, ks), gate or name)
    def touch(self, buf, lg, sOff, dummy):
        self.a(f"v_lshlrev_b32 v{vX0}, {lg}, v{vL}\nbuffer_load_dword v{dummy}, v{vX0}, {sr(SRD[buf],4)}, s{sOff} offen", "touch")
    def queue_touch(self, buf, vaddr_fn, soff_fn, dummy, gate=None):
        a = self.a
        def f():
            v = vaddr_fn(); soff_fn()
            a(f"buffer_load_dword v{dummy}, v{v}, {sr(SRD[buf],4)}, s{sD2} offen {self.cfg['fl_t']}", "touch")
        self.queue_ld(f, "touch", gate)
    def flag_lanes(self, v, geo):
        a = self.a; W, NL, NB = geo
        wide = W*NL*NB > 64
        lw = (W // (2 if wide else 1)).bit_length() - 1; ll = NL.bit_length() - 1
        a(f"v_and_b32 v{v}, {(1 << lw) - 1}, v{vL}\nv_lshlrev_b32 v{v}, {3 if wide else 2}, v{v}")
        if NL > 1: a(f"v_bfe_u32 v{vX0 if v != vX0 else vX1}, v{vL}, {lw}, {ll}\nv_lshl_add_u32 v{v}, v{vX0 if v != vX0 else vX1}, 7, v{v}")
        if NB > 1: a(f"v_bfe_u32 v{vX0 if v != vX0 else vX1}, v{vL}, {lw + ll}, 2\nv_lshl_add_u32 v{v}, v{vX0 if v != vX0 else vX1}, 12, v{v}")
        return wide
    def chk_issue(self, v, sOff, geo):
        wide = self.flag_lanes(v + 2, geo)
        self.a(f"buffer_load_dword{'x2' if wide else ''} {vr(v, 2 if wide else 1)}, v{v+2}, {sr(SRD['ws'],4)}, s{sOff} offen sc1", ("chk", v))
        self.chk = (v, sOff, wide)
    def chk_wait(self, nap=None, before_spin=None):
        a = self.a; v, sOff, wide = self.chk
        L = self.newlabel("L_chk"); D = self.newlabel("L_ok")
        if a.has_vm(("chk", v)): a.wait_vm(("chk", v))
        a(f"s_mov_b32 s{sT2}, 0")
        a.fence(); a.label(L)
        if wide: a(f"v_and_b32 v{v}, v{v}, v{v+1}")
        a(f"v_cmp_ne_u32 vcc, 1, v{v}\ns_add_u32 s{sT2}, s{sT2}, 1\ns_nop 2\ns_cbranch_vccz {D}")
        a(f"s_cmp_lt_u32 s{sT2}, {self.cfg['spin']}\ns_cbranch_scc0 {D}\ns_sleep {self.cfg['nap'] if nap is None else nap}")
        a(f"buffer_load_dword{'x2' if wide else ''} {vr(v, 2 if wide else 1)}, v{v+2}, {sr(SRD['ws'],4)}, s{sOff} offen sc1\ns_waitcnt vmcnt(0)\ns_branch {L}")
        a.vm.pop()
        a.label(D)
    def chk_issue_cleared(self, v):
        self.a(f"v_lshlrev_b32 v{v}, 2, v{vL}\nbuffer_load_dword v{v}, v{v}, {sr(SRD['dbg'],4)}, 0 offen sc1", ("chk", v))
    def chk_cleared(self, v):
        a = self.a; D = self.newlabel("L_ok")
        if a.has_vm(("chk", v)): a.wait_vm(("chk", v))
        a(f"v_cmp_gt_u32 vcc, 4, v{v}")
        a.fence()
        a(f"s_cbranch_vccz {D}")
        keep = list(a.vm); self.poll_cleared(); a.vm = keep
        a.label(D)
    def poll_cleared(self):
        a = self.a; L = self.newlabel("L_pollc"); D = self.newlabel("L_pcdone")
        a(f"s_mov_b32 s{sT2}, 0\nv_lshlrev_b32 v{vX0}, 2, v{vL}")
        a.fence()
        a.label(L)
        a(f"buffer_load_dword v{vX1}, v{vX0}, {sr(SRD['dbg'],4)}, 0 offen sc1", "poll")
        a("s_waitcnt vmcnt(0)"); a.vm = []
        a(f"v_cmp_gt_u32 vcc, 4, v{vX1}\ns_add_u32 s{sT2}, s{sT2}, 1\ns_nop 2\ns_cbranch_vccz {D}")
        a(f"s_cmp_lt_u32 s{sT2}, {self.cfg['spin']}\ns_cbranch_scc0 {D}\ns_sleep {self.cfg['nap']}\ns_branch {L}")
        a.label(D)
    def run_oproj(self, subs, oreg, ACC, gate, zero_first, keep_last, hooks=None):
        def pre(t):
            self.wait_tag((gate, t, 1))
            if hooks and t in hooks: hooks[t]()
            if gate == "oa" and self.cfg.get("oasel"): self.stamp(48 + t)
        def mf(t, F):
            return [lambda ks=ks, ct=ct: self.mfma(ACC + 16*ct, F + 8*ks + 4*ct, oreg(t) + 4*ks, zero=(zero_first and t == 0 and ks == 0))
                    for ks in range(2) for ct in range(2)]
        self.steps(subs, lambda i, F: self.t_reads(i, vT, F), mf, self.cfg["LAo"], keep_last=keep_last, pre=pre)
        return subs[-2] % 4
    def out_reduce(self, ACC, rs, TMP, sOutOff=None, add=None, sPart=None):
        a = self.a
        a(f"v_lshrrev_b32 v{vX1}, 5, v{vL}\nv_and_b32 v{vX0}, 31, v{vL}\nv_xor_b32 v{vX0}, v{vX0}, v{vX1}\nv_lshlrev_b32 v{vX0}, 4, v{vX0}")
        a(f"v_lshlrev_b32 v{vX1}, 9, v{vX1}\nv_add3_u32 v{vX0}, v{vX0}, v{vX1}, s{sRB}")
        for i in range(1, 8):
            a(f"v_xor_b32 v{vF+i}, {32*i}, v{vX0}")
        a(f"v_lshrrev_b32 v{vF+8}, 4, v{vL}\ns_lshl_b32 s{sT}, s{sW}, 2\nv_add_u32 v{vF+8}, s{sT}, v{vF+8}\nv_and_b32 v{vF+9}, 15, v{vL}")
        a(f"v_xor_b32 v{vF+10}, v{vF+8}, v{vF+9}\nv_lshlrev_b32 v{vF+10}, 4, v{vF+10}\nv_lshl_add_u32 v{vF+10}, v{vF+9}, 9, v{vF+10}\nv_add_u32 v{vF+11}, 0x10000, v{vF+10}")
        a(f"v_lshlrev_b32 v{vF+8}, 12, v{vF+8}\nv_lshl_add_u32 v{vF+8}, v{vF+9}, 3, v{vF+8}")
        for i in range(8):
            a(f"ds_write_b128 v{vF+i if i else vX0}, {vr(ACC+4*i,4)} offset:{rs*4096 + i*1024}")
        self.bar()
        for p in range(8):
            a(f"ds_read_b128 {vr(TMP+4*p,4)}, v{vF+10 + (p>>2)} offset:{(p&3)*16384 + rs*4096}")
        for p in range(0 if add is not None else 1, 8):
            a(f"s_waitcnt lgkmcnt({7-p})")
            for j in range(4):
                a(f"v_add_f32 v{TMP+j}, v{TMP+j}, v{(TMP+4*p+j) if p else (add+j)}")
        if sPart is not None:
            a(f"buffer_store_dwordx4 {vr(TMP,4)}, v{vL16}, {sr(SRD['ws'],4)}, s{sPart} offen sc1", "pstore")
            a("s_barrier")
            self.busy[rs] = self.busy[rs+1] = False
        else:
            self.pack(TMP + 4, TMP, 2)
            a(f"buffer_store_dwordx2 {vr(TMP+4,2)}, v{vF+8}, {sr(SRD['out'],4)}, s{sOutOff} offen", "out")
    def prologue(self):
        a = self.a
        if self.cfg.get("early0"): a("s_memrealtime s[94:95]")
        a("s_cmp_ge_u32 s2, 256\ns_cbranch_scc1 L_end")
        a(f"s_load_dwordx16 s[{KA}:{KA+15}], s[0:1], 0\ns_load_dwordx8 s[{KA+16}:{KA+23}], s[0:1], 64\ns_load_dwordx2 s[{KA+24}:{KA+25}], s[0:1], 96")
        a(f"v_lshrrev_b32 v1, 6, v0\nv_and_b32 v{vL}, 63, v0\nv_readfirstlane_b32 s{sW}, v1")
        for k in ORDER:
            a(f"s_mov_b32 s{SRD[k]+2}, {SIZE[k]:#x}\ns_mov_b32 s{SRD[k]+3}, 0x20000")
        a(f"s_lshl_b32 s{sRB}, s{sW}, 14\ns_and_b32 s{sX}, s2, 7\ns_bfe_u32 s{sJJ}, s2, 0x40003")
        a(f"v_lshlrev_b32 v{vL16}, 4, v{vL}")
        t0, t1, t2 = vF, vF+1, vF+2
        a(f"v_bfe_u32 v{t0}, v{vL}, 4, 1\nv_lshlrev_b32 v{t0}, 2, v{t0}\nv_lshrrev_b32 v{t1}, 5, v{vL}\nv_or_b32 v{t0}, v{t0}, v{t1}")
        a(f"v_and_b32 v{t1}, 7, v{vL}\nv_xor_b32 v{t0}, v{t0}, v{t1}\nv_lshlrev_b32 v{t0}, 4, v{t0}")
        a(f"v_xor_b32 v{t1}, 32, v{t0}\nv_lshrrev_b32 v{t2}, 3, v{vL}")
        for vs, lg in ((vD2048, 11), (vD8192, 13), (vD256, 8)):
            for i in range(4):
                a(f"v_lshl_add_u32 v{vs+i}, v{t2}, {lg}, v{t1 if i & 1 else t0}")
                if i: a(f"v_add_u32 v{vs+i}, {(8*i << lg) - 1024*i}, v{vs+i}")
    def copy_ptrs(self, names):
        for k in names:
            o = KA + 2*ORDER.index(k)
            self.a(f"s_mov_b32 s{SRD[k]}, s{o}\ns_mov_b32 s{SRD[k]+1}, s{o+1}")
    def read_addrs(self, need_q=True):
        a = self.a; t0, t1, t2, t3 = vF, vF+1, vF+2, vF+3
        a(f"v_bfe_u32 v{t0}, v{vL}, 1, 1\nv_lshlrev_b32 v{t0}, 2, v{t0}\nv_bfe_u32 v{t1}, v{vL}, 2, 2\nv_or_b32 v{t0}, v{t0}, v{t1}")
        a(f"v_lshrrev_b32 v{t1}, 5, v{vL}\nv_xor_b32 v{t0}, v{t0}, v{t1}\nv_lshlrev_b32 v{t0}, 4, v{t0}")
        a(f"v_and_b32 v{t1}, 31, v{vL}\nv_lshl_add_u32 v{t0}, v{t1}, 7, v{t0}\nv_add_u32 v{vN}, s{sRB}, v{t0}")
        for s in range(1, 4): a(f"v_xor_b32 v{vN+s}, {32*s}, v{vN}")
        for base, nat in ((vT, False), (vTq, True))[:2 if need_q else 1]:
            if nat:
                a(f"v_and_b32 v{t0}, 1, v{vL}\nv_bfe_u32 v{t1}, v{vL}, 1, 1")
            else:
                a(f"v_bfe_u32 v{t0}, v{vL}, 1, 1\nv_and_b32 v{t1}, 1, v{vL}")
            a(f"v_bfe_u32 v{t2}, v{vL}, 4, 1\nv_lshl_add_u32 v{t0}, v{t2}, 1, v{t0}")
            a(f"v_bfe_u32 v{t2}, v{vL}, 3, 1\nv_lshlrev_b32 v{t2}, 2, v{t2}\nv_xor_b32 v{t0}, v{t0}, v{t2}")
            a(f"v_lshrrev_b32 v{t2}, 5, v{vL}")
            if nat: a(f"v_lshlrev_b32 v{t3}, 1, v{t2}\nv_xor_b32 v{t0}, v{t0}, v{t3}")
            else:   a(f"v_xor_b32 v{t0}, v{t0}, v{t2}")
            a(f"v_lshlrev_b32 v{t0}, 4, v{t0}\nv_lshl_add_u32 v{t0}, v{t1}, 3, v{t0}")
            a(f"v_bfe_u32 v{t1}, v{vL}, 2, 2\nv_lshl_add_u32 v{t1}, v{t2}, {3 if nat else 2}, v{t1}")
            a(f"v_lshl_add_u32 v{t0}, v{t1}, 7, v{t0}\nv_add_u32 v{base}, s{sRB}, v{t0}")
            ux, ur = (16, 4*128) if nat else (32, 8*128)
            a(f"v_xor_b32 v{base+1}, {ux}, v{base}\nv_add_u32 v{base+1}, {ur}, v{base+1}")
            a(f"v_xor_b32 v{base+2}, 64, v{base}\nv_xor_b32 v{base+3}, 64, v{base+1}")
    def flag_off(self, dst, branch, sB, sH, base=WS_FLAG):
        a = self.a
        a(f"s_lshl_b32 s{dst}, s{sB}, 12\ns_lshl_b32 s{sT}, s{sH}, 7\ns_add_u32 s{dst}, s{dst}, s{sT}\ns_add_u32 s{dst}, s{dst}, {base + branch*32768}")
    def clear_flags(self, offs):
        a = self.a; L = self.newlabel("L_clr")
        a(f"s_cmp_lg_u32 s{sW}, 0\ns_cbranch_scc1 {L}")
        a(f"v_mov_b32 v{vX1}, 0")
        for s_, nl, code in offs:
            a(code or f"v_lshlrev_b32 v{vX0}, 2, v{vL}")
            a(f"s_mov_b64 exec, {(1 << nl) - 1:#x}\nbuffer_store_dword v{vX1}, v{vX0}, {sr(SRD['ws'],4)}, s{s_} offen sc1\ns_mov_b64 exec, -1")
            a.vm.pop()
        a.label(L)
    def signal_cleared(self):
        a = self.a; L = self.newlabel("L_sig")
        a(f"s_cmp_lg_u32 s{sW}, 0\ns_cbranch_scc1 {L}")
        a(f"v_mov_b32 v{vX1}, 1\ns_mov_b64 exec, 1\ns_and_b32 s{sT}, s2, 63\ns_lshl_b32 s{sT}, s{sT}, 2\nbuffer_atomic_add v{vX1}, off, {sr(SRD['dbg'],4)}, s{sT} sc1\ns_mov_b64 exec, -1")
        a.vm.pop()
        a.label(L)
    def role_common_B(self):
        pass
    def oproj_params(self, sBo, sCt, sO_, sF_, sOut, branch):
        a = self.a
        a(f"s_lshr_b32 s{sBo}, s{sJJ}, 1\ns_and_b32 s{sT}, s{sJJ}, 1\ns_lshl_b32 s{sCt}, s{sX}, 1\ns_add_u32 s{sCt}, s{sCt}, s{sT}")
        a(f"s_lshl_b32 s{sO_}, s{sBo}, 18\ns_lshl_b32 s{sT}, s{sW}, 15\ns_add_u32 s{sO_}, s{sO_}, s{sT}")
        a(f"s_lshl_b32 s{sF_}, s{sBo}, 12\ns_lshl_b32 s{sT}, s{sW}, 9\ns_add_u32 s{sF_}, s{sF_}, s{sT}\ns_add_u32 s{sF_}, s{sF_}, {WS_FLAG + branch*32768}")
        a(f"s_lshl_b32 s{sOut}, s{sBo}, 17\ns_lshl_b32 s{sT}, s{sCt}, 7\ns_add_u32 s{sOut}, s{sOut}, s{sT}")
        if branch: a(f"s_add_u32 s{sO_}, s{sO_}, {2 << 20}\ns_add_u32 s{sOut}, s{sOut}, 2048")
    def unit_ids(self):
        a = self.a
        a(f"s_and_b32 s{sT}, s{sJJ}, 3\ns_lshl_b32 s{sHB}, s{sX}, 2\ns_add_u32 s{sHB}, s{sHB}, s{sT}")
        a(f"s_and_b32 s{sT}, s{sJJ}, 2\ns_lshl_b32 s{sT}, s{sT}, 1\ns_lshr_b32 s{sBB}, s{sJJ}, 2\ns_add_u32 s{sBB}, s{sBB}, s{sT}")
    def load_q(self, dst, sQo):
        a = self.a
        a(f"s_add_u32 s{sT}, s{sQo}, 4096")
        for f in range(8):
            a(f"buffer_load_dwordx4 {vr(dst+4*f,4)}, v{vL16}, {sr(SRD['ws'],4)}, s{sT if f >= 4 else sQo} offen offset:{(f&3)*1024} sc1", ("q", f))
    def half_params(self, sBo, sH, sO_, sF_, late):
        a = self.a
        a(f"s_lshr_b32 s{sH}, s{sBo}, 2\ns_lshl_b32 s{sH}, s{sH}, 1")
        if late: a(f"s_xor_b32 s{sH}, s{sH}, 2")
        a(f"s_lshl_b32 s{sT}, s{sH}, 7\ns_add_u32 s{sF_}, s{sF_}, s{sT}\ns_lshl_b32 s{sT}, s{sH}, 13\ns_add_u32 s{sO_}, s{sO_}, s{sT}")
    def lanes2(self, T, lgrow):
        def f():
            self.a(f"v_lshrrev_b32 v{T}, 1, v{vL}\nv_lshlrev_b32 v{T}, {lgrow}, v{T}\nv_and_b32 v{T+1}, 1, v{vL}\nv_lshl_add_u32 v{T}, v{T+1}, 7, v{T}"); return T
        return f
    def lin(self, T, lg):
        def f():
            self.a(f"v_lshlrev_b32 v{T}, {lg}, v{vL}"); return T
        return f
    def part_off(self, sPo, sPf, sB, sCt, sKq, branch):
        a = self.a
        a(f"s_lshl_b32 s{sT}, s{sB}, 4\ns_add_u32 s{sT}, s{sT}, s{sCt}\ns_lshl_b32 s{sPf}, s{sT}, 7\ns_lshl_b32 s{sT}, s{sT}, 3\ns_add_u32 s{sT}, s{sT}, s{sKq}")
        a(f"s_lshl_b32 s{sPo}, s{sT}, 12\ns_add_u32 s{sPo}, s{sPo}, {WS_P + branch*(4 << 20)}\ns_lshl_b32 s{sT}, s{sKq}, 2\ns_add_u32 s{sPf}, s{sPf}, s{sT}\ns_add_u32 s{sPf}, s{sPf}, {WS_PFLAG + branch*16384}")
    def move4(self, op, reg, sOff, tag):
        for f in range(4):
            self.a(f"buffer_{op}_dwordx4 {vr(reg+4*f,4)}, v{vL16}, {sr(SRD['ws'],4)}, s{sOff} offen offset:{f*1024} sc1", tag)
    def unpack(self, dst, src, n):
        a = self.a
        a(f"s_mov_b32 s{sT2}, 0xffff0000")
        for k in range(n):
            a(f"v_lshlrev_b32 v{dst+2*k}, 16, v{src+k}\nv_and_b32 v{dst+2*k+1}, s{sT2}, v{src+k}")
    def fetch_q(self, sQo, nk):
        a = self.a
        a(f"s_lshl_b32 s{sT}, s{sW}, {10 + nk - 1}\ns_add_u32 s{sT2}, s{sT}, {QX}\ns_add_u32 s{sT}, s{sT}, s{sQo}\ns_mov_b32 s{sT3}, m0\ns_mov_b32 m0, s{sT2}")
        for k in range(nk):
            a(f"buffer_load_dwordx4 v{vL16}, {sr(SRD['ws'],4)}, s{sT} offen offset:{1024*k} sc1 lds", "qdma")
        a(f"s_mov_b32 m0, s{sT3}")
    def read_q(self, dst, nf):
        a = self.a
        if a.has_vm("qdma"): a.wait_vm("qdma")
        a(f"v_add_u32 v{vX0}, {QX}, v{vL16}\ns_barrier")
        for f in range(nf):
            if f == 12: a("s_waitcnt lgkmcnt(4)")
            a(f"ds_read_b128 {vr(dst+4*f,4)}, v{vX0} offset:{f*1024}")
    def role_S(self):
        a = self.a; c = self.cfg
        self.start_role()
        self.stamp_regs = list(range(24, 28)) + list(range(85, 89)) + [100, 101, 95] + list(range(12, 20)) + list(range(8, 12)) + list(range(28, 32)) + list(range(20, 24)) + list(range(40, 44)); self.stamped = []
        P = sP
        self.unit_ids()
        a("s_waitcnt lgkmcnt(0)")
        self.copy_ptrs(ORDER)
        (sU1, sU2, sO1, sO2, sF1, sF2, sB2, sQo, sQf, sBo, sCt, sOC, sFC, sOut, sH2, sPo, sPf, p1, p2, pwo, sRot) = range(P, P + 21)
        T2, D2 = vTq, vTq + 2
        self.K = c["K0"]
        for names, touch in ((("xA", "xB"), c["touchX"]), (("wqA", "wqB"), c["touchWA"])):
            if not touch: continue
            a(f"s_cmp_lt_u32 s{sX}, 4")
            for k in range(3): a(f"s_cselect_b32 s{sG+k}, s{SRD[names[0]]+k}, s{SRD[names[1]]+k}")
            a(f"s_mov_b32 s{sG+3}, 0x20000")
            if names[0] == "xA":
                a(f"s_lshl_b32 s{sD2}, s{sJJ}, 15\ns_lshl_b32 s{sT}, s{sW}, 12\ns_add_u32 s{sD2}, s{sD2}, s{sT}")
                self.queue_touch("G", self.lin(T2, 6), lambda: None, D2)
            else:
                a(f"s_and_b32 s{sT}, s{sJJ}, 7\ns_lshl_b32 s{sT2}, s{sT}, 2\ns_and_b32 s{sT3}, s{sJJ}, 8\ns_lshl_b32 s{sT3}, s{sT3}, 1\ns_add_u32 s{sT2}, s{sT2}, s{sT3}\ns_and_b32 s{sT3}, s{sX}, 1\ns_lshl_b32 s{sT3}, s{sT3}, 1\ns_add_u32 s{sT2}, s{sT2}, s{sT3}")
                a(f"s_add_u32 s{sT2}, s{sT2}, s{sW}\ns_add_u32 s{sT2}, s{sT2}, 8\ns_and_b32 s{sT2}, s{sT2}, 31\ns_lshl_b32 s{sD2}, s{sT2}, 18\ns_and_b32 s{sT3}, s{sX}, 3\ns_lshl_b32 s{sT3}, s{sT3}, 3\ns_add_u32 s{sT}, s{sT}, s{sT3}\ns_lshl_b32 s{sT}, s{sT}, 8\ns_add_u32 s{sD2}, s{sD2}, s{sT}")
                self.queue_touch("G", self.lanes2(T2, 13), lambda: None, D2)
            self.pump(1)
        a(f"s_lshl_b32 s{sU1}, s{sBB}, 5\ns_add_u32 s{sU1}, s{sU1}, s{sHB}\ns_xor_b32 s{sU2}, s{sU1}, 128\ns_xor_b32 s{sB2}, s{sBB}, 4")
        a1 = self.queue_attn("kB", "vB", sU1, None, p1, c["fl_kvB"])
        self.fill()
        self.flag_off(sF1, 1, sBB, sHB); self.flag_off(sF2, 1, sB2, sHB)
        self.clear_flags([(sF1, 8, None), (sF2, 8, None)])
        self.stamp(0)
        self.read_addrs(need_q=False)
        self.flag_off(sQf, 1, sBB, sHB, WS_QFLAG)
        a(f"s_lshl_b32 s{sO1}, s{sU1}, 13\ns_add_u32 s{sQo}, s{sO1}, {WS_Q + (2 << 20)}\ns_add_u32 s{sO1}, s{sO1}, {WS_O + (2 << 20)}\ns_xor_b32 s{sO2}, s{sO1}, {1 << 20}")
        a(f"s_lshl_b32 s{sT}, s{sW}, 2\ns_add_u32 s{sF1}, s{sF1}, s{sT}\ns_add_u32 s{sF2}, s{sF2}, s{sT}")
        a2 = self.queue_attn("kB", "vB", sU2, None, p2, c["fl_kvB"])
        self.oproj_params(sBo, sCt, sOC, sFC, sOut, 1)
        self.half_params(sBo, sH2, sOC, sFC, True)
        a(f"s_lshl_b32 s{sPf}, s2, 7\ns_lshl_b32 s{sT}, s{sW}, 2\ns_add_u32 s{sPf}, s{sPf}, s{sT}\ns_add_u32 s{sPf}, s{sPf}, {WS_PFLAG + 16384}")
        a(f"s_lshl_b32 s{sPo}, s2, 3\ns_add_u32 s{sPo}, s{sPo}, s{sW}\ns_lshl_b32 s{sPo}, s{sPo}, 10\ns_add_u32 s{sPo}, s{sPo}, {WS_P + (4 << 20)}")
        a(f"s_and_b32 s{sT}, s{sCt}, 1\ns_lshl_b32 s{sT}, s{sT}, 2\ns_add_u32 s{sRot}, s{sBo}, s{sT}")
        wB2 = self.queue_wo("woB", 8, sH2, sRot, pwo, sCt)
        oregC = lambda t: (vB1 + 32 + 8*t) if t < 4 else (vF + 8*(t-4))
        for t in range(8): self.queue_o(oregC, t, 8, sRot, sOC, "oc")
        CK = vD8192 + 1
        for t, i in enumerate(a1[0]):
            self.wait_sub(i); self.stamp(34 + t)
            if t == 0: self.signal_cleared()
            if t == c["K0n"]: self.K = c["K"]
            if t == 4: self.chk_issue_cleared(CK)
            if t == 6: self.chk_cleared(CK)
            if t == 7: self.chk_issue(CK, sQf, (2, 1, 1))
            for r in self.n_reads(i, vB2 + 16*t): r()
            a("s_waitcnt lgkmcnt(0)")
            self.free(i)
        self.stamp(16)
        self.chk_wait(nap=c["napq"])
        self.stamp(17)
        self.fetch_q(sQo, 1); self.read_q(vF, 8)
        for t in range(8):
            ti, dh = t >> 1, t & 1
            for s_ in range(4):
                if t < 2: a(f"s_waitcnt lgkmcnt({7 - 4*dh - s_})")
                self.mfma(vB1 + 16*ti, vB2 + 16*t + 4*s_, vF + 16*dh + 4*s_, zero=(dh == 0 and s_ == 0))
            if t >= 1: self.pump(1, wait=False)
        def chkq2():
            a(f"s_xor_b32 s{sQf}, s{sQf}, 16384\ns_xor_b32 s{sQo}, s{sQo}, {1 << 20}")
            self.chk_issue(CK, sQf, (2, 1, 1))
        def loadq2():
            self.chk_wait(); self.fetch_q(sQo, 1)
        self.attn_rest(1, a1[1], vB1, vB2 + 64, sO1, sF1, (7, 8, 9), after_softmax=chkq2, after_first_barrier=loadq2)
        self.stamp(10)
        self.read_q(vB1, 8); a("s_waitcnt lgkmcnt(0)")
        self.qk(1, a2[0])
        W = vB2; ACC = vB1
        wreg = lambda t: vB2 + 16*((t + 4) % 8)
        def grab(t):
            self.tr_reads(wB2[t], vT, wreg(t)); a("s_waitcnt lgkmcnt(0)"); self.free(wB2[t])
        def early():
            self.pump(8, wait=False)
            for t in range(c["earlyW"]):
                self.landed(("sub", wB2[t])); grab(t); self.pump(4, wait=False)
        self.attn_rest(1, a2[1], vB2, vB1, sO2, sF2, (11, 12, 13), urgent=True, before_ack=early if c["earlyW"] else None)
        self.stamp(14)
        self.K = c["Khit"]
        for t, i in enumerate(wB2):
            if t < c["earlyW"]: continue
            self.wait_sub(i)
            if t == 2: self.chk_issue(CK, sPf, (1, 1, 1))
            if t == c["pbt"]:
                self.chk_wait(nap=c["napq"])
                a(f"buffer_load_dwordx4 {vr(vM,4)}, v{vL16}, {sr(SRD['ws'],4)}, s{sPo} offen sc1", "pb")
            grab(t)
        self.chk_issue(CK, sFC, (8, 2, 1))
        self.stamp(15)
        self.chk_wait(nap=c["naptail"])
        self.stamp(18)
        self.gates.add("oc"); self.K = c["Ktail"]
        for t in range(8):
            for ks in range(2):
                self.wait_tag(("oc", t, ks))
                for ct in range(2):
                    self.mfma(ACC + 16*ct, wreg(t) + 8*ks + 4*ct, oregC(t) + 4*ks, zero=(t == 0 and ks == 0))
        self.out_reduce(ACC, 0, vB2, sOut, add=vM)
        self.stamp(1)
        a("s_endpgm")
        a.reset_keep_t()
    def role_G(self):
        a = self.a; c = self.cfg
        self.start_role()
        self.stamp_regs = list(range(32, 40)) + [100, 101, 95] + list(range(84, 89)); self.stamped = []
        P = sP
        (sBr, sHq, sBh, sBA, sHA, sRotK, sUA, sOa, sFa, sQo, sQf, sCq, pg, pg1, pg2, paa, sA, sB_, sC, sE) = range(P, P + 20)
        a("s_waitcnt lgkmcnt(0)")
        self.copy_ptrs(ORDER)
        a(f"s_lshr_b32 s{sBr}, s{sX}, 2\ns_and_b32 s{sT}, s{sJJ}, 7\ns_and_b32 s{sHq}, s{sX}, 3\ns_lshl_b32 s{sHq}, s{sHq}, 3\ns_add_u32 s{sHq}, s{sHq}, s{sT}\ns_lshr_b32 s{sBh}, s{sJJ}, 3")
        a(f"s_lshl_b32 s{pg2}, s{sT}, 1\ns_lshl_b32 s{sT}, s{sBh}, 3\ns_add_u32 s{pg2}, s{pg2}, s{sT}\ns_and_b32 s{sT}, s{sX}, 1\ns_add_u32 s{pg2}, s{pg2}, s{sT}")
        a(f"s_lshl_b32 s{sT}, s{sBh}, 2\ns_add_u32 s{sT}, s{sT}, s{sW}\ns_lshl_b32 s{sT}, s{sT}, 16")
        a(f"s_bfe_u32 s{sT2}, s{sW}, 0x10001\ns_lshl_b32 s{sT2}, s{sT2}, 18\ns_and_b32 s{sT3}, s{sW}, 1\ns_lshl_b32 s{sT3}, s{sT3}, 7\ns_add_u32 s{sT2}, s{sT2}, s{sT3}\ns_lshl_b32 s{sT3}, s{sHq}, 8\ns_add_u32 s{sT2}, s{sT2}, s{sT3}")
        a(f"s_cmp_lt_u32 s{sW}, 4\ns_cselect_b32 s{pg}, s{sT}, s{sT2}\ns_cselect_b32 s{pg1}, 7, 19\ns_cselect_b64 vcc, -1, 0")
        for k in range(4): a(f"v_cndmask_b32 v{vGa+k}, v{vD8192+k}, v{vD2048+k}, vcc")
        qs = self.queue_cg(16, pg, lambda: self.pick("xA", "wqA", sBr, "xB", "wqB"), c["fl_w"], nfirst=c["ntQ"])
        self.K = 16
        for k in range(c["KG0"] // 4):
            if k and c["barfill"]: a("s_barrier")
            self.pump(4, wait=False)
        a(f"s_and_b32 s{sT3}, s{sX}, 1\ns_lshl_b32 s{sBA}, s{sT3}, 2\ns_lshr_b32 s{sT}, s{sJJ}, 2\ns_add_u32 s{sBA}, s{sBA}, s{sT}")
        a(f"s_and_b32 s{sRotK}, s{sJJ}, 3\ns_lshr_b32 s{sT2}, s{sX}, 1\ns_lshl_b32 s{sHA}, s{sT2}, 3\ns_lshl_b32 s{sT}, s{sRotK}, 1\ns_add_u32 s{sHA}, s{sHA}, s{sT}")
        a(f"s_lshl_b32 s{sUA}, s{sBA}, 2\ns_add_u32 s{sUA}, s{sUA}, s{sT2}\ns_and_b32 s{sCq}, s{sJJ}, 7")
        self.flag_off(sFa, 0, sBA, sHA)
        a(f"s_lshl_b32 s{sA}, s{sBr}, 3\ns_lshl_b32 s{sT}, s{sBh}, 2\ns_add_u32 s{sA}, s{sA}, s{sT}")
        self.flag_off(sQf, 0, sA, sHq, WS_QFLAG)
        a(f"s_lshl_b32 s{sA}, s{sBh}, 13\ns_lshl_b32 s{sT}, s{sCq}, 8\ns_add_u32 s{sA}, s{sA}, s{sT}\ns_lshl_b32 s{sT}, s{sX}, 2\ns_add_u32 s{sA}, s{sA}, s{sT}\ns_add_u32 s{sA}, s{sA}, {WS_PFLAG}")
        a(f"s_and_b32 s{sB_}, s2, 127\ns_lshl_b32 s{sB_}, s{sB_}, 7\ns_add_u32 s{sB_}, s{sB_}, {WS_PFLAG + 16384}")
        self.clear_flags([(sFa, 16, f"v_lshrrev_b32 v{vX0}, 3, v{vL}\nv_lshlrev_b32 v{vX0}, 7, v{vX0}\nv_and_b32 v{vF}, 7, v{vL}\nv_lshl_add_u32 v{vX0}, v{vF}, 2, v{vX0}"),
                          (sQf, 8, f"v_lshrrev_b32 v{vX0}, 1, v{vL}\nv_lshlrev_b32 v{vX0}, 12, v{vX0}\nv_and_b32 v{vF}, 1, v{vL}\nv_lshl_add_u32 v{vX0}, v{vF}, 2, v{vX0}"),
                          (sA, 8, f"v_bfe_u32 v{vF}, v{vL}, 1, 2\nv_lshlrev_b32 v{vX0}, 11, v{vF}\nv_and_b32 v{vF}, 1, v{vL}\nv_lshl_add_u32 v{vX0}, v{vF}, 7, v{vX0}"),
                          (sB_, 8, None)])
        self.stamp(0)
        self.read_addrs()
        self.cg_addr(False, vTq)
        a(f"s_lshl_b32 s{sOa}, s{sBA}, 5\ns_add_u32 s{sOa}, s{sOa}, s{sHA}\ns_lshl_b32 s{sOa}, s{sOa}, 13")
        a(f"s_lshl_b32 s{sT}, s{sW}, 2\ns_add_u32 s{sFa}, s{sFa}, s{sT}")
        a(f"s_and_b32 s{sT}, s{sW}, 3\ns_lshl_b32 s{sT2}, s{sT}, 12\ns_add_u32 s{sQf}, s{sQf}, s{sT2}\ns_lshr_b32 s{sT3}, s{sW}, 2\ns_lshl_b32 s{sT2}, s{sT3}, 2\ns_add_u32 s{sQf}, s{sQf}, s{sT2}")
        a(f"s_lshl_b32 s{sQo}, s{sBr}, 3\ns_lshl_b32 s{sT2}, s{sBh}, 2\ns_add_u32 s{sQo}, s{sQo}, s{sT2}\ns_add_u32 s{sQo}, s{sQo}, s{sT}\ns_lshl_b32 s{sQo}, s{sQo}, 5\ns_add_u32 s{sQo}, s{sQo}, s{sHq}\ns_lshl_b32 s{sQo}, s{sQo}, 1\ns_add_u32 s{sQo}, s{sQo}, s{sT3}\ns_lshl_b32 s{sQo}, s{sQo}, 12\ns_add_u32 s{sQo}, s{sQo}, {WS_Q}")
        a(f"s_mov_b32 s{sBr}, s{sBh}")
        self.queue_ld(lambda: None, ("gate", "ka"), "ka")
        aa = self.queue_attn("kA", "vA", sUA, sRotK, paa, c["fl_kvA"])
        CK = vD8192 + 1
        ACC = vB1
        self.run_cg(qs, False, ACC, c["LAq"], stamp0=32 if c.get("qasel") else None,
                    hooks={0: self.signal_cleared, 9: lambda: self.chk_issue_cleared(CK), 13: lambda: self.chk_cleared(CK)})
        self.stamp(20)
        a(f"s_mov_b32 s{sT3}, {f2u(SCALE):#x}")
        for f in range(4):
            for j in range(8): a(f"v_mul_f32 v{ACC+8*f+j}, s{sT3}, v{ACC+8*f+j}")
            self.pack(ACC + 32 + 4*f, ACC + 8*f, 4)
            a(f"buffer_store_dwordx4 {vr(ACC+32+4*f,4)}, v{vL16}, {sr(SRD['ws'],4)}, s{sQo} offen offset:{f*1024} sc1", "qstore")
        self.gates.add("ka")
        self.pump(c["preA0"], wait=False)
        a.wait_vm("qstore"); self.set_flag(sQf)
        self.stamp(22)
        self.K = c["Khit"]
        self.pump(c["preA"])
        self.flag_off(sQf, 0, sBA, sHA, WS_QFLAG)
        self.chk_issue(CK, sQf, (2, 2, 1)); self.pump(c["preA2"]); self.chk_wait(nap=c["napq"])
        self.stamp(7)
        a(f"s_add_u32 s{sQo}, s{sOa}, {WS_Q}")
        self.fetch_q(sQo, 2)
        self.pump(c["preA3"], wait=False)
        sPo, sPf, sFl, sFb, sBo, sCt, sPo2, sPf2, sOut = sQo, sQf, sHq, sBh, sA, sB_, sC, sE, sBA
        def og_first(branch):
            def f():
                self.pick("ws", "woB" if branch else "woA")
                a(f"s_lshl_b32 s{sT3}, s{sX}, 2")
                if branch: a(f"s_lshl_b32 s{sT}, s{sBr}, 1\ns_add_u32 s{sT3}, s{sT3}, s{sT}")
                a(f"s_lshl_b32 s{sT}, s{sBr}, 2\ns_add_u32 s{sT}, s{sT}, s{sW}\ns_lshl_b32 s{sT}, s{sT}, 5\ns_add_u32 s{sT}, s{sT}, s{sT3}\ns_lshl_b32 s{sT}, s{sT}, 13\ns_add_u32 s{sT}, s{sT}, {WS_O + branch*(2 << 20)}")
                a(f"s_lshl_b32 s{sT3}, s{sT3}, 18\ns_bfe_u32 s{sT2}, s{sW}, 0x10001\ns_lshl_b32 s{sT2}, s{sT2}, 16\ns_add_u32 s{sT3}, s{sT3}, s{sT2}\ns_and_b32 s{sT2}, s{sW}, 1\ns_lshl_b32 s{sT2}, s{sT2}, 7\ns_add_u32 s{sT3}, s{sT3}, s{sT2}\ns_lshl_b32 s{sT2}, s{sCq}, 8\ns_add_u32 s{sT3}, s{sT3}, s{sT2}")
                a(f"s_lshl_b32 s{pg2}, s{sBr}, 2\ns_add_u32 s{pg2}, s{pg2}, s{sCq}\ns_cmp_lt_u32 s{sW}, 4\ns_cselect_b32 s{pg}, s{sT}, s{sT3}\ns_cselect_b32 s{pg1}, 12, 17\ns_cselect_b64 vcc, -1, 0")
                for k in range(4): a(f"v_cndmask_b32 v{vGa+k}, v{vD2048+k}, v{vL16}, vcc")
            return f
        sBo1, sCt1, sO1, sF1, sH1, sRot, pw, sPb, sPbf = sA, sB_, sC, sE, sBA, sHA, sUA, 6, 7
        self.oproj_params(sBo1, sCt1, sO1, sF1, sPb, 1)
        self.half_params(sBo1, sH1, sO1, sF1, False)
        a(f"s_and_b32 s{sT}, s{sCt1}, 1\ns_lshl_b32 s{sT}, s{sT}, 2\ns_add_u32 s{sRot}, s{sBo1}, s{sT}")
        a(f"s_and_b32 s{sPb}, s2, 127\ns_lshl_b32 s{sPbf}, s{sPb}, 7\ns_lshl_b32 s{sT}, s{sW}, 2\ns_add_u32 s{sPbf}, s{sPbf}, s{sT}\ns_add_u32 s{sPbf}, s{sPbf}, {WS_PFLAG + 16384}")
        a(f"s_lshl_b32 s{sPb}, s{sPb}, 3\ns_add_u32 s{sPb}, s{sPb}, s{sW}\ns_lshl_b32 s{sPb}, s{sPb}, 10\ns_add_u32 s{sPb}, s{sPb}, {WS_P + (4 << 20)}")
        oregB = lambda t: vB2 + 8*t
        T2, D2 = vTq, vTq + 2
        if c["touchOB"]:
            self.queue_touch("ws", self.lin(T2, 7), lambda: a(f"s_and_b32 s{sD2}, s{sCt1}, 1\ns_lshl_b32 s{sD2}, s{sD2}, 13\ns_add_u32 s{sD2}, s{sD2}, s{sO1}"), D2, gate="tob")
        wB1 = self.queue_wo("woB", 8, sH1, sRot, pw, sCt1, {c["aheadB"]-1: lambda: [self.queue_o(oregB, t, 8, sRot, sO1, "ob") for t in range(8)]})
        oa = self.queue_cg(8, pg, og_first(0), "sc1", gate="oa", nfirst=c["ntO"])
        a(f"s_lshl_b32 s{sFl}, s{sBr}, 14\ns_lshl_b32 s{sT}, s{sX}, 9\ns_add_u32 s{sFl}, s{sFl}, s{sT}\ns_add_u32 s{sFl}, s{sFl}, {WS_FLAG}")
        self.read_q(vB1, 16); a("s_waitcnt lgkmcnt(0)")
        self.stamp(5)
        self.qk(2, aa[0])
        def afb():
            if c["touchOB"]:
                self.chk_wait(); self.gates.add("tob"); self.pump(1, wait=False)
        self.attn_rest(2, aa[1], vB2, vB1, sOa, sFa, (2, 3, 4), keep=4, after_v=lambda: self.chk_issue(CK, sF1, (8, 2, 1)), after_first_barrier=afb, urgent=c["urgA"])
        self.stamp(6)
        if not c["touchOB"]: self.chk_wait()
        self.gates.add("ob")
        self.pump(c["ob0"], wait=False)
        self.stamp(14)
        rs = self.run_oproj(wB1, oregB, ACC, "ob", True, 2, hooks={0: self.flush_flag, 5: lambda: self.chk_issue(CK, sFl, (8, 4, 4))})
        self.stamp(13)
        self.chk_wait(); self.gates.add("oa")
        self.out_reduce(ACC, rs, vB2, sPart=sPb)
        self.pend_flag = ("pstore", sPbf, 1, 0)
        self.cg_addr(True, vT)
        self.K = 16; self.pump(c["og0"], wait=False)
        a(f"s_lshl_b32 s{sBo}, s{sBr}, 2\ns_and_b32 s{sT}, s{sW}, 3\ns_add_u32 s{sBo}, s{sBo}, s{sT}\ns_lshl_b32 s{sCt}, s{sCq}, 1\ns_lshr_b32 s{sT}, s{sW}, 2\ns_add_u32 s{sCt}, s{sCt}, s{sT}")
        self.part_off(sPo, sPf, sBo, sCt, sX, 0)
        ACC2 = vB1 + 32
        self.run_cg(oa, True, ACC2, c["LAo"], hooks={0: self.flush_flag})
        self.pack(vF + 16, ACC2, 16)
        self.move4("store", vF + 16, sPo, "pst")
        self.stamp(15)
        a(f"s_lshr_b32 s{sBo}, s{sJJ}, 1\ns_and_b32 s{sT}, s{sJJ}, 1\ns_lshl_b32 s{sCt}, s{sX}, 1\ns_add_u32 s{sCt}, s{sCt}, s{sT}")
        a(f"s_lshl_b32 s{sOut}, s{sBo}, 17\ns_lshl_b32 s{sT}, s{sCt}, 7\ns_add_u32 s{sOut}, s{sOut}, s{sT}")
        self.part_off(sPo2, sPf2, sBo, sCt, sW, 0)
        a.wait_vm("pst"); self.set_flag(sPf)
        self.chk_issue(CK, sPf2, (1, 1, 1)); self.chk_wait(nap=c["napq"])
        self.stamp(12)
        self.move4("load", vB1 + 32, sPo2, "pa")
        a.wait_vm("pa")
        self.unpack(ACC, vB1 + 32, 16)
        self.out_reduce(ACC, 0, vB2, sOut)
        self.stamp(1)
        a("s_endpgm")
        a.reset_keep_t()
    def build(self):
        a = self.a
        self.prologue()
        a("s_cmp_ge_u32 s2, 128\ns_cbranch_scc1 L_roleG")
        sv = (a.t, dict(a.valu_w), dict(a.valu_sw))
        self.role_S()
        a.label("L_roleG")
        a.nop(2)
        self.role_G()
        a.label("L_end")
        a("s_endpgm")
        body = a.text()
        return (HDR + f"; @launch grid=(256,1,1) block=(512,1,1) lds=163840\n"
                + '.amdgcn_target "amdgcn-amd-amdhsa--gfx950"\n.text\n'
                + f".globl {NAME}_kernel\n.p2align 8\n.type {NAME}_kernel,@function\n{NAME}_kernel:\n" + body
                + f""".section .rodata,"a"
.p2align 6
.amdhsa_kernel {NAME}_kernel
  .amdhsa_next_free_vgpr 256
  .amdhsa_next_free_sgpr 102
  .amdhsa_accum_offset 256
  .amdhsa_group_segment_fixed_size 0
  .amdhsa_kernarg_size 104
  .amdhsa_user_sgpr_count 2
  .amdhsa_user_sgpr_kernarg_segment_ptr 1
  .amdhsa_system_sgpr_workgroup_id_x 1
.end_amdhsa_kernel
""")

DEFAULT = dict(ntQ=0, ntO=0, ntKV=0, ntW=0, fl_t='', preA2=0, preA3=0, earlyW=2, ob0=0, touchOB=0, barfill=1, pbt=6, og0=12, oaI=1, rotO=1, touchX=1, nap=8, naptail=2, napq=4, rotQ=3, cgspread=5, holdS=0, gateKA=1, preA0=4, KG0=16, preA=12, urgA=True, gateW=None, aheadB=4, gateWA=1, K0=4, K0n=3, Khit=6, prepoll=0, touchWA=1, touchWB=1, touchO=1, pipe1=False, LAq=8, LAa=6, LAb=6, LAo=8, touchK=None, touchV=0, touchW=1, flagt=0, redpump=2, K=4, Ktail=6, smpump=8, fl_x="", fl_w="", fl_wo="", fl_kvA="", fl_kvB="nt", oproj=True, stamps=False, spin=20000)
def make(**kw):
    c = dict(DEFAULT); c.update(kw)
    return Gen(c).build()
if __name__ == "__main__":
    out = sys.argv[1] if len(sys.argv) > 1 else "cdna_kernels/" + NAME + ".s"
    kw = eval("dict(" + (sys.argv[2] if len(sys.argv) > 2 else "") + ")")
    open(out, "w").write(make(**kw))
```

```python
import sys, math
from collections import deque
from asmlib import Asm, vr, sr

NAME = "concat_heads__gqa_block_cached__mha_block_cached__near_ridge"
HDR = open("cdna_kernels/" + NAME + ".s.ref").read().split("; Override launch")[0]

SRD = dict(G=96, xA=8, kA=12, vA=16, wqA=20, woA=24, xB=28, kB=32, vB=36, wqB=40, woB=44, out=48, dbg=52, ws=56)
SIZE = dict(xA=1<<19, kA=1<<23, vA=1<<23, wqA=1<<23, woA=1<<23, xB=1<<19, kB=1<<26, vB=1<<26, wqB=1<<23, woB=1<<23,
            out=1<<20, dbg=256, ws=1<<28)
ORDER = ["xA", "kA", "vA", "wqA", "woA", "xB", "kB", "vB", "wqB", "woB", "out", "dbg", "ws"]
sW = 3; sRB = 60; sT = 61; sT2 = 62; sT3 = 63; sD = 93; sD2 = 89; sG = 96
sX = 4; sJJ = 5; sBB = 6; sHB = 7
KA = 64
sP = 64
vL = 0
vD256 = 1; vD2048 = 5; vD8192 = 9
vN = 13
vT = 17; vTq = 21
vL16 = 25
vM = 26; vS = 28
vF = 30
vB1 = 62
vB2 = 126
vX0 = 254; vX1 = 255
vGa = vB2 + 96; vCA = vB2 + 100; vCW = vB2 + 104
SPARE = 131072
QX = SPARE
ML = SPARE + 16384
WS_O = 0
WS_Q = 4 << 20
WS_TS = 8 << 20
WS_FLAG = 10 << 20
WS_QFLAG = WS_FLAG + 65536
WS_PFLAG = WS_FLAG + 131072
WS_P = 16 << 20
SCALE = math.log2(math.e) / math.sqrt(128.0)

def f2u(x):
    import struct
    return struct.unpack("<I", struct.pack("<f", x))[0]

class Gen:
    def __init__(self, cfg):
        self.cfg = cfg
        self.a = Asm()
        self.lbl = 0
    def newlabel(self, p="L"):
        self.lbl += 1
        return f"{p}_{self.lbl}"
    def start_role(self):
        self.q = deque(); self.nqueued = 0
        self.busy = [False]*4
        self.a.vm = []
        self.pend_flag = None
        self.gates = set()
        self.K = self.cfg["K"]
        self.done_issue = set()
    def queue(self, setup, buf, vset, flags):
        i = self.nqueued; self.nqueued += 1
        for k in range(4):
            self.q.append(("dma", i, k, setup, buf, vset, flags))
        return i
    def queue_ld(self, fn, tag, gate=None):
        self.q.append(("ld", fn, tag, gate))
    def can_issue(self):
        if not self.q: return False
        e = self.q[0]
        if e[0] == "dma": return e[2] > 0 or not self.busy[e[1] % 4]
        return e[3] is None or e[3] in self.gates
    def pump(self, n=1, wait=True):
        a = self.a; done = 0
        while done < n and self.can_issue():
            e = self.q.popleft()
            if e[0] == "dma":
                _, i, k, setup, buf, vset, flags = e
                if k == 0:
                    self.busy[i % 4] = True
                    a(f"s_add_u32 m0, s{sRB}, {(i%4)*4096}")
                    setup()
            if len(a.vm) > self.K - 1:
                if wait: a(f"s_waitcnt vmcnt({self.K-1})"); a.vm = a.vm[len(a.vm)-(self.K-1):]
            if e[0] == "dma":
                a(f"buffer_load_dwordx4 v{vset+k}, {sr(SRD[buf],4)}, s{sD} offen offset:{1024*k} {flags} lds", ("sub", i))
                if k == 3: self.done_issue.add(("sub", i))
            else:
                e[1](); self.done_issue.add(e[2])
            done += 1
        return done
    def fill(self):
        while len(self.a.vm) < self.K and self.can_issue():
            self.pump(1)
    def free(self, i):
        self.busy[i % 4] = False
    def wait_tag(self, tag):
        while tag not in self.done_issue:
            assert self.pump(1), f"{tag} cannot be issued"
        while self.a.has_vm(tag):
            if not self.pump(1): self.a.wait_vm(tag)
    def wait_sub(self, i):
        self.wait_tag(("sub", i))
    def stamp(self, k):
        if not self.cfg.get("stamps"): return
        sel = self.cfg.get("sel")
        if sel is None:
            if k >= 32: return
        elif k not in sel and k > 1: return
        a = self.a
        if len(self.stamp_regs) <= 1 and k != 1: return
        r = self.stamp_regs.pop(0); self.stamped.append((k, r))
        if k == 0 and self.cfg.get("early0"):
            a(f"s_mov_b32 s{r}, s94")
        else:
            a(f"s_memrealtime s[90:91]\ns_waitcnt lgkmcnt(0)\ns_mov_b32 s{r}, s90")
        if k in self.cfg.get("clk", ()):
            r2 = self.stamp_regs.pop(0); self.stamped.append((k + 40, r2))
            a(f"s_memtime s[90:91]\ns_waitcnt lgkmcnt(0)\ns_mov_b32 s{r2}, s90")
        if k == 1:
            a(f"v_mov_b32 v{vX0}, 0")
            for kk, rr in self.stamped:
                a(f"v_writelane_b32 v{vX0}, s{rr}, {kk}")
            a(f"s_lshl_b32 s92, s2, 3\ns_add_u32 s92, s92, s{sW}\ns_lshl_b32 s92, s92, 8\ns_add_u32 s92, s92, {WS_TS}")
            a(f"v_lshlrev_b32 v{vX1}, 2, v{vL}\nbuffer_store_dword v{vX0}, v{vX1}, {sr(SRD['ws'],4)}, s92 offen", "stamp")
    def t_block(self, i, taddr, mf):
        a = self.a; slot = i % 4; F = vF + 16*(i & 1)
        self.wait_sub(i)
        for ks in range(2):
            for ct in range(2):
                for u in range(2):
                    a(f"ds_read_b64_tr_b16 {vr(F + 8*ks + 4*ct + 2*u, 2)}, v{taddr + 2*ct + u} offset:{slot*4096 + ks*2048}")
        k = 0
        for ks in range(2):
            for ct in range(2):
                k += 1
                a(f"s_waitcnt lgkmcnt({8 - 2*k})")
                mf(ks, ct, F + 8*ks + 4*ct)
        self.free(i)
    def n_reads(self, i, dst):
        return [lambda s_=s_: self.a(f"ds_read_b128 {vr(dst+4*s_,4)}, v{vN+s_} offset:{(i%4)*4096}") for s_ in range(4)]
    def t_reads(self, i, taddr, dst):
        return [lambda ks=ks, ct=ct, u=u: self.a(f"ds_read_b64_tr_b16 {vr(dst + 8*ks + 4*ct + 2*u, 2)}, v{taddr + 2*ct + u} offset:{(i%4)*4096 + ks*2048}")
                for ks in range(2) for ct in range(2) for u in range(2)]
    def landed(self, tag):
        while tag not in self.done_issue:
            assert self.pump(1), f"{tag} cannot be issued"
        if self.a.has_vm(tag): self.a.wait_vm(tag)
    def steps(self, subs, reads, mfmas, LA, keep_last=0, pre=None, post=None, first_done=False):
        a = self.a; n = len(subs)
        Fb = lambda t: vF + 16*(t & 1)
        if not first_done:
            self.landed(("sub", subs[0]))
            for r in reads(subs[0], Fb(0)): r()
        for t in range(n):
            if t + 1 < n: self.landed(("sub", subs[t+1]))
            if pre: pre(t)
            a("s_waitcnt lgkmcnt(0)")
            self.free(subs[t])
            if t >= n - keep_last: self.busy[subs[t] % 4] = True
            fill = reads(subs[t+1], Fb(t+1)) if t + 1 < n else []
            npump = max(0, LA - len(a.vm))
            pumps = [lambda: self.pump(1, wait=False)] * npump
            seq = []
            while fill or pumps:
                if fill: seq.append(fill.pop(0))
                if fill and len(fill) >= len(pumps): seq.append(fill.pop(0))
                if pumps: seq.append(pumps.pop(0))
            mf = mfmas(t, Fb(t))
            for k, m in enumerate(mf):
                m()
                lo, hi = len(seq)*k // len(mf), len(seq)*(k+1) // len(mf)
                for f in seq[lo:hi]: f()
            if post: post(t)
    def mfma(self, d, A, B, zero=False):
        self.a(f"v_mfma_f32_32x32x16_bf16 {vr(d,16)}, {vr(A,4)}, {vr(B,4)}, {'0' if zero else vr(d,16)}")
    def pack(self, dst, src, n):
        for k in range(n):
            self.a(f"v_cvt_pk_bf16_f32 v{dst+k}, v{src+2*k}, v{src+2*k+1}")
    def perm_matrix(self, dst):
        a = self.a; t0, t1 = vX0, vX1
        a(f"v_bfe_u32 v{t0}, v{vL}, 2, 1\nv_lshrrev_b32 v{t1}, 5, v{vL}\nv_xor_b32 v{t0}, v{t0}, v{t1}\nv_bfe_u32 v{t1}, v{vL}, 4, 1\nv_or_b32 v{t0}, v{t0}, v{t1}")
        a(f"v_lshlrev_b32 v{t0}, 2, v{t0}\nv_bfe_u32 v{t1}, v{vL}, 3, 1\nv_lshl_add_u32 v{t0}, v{t1}, 1, v{t0}\nv_bfe_u32 v{t1}, v{vL}, 1, 1\nv_add_u32 v{t0}, v{t0}, v{t1}")
        a(f"v_and_b32 v{t1}, 1, v{vL}\nv_lshlrev_b32 v{t1}, 4, v{t1}\nv_mov_b32 v{dst}, 0x3f80\nv_lshlrev_b32 v{t1}, v{t1}, v{dst}")
        for d in range(4):
            a(f"v_cmp_eq_u32 vcc, {d}, v{t0}\nv_cndmask_b32 v{dst+d}, 0, v{t1}, vcc")
    def msum(self, D, PM, R, n, cnt):
        for p in range(n):
            cnt -= 1
            self.a(f"s_waitcnt lgkmcnt({cnt})")
            self.mfma(D, PM, R + 4*p, zero=(p == 0))
        return cnt
    def bar(self, pump=True):
        if pump: self.pump(self.cfg["redpump"], wait=False)
        self.a("s_waitcnt lgkmcnt(0)\ns_barrier")
    def tr_reads(self, i, taddr, dst):
        for r in self.t_reads(i, taddr, dst): r()
    def queue_w(self, wb, g, ch, ng, sRot, pw):
        a = self.a
        def fw():
            a(f"s_add_u32 s{sD}, s{sRot}, {g}\ns_and_b32 s{sD}, s{sD}, {ng-1}\ns_lshl_b32 s{sD}, s{sD}, 18\ns_add_u32 s{sD}, s{sD}, s{pw}")
            if ch: a(f"s_add_u32 s{sD}, s{sD}, 128")
        return self.queue(fw, wb, vD8192, self.cfg["fl_w"])
    def set_flag(self, sFl, n=1, off=0):
        a = self.a
        a(f"v_mov_b32 v{vX0}, 1\ns_mov_b64 exec, 1")
        for hh in range(n):
            a(f"buffer_store_dword v{vX0}, off, {sr(SRD['ws'],4)}, s{sFl} offset:{off + 128*hh} sc1", "flag")
        a("s_mov_b64 exec, -1")
    def flush_flag(self):
        if self.pend_flag is None: return
        tag, sFl, n, off = self.pend_flag
        if self.a.has_vm(tag): self.a.wait_vm(tag)
        self.set_flag(sFl, n, off)
        self.pend_flag = None
    def pick(self, abuf, wbuf, sSel=None, abuf2=None, wbuf2=None):
        a = self.a
        for k in range(3):
            if sSel is None:
                a(f"s_cmp_lt_u32 s{sW}, 4\ns_cselect_b32 s{sG+k}, s{SRD[abuf]+k}, s{SRD[wbuf]+k}")
            else:
                a(f"s_cmp_eq_u32 s{sSel}, 0\ns_cselect_b32 s{sT}, s{SRD[abuf]+k}, s{SRD[abuf2]+k}\ns_cselect_b32 s{sT2}, s{SRD[wbuf]+k}, s{SRD[wbuf2]+k}")
                a(f"s_cmp_lt_u32 s{sW}, 4\ns_cselect_b32 s{sG+k}, s{sT}, s{sT2}")
        a(f"s_mov_b32 s{sG+3}, 0x20000")
    def queue_cg(self, nst, p, first, flags, gate=None, nfirst=0):
        a = self.a; l = []
        if gate: self.queue_ld(lambda: None, ("gate", gate), gate)
        for st in range(nst):
            def f(st=st):
                if st == 0: first()
                a(f"s_add_u32 s{sD}, s{p+2}, {st}\ns_and_b32 s{sD}, s{sD}, {nst-1}\ns_lshl_b32 s{sD}, s{sD}, s{p+1}\ns_add_u32 s{sD}, s{sD}, s{p}")
            l.append(self.queue(f, "G", vGa, flags + (" nt" if st < nfirst else "")))
        return l
    def cg_addr(self, linear, taddr):
        a = self.a
        a(f"s_and_b32 s{sT}, s{sW}, 3\ns_lshl_b32 s{sT}, s{sT}, 14\ns_lshr_b32 s{sT2}, s{sW}, 2\ns_add_u32 s{sT2}, s{sT2}, 4\ns_lshl_b32 s{sT2}, s{sT2}, 14\ns_sub_u32 s{sT2}, s{sT2}, s{sRB}")
        if linear:
            a(f"v_add_u32 v{vCA}, s{sT}, v{vL16}")
        else:
            a(f"s_sub_u32 s{sT}, s{sT}, s{sRB}")
            for k in range(4): a(f"v_add_u32 v{vCA+k}, s{sT}, v{vN+k}")
        for k in range(4): a(f"v_add_u32 v{vCW+k}, s{sT2}, v{taddr+k}")
    def run_cg(self, subs, linear, ACC, LA, stamp0=None, hooks=None):
        a = self.a; n = len(subs)
        FB = lambda t: vB2 + 48*(t & 1)
        def reads(t):
            F = FB(t); so = (subs[t] % 4)*4096; out = []
            for kk in range(4):
                g, ks = kk >> 1, kk & 1
                out.append(lambda kk=kk: a(f"ds_read_b128 {vr(F+4*kk,4)}, v{vCA if linear else vCA+kk} offset:{so + (1024*kk if linear else 0)}"))
                for ct in range(2):
                    for u in range(2):
                        out.append(lambda g=g, ks=ks, ct=ct, u=u, kk=kk: a(f"ds_read_b64_tr_b16 {vr(F + 16 + 8*kk + 4*ct + 2*u, 2)}, v{vCW + 2*ct + u} offset:{so + g*32768 + ks*2048}"))
            return out
        self.landed(("sub", subs[0])); a("s_barrier")
        r0 = reads(0)
        for k, r in enumerate(r0):
            if k == 12: a("s_waitcnt lgkmcnt(4)")
            r()
        for t in range(n):
            if t + 1 < n: self.landed(("sub", subs[t+1]))
            if hooks and t in hooks: hooks[t]()
            a("s_waitcnt lgkmcnt(0)\ns_barrier")
            self.free(subs[t])
            fill = reads(t+1) if t + 1 < n else []
            pumps = [lambda: self.pump(1, wait=False)] * max(0, LA - len(a.vm))
            seq = pumps[:1] + fill[:5] + pumps[1:2] + fill[5:10] + pumps[2:3] + [lambda: a("s_waitcnt lgkmcnt(5)")] * bool(fill) + fill[10:15] + pumps[3:] + fill[15:]
            F = FB(t)
            mf = [lambda kk=kk, ct=ct: self.mfma(ACC + 16*ct, F + 16 + 8*kk + 4*ct, F + 4*kk, zero=(t == 0 and kk == 0)) for kk in range(4) for ct in range(2)]
            nsp = self.cfg["cgspread"]
            for k, m in enumerate(mf):
                m()
                if k < nsp:
                    for f in seq[len(seq)*k // nsp: len(seq)*(k+1) // nsp]: f()
            if stamp0 is not None: self.stamp(stamp0 + t)
    def queue_attn(self, kb, vb, sUnit, sRot, p, fl, between=None, afterV3=None):
        a = self.a
        a(f"s_lshl_b32 s{p}, s{sUnit}, 18\ns_lshl_b32 s{sT}, s{sW}, 13\ns_add_u32 s{p}, s{p}, s{sT}")
        out = []
        for buf in (kb, vb):
            l = []
            for i in range(4):
                for dh in range(2):
                    def f(i=i, dh=dh):
                        if sRot is None:
                            a(f"s_add_u32 s{sD}, s{p}, {i*65536 + dh*128}")
                        else:
                            a(f"s_add_u32 s{sD}, s{sRot}, {i}\ns_and_b32 s{sD}, s{sD}, 3\ns_lshl_b32 s{sD}, s{sD}, 16\ns_add_u32 s{sD}, s{sD}, s{p}")
                            if dh: a(f"s_add_u32 s{sD}, s{sD}, 128")
                    l.append(self.queue(f, buf, vD256, "nt" if (kb == "kA" and i == 0 and (self.cfg["ntKV"] & (1 if buf == kb else 2))) else fl))
                    if buf == vb and i == 1 and dh == 1 and afterV3: afterV3()
            out.append(l)
            if buf == kb and between: between()
        return out
    def row_max(self, S_, m):
        a = self.a; T = vF
        for c in range(4):
            b = S_ + 16*c
            a(f"v_max3_f32 v{T+c}, v{b}, v{b+1}, v{b+2}")
        for k in range(6):
            for c in range(4):
                b = S_ + 16*c + 3 + 2*k
                a(f"v_max3_f32 v{T+c}, v{T+c}, v{b}, v{b+1}")
        a(f"v_max3_f32 v{T}, v{T}, v{S_+15}, v{S_+31}\nv_max3_f32 v{T+1}, v{T+1}, v{S_+47}, v{S_+63}")
        a(f"v_max3_f32 v{T}, v{T}, v{T+2}, v{T+3}\nv_max_f32 v{m}, v{T}, v{T+1}\nv_mov_b32 v{T}, v{m}")
        a(f"v_permlane32_swap_b32 v{m}, v{T}\nv_max_f32 v{m}, v{m}, v{T}")
    def row_exp(self, S_, P, m, l, npump, wait=False):
        a = self.a; T = vF
        for k in range(0, 64, 8):
            for j in range(8): a(f"v_sub_f32 v{S_+k+j}, v{S_+k+j}, v{m}")
            for j in range(8): a(f"v_exp_f32 v{S_+k+j}, v{S_+k+j}")
            for j in range(8):
                c = j & 3
                if k == 0 and j < 4: continue
                a(f"v_add_f32 v{T+c}, v{S_+c if k == 0 else T+c}, v{S_+k+j}")
            self.pack(P + k//2, S_ + k, 4)
            self.pump(npump*(k//8 + 1)//8 - npump*(k//8)//8, wait=wait)
        a(f"v_add_f32 v{T}, v{T}, v{T+1}\nv_add_f32 v{T+2}, v{T+2}, v{T+3}\nv_add_f32 v{l}, v{T}, v{T+2}\nv_mov_b32 v{T}, v{l}")
        a(f"v_permlane32_swap_b32 v{l}, v{T}\nv_add_f32 v{l}, v{l}, v{T}")
    def qk(self, n, ks_, hooks=None):
        a = self.a; piped = n == 2
        def preK(t):
            if t == self.cfg['flagt']: self.flush_flag()
            if hooks and t in hooks: hooks[t]()
        if piped:
            def mfK(t, F):
                ti, dh = t >> 1, t & 1
                return [lambda s_=s_, hh=hh: self.mfma(vB2 + 64*hh + 16*ti, F+4*s_, vB1 + 32*hh + 16*dh + 4*s_, zero=(dh == 0 and s_ == 0))
                        for s_ in range(4) for hh in range(n)]
            self.steps(ks_, self.n_reads, mfK, self.cfg["LAa"], pre=preK, post=lambda t: None if self.cfg.get('qasel') else self.stamp(32 + t))
            return
        for t, i in enumerate(ks_):
            ti, dh = t >> 1, t & 1; F = vF + 16*(i & 1)
            self.wait_sub(i); preK(t); self.stamp(42 + t) if not self.cfg.get('qasel') else None
            for r in self.n_reads(i, F): r()
            for s_ in range(4):
                a(f"s_waitcnt lgkmcnt({3-s_})")
                self.mfma(vB2 + 16*ti, F+4*s_, vB1 + 16*dh + 4*s_, zero=(dh == 0 and s_ == 0))
            self.free(i)
    def attn_rest(self, n, vs_, Sb, Pb, sOunit, sFlag, st, keep=2, after_softmax=None, after_first_barrier=None, urgent=False, after_v=None, before_ack=None, held=None):
        a = self.a
        MA = vM + 1 if n == 1 else None
        self.stamp(st[0])
        a(f"v_and_b32 v{vX1}, 31, v{vL}\nv_lshlrev_b32 v{vX1}, 5, v{vX1}\nv_add_u32 v{vX1}, {ML}, v{vX1}\ns_lshl_b32 s{sT}, s{sW}, 2\nv_add_u32 v{vX0}, s{sT}, v{vX1}")
        for hh in range(n):
            self.row_max(Sb + 64*hh, vM + hh)
            a(f"ds_write_b32 v{vX0}, v{vM+hh} offset:{hh*2048}")
        self.bar()
        for hh in range(n):
            a(f"ds_read_b128 {vr(vF+8*hh,4)}, v{vX1} offset:{hh*2048}\nds_read_b128 {vr(vF+8*hh+4,4)}, v{vX1} offset:{hh*2048+16}")
        for hh in range(n):
            b = vF + 8*hh
            a(f"s_waitcnt lgkmcnt({2*(n-1-hh)})")
            a(f"v_max3_f32 v{b}, v{b}, v{b+1}, v{b+2}\nv_max3_f32 v{b+3}, v{b+3}, v{b+4}, v{b+5}\nv_max3_f32 v{b}, v{b}, v{b+6}, v{b+7}\nv_max_f32 v{vM+hh}, v{b}, v{b+3}")
        for hh in range(n):
            self.row_exp(Sb + 64*hh, Pb + 32*hh, vM + hh, vS + hh, (self.cfg["smpump1"] if held else self.cfg["smpump"]) // n, wait=bool(held) and self.cfg["smwait"])
            a(f"ds_write_b32 v{vX0}, v{vS+hh} offset:{hh*2048 + 1024}")
        if after_softmax:
            a("s_waitcnt lgkmcnt(0)"); after_softmax()
        self.stamp(st[1])
        if n == 2:
            def mfV(t, F):
                ti, dh = t >> 1, t & 1
                return [lambda ks=ks, ct=ct, hh=hh: self.mfma(vB2 + 64*hh + 16*(2*dh+ct), F + 8*ks + 4*ct, Pb + 32*hh + 8*ti + 4*ks, zero=(ti == 0 and ks == 0))
                        for ks in range(2) for ct in range(2) for hh in range(n)]
            self.steps(vs_, lambda i, F: self.t_reads(i, vT, F), mfV, self.cfg["LAa"], keep_last=keep, post=lambda t: None if self.cfg.get('qasel') else self.stamp(40 + t))
        else:
            a("s_waitcnt lgkmcnt(0)")
            for t, i in enumerate(vs_):
                ti, dh = t >> 1, t & 1
                if held and t in held:
                    for ks in range(2):
                        for ct in range(2):
                            self.mfma(vB2 + 16*(2*dh+ct), held[t] + 8*ks + 4*ct, Pb + 8*ti + 4*ks, zero=(ti == 0 and ks == 0))
                    continue
                self.t_block(i, vT, lambda ks, ct, A: self.mfma(vB2 + 16*(2*dh+ct), A, Pb + 8*ti + 4*ks, zero=(ti == 0 and ks == 0)))
                if t >= len(vs_) - keep: self.busy[i % 4] = True
                if st[0] == 11: self.stamp(50 + t)
        self.stamp(st[2])
        if after_v: after_v()
        rs = vs_[-keep] % 4
        so = [rs*4096, ((rs+2) % 4)*4096]
        PM, WA, RA, LA_ = vF, vF + 8, vF + 9, vF + 11
        a(f"v_add_u32 v{WA}, s{sRB}, v{vL16}\ns_lshl_b32 s{sT}, s{sW}, 10\nv_add_u32 v{RA}, s{sT}, v{vL16}\nv_add_u32 v{RA+1}, 0x10000, v{RA}")
        a(f"v_and_b32 v{LA_}, 31, v{vL}\nv_lshlrev_b32 v{LA_}, 5, v{LA_}\nv_add_u32 v{LA_}, {ML + 1024}, v{LA_}")
        self.perm_matrix(PM)
        for hh in range(n):
            self.pack(vB1 + 32*hh, vB2 + 64*hh, 32)
            for f in range(8):
                a(f"ds_write_b128 v{WA}, {vr(vB1+32*hh+4*f,4)} offset:{so[hh] + f*1024}")
            if hh < n - 1: a("s_waitcnt lgkmcnt(6)")
        self.bar()
        for hh in range(n):
            R = vB2 + 64*hh; D = R + 32; Lr = R + 48
            a(f"ds_read_b128 {vr(Lr,4)}, v{LA_} offset:{hh*2048}\nds_read_b128 {vr(Lr+4,4)}, v{LA_} offset:{hh*2048+16}")
            for p in range(8):
                a(f"ds_read_b128 {vr(R+4*p,4)}, v{RA + (p>>2)} offset:{(p&3)*16384 + so[hh]}")
            if hh == 0 and after_first_barrier: after_first_barrier()
            a("s_waitcnt lgkmcnt(8)")
            a(f"v_add_f32 v{Lr}, v{Lr}, v{Lr+1}\nv_add_f32 v{Lr+2}, v{Lr+2}, v{Lr+3}\nv_add_f32 v{Lr+4}, v{Lr+4}, v{Lr+5}\nv_add_f32 v{Lr+6}, v{Lr+6}, v{Lr+7}")
            a(f"v_add_f32 v{Lr}, v{Lr}, v{Lr+2}\nv_add_f32 v{Lr+4}, v{Lr+4}, v{Lr+6}\nv_add_f32 v{Lr}, v{Lr}, v{Lr+4}\nv_rcp_f32 v{Lr}, v{Lr}")
            self.msum(D, PM, R, 8, 8)
        for hh in range(n):
            R = vB2 + 64*hh; D = R + 32; Lr = R + 48
            for j in range(8): a(f"v_mul_f32 v{D+j}, v{Lr}, v{D+j}")
            self.pack(D + 8, D, 4)
            if hh: a(f"s_add_u32 s{sT}, s{sOunit}, 8192")
            a(f"buffer_store_dwordx4 {vr(D+8,4)}, v{RA}, {sr(SRD['ws'],4)}, s{sT if hh else sOunit} offen sc1", ("ostore", hh))
        a("s_barrier")
        for k in range(keep): self.busy[(rs + k) % 4] = False
        self.pend_flag = (("ostore", n-1), sFlag, n, 0)
        if before_ack: before_ack()
        if urgent: self.flush_flag()
        self.fill()
    def queue_wo(self, wb, nsub, head0, sRot, p, sCt, inserts=None):
        a = self.a
        a(f"s_lshl_b32 s{p}, s{sW}, 20\ns_lshl_b32 s{sT}, s{sCt}, 7\ns_add_u32 s{p}, s{p}, s{sT}")
        if head0 is not None: a(f"s_lshl_b32 s{sT}, s{head0}, 18\ns_add_u32 s{p}, s{p}, s{sT}")
        l = []
        for t in range(nsub):
            l.append(self.queue(lambda t=t: a(f"s_add_u32 s{sD}, s{sRot}, {t}\ns_and_b32 s{sD}, s{sD}, {nsub-1}\ns_lshl_b32 s{sD}, s{sD}, 16\ns_add_u32 s{sD}, s{sD}, s{p}"),
                                wb, vD2048, "nt" if (t == 0 and self.cfg["ntW"]) else self.cfg["fl_wo"]))
            if inserts and t in inserts: inserts[t]()
        return l
    def queue_o(self, oreg, t, nsub, sRot, sO, name, gate=None):
        a = self.a
        for ks in range(2):
            def f(ks=ks):
                if ks == 0: a(f"s_add_u32 s{sD2}, s{sRot}, {t}\ns_and_b32 s{sD2}, s{sD2}, {nsub-1}\ns_lshl_b32 s{sD2}, s{sD2}, 11\ns_add_u32 s{sD2}, s{sD2}, s{sO}")
                a(f"buffer_load_dwordx4 {vr(oreg(t) + 4*ks, 4)}, v{vL16}, {sr(SRD['ws'],4)}, s{sD2} offen offset:{ks*1024} sc1", (name, t, ks))
            self.queue_ld(f, (name, t, ks), gate or name)
    def touch(self, buf, lg, sOff, dummy):
        self.a(f"v_lshlrev_b32 v{vX0}, {lg}, v{vL}\nbuffer_load_dword v{dummy}, v{vX0}, {sr(SRD[buf],4)}, s{sOff} offen", "touch")
    def queue_touch(self, buf, vaddr_fn, soff_fn, dummy, gate=None):
        a = self.a
        def f():
            v = vaddr_fn(); soff_fn()
            a(f"buffer_load_dword v{dummy}, v{v}, {sr(SRD[buf],4)}, s{sD2} offen {self.cfg['fl_t']}", "touch")
        self.queue_ld(f, "touch", gate)
    def flag_lanes(self, v, geo):
        a = self.a; W, NL, NB = geo
        wide = W*NL*NB > 64
        lw = (W // (2 if wide else 1)).bit_length() - 1; ll = NL.bit_length() - 1
        a(f"v_and_b32 v{v}, {(1 << lw) - 1}, v{vL}\nv_lshlrev_b32 v{v}, {3 if wide else 2}, v{v}")
        if NL > 1: a(f"v_bfe_u32 v{vX0 if v != vX0 else vX1}, v{vL}, {lw}, {ll}\nv_lshl_add_u32 v{v}, v{vX0 if v != vX0 else vX1}, 7, v{v}")
        if NB > 1: a(f"v_bfe_u32 v{vX0 if v != vX0 else vX1}, v{vL}, {lw + ll}, 2\nv_lshl_add_u32 v{v}, v{vX0 if v != vX0 else vX1}, 12, v{v}")
        return wide
    def chk_issue(self, v, sOff, geo):
        wide = self.flag_lanes(v + 2, geo)
        self.a(f"buffer_load_dword{'x2' if wide else ''} {vr(v, 2 if wide else 1)}, v{v+2}, {sr(SRD['ws'],4)}, s{sOff} offen sc1", ("chk", v))
        self.chk = (v, sOff, wide)
    def chk_wait(self, nap=None, before_spin=None):
        a = self.a; v, sOff, wide = self.chk
        L = self.newlabel("L_chk"); D = self.newlabel("L_ok")
        if a.has_vm(("chk", v)): a.wait_vm(("chk", v))
        a(f"s_mov_b32 s{sT2}, 0")
        a.fence(); a.label(L)
        if wide: a(f"v_and_b32 v{v}, v{v}, v{v+1}")
        a(f"v_cmp_ne_u32 vcc, 1, v{v}\ns_add_u32 s{sT2}, s{sT2}, 1\ns_nop 2\ns_cbranch_vccz {D}")
        a(f"s_cmp_lt_u32 s{sT2}, {self.cfg['spin']}\ns_cbranch_scc0 {D}\ns_sleep {self.cfg['nap'] if nap is None else nap}")
        a(f"buffer_load_dword{'x2' if wide else ''} {vr(v, 2 if wide else 1)}, v{v+2}, {sr(SRD['ws'],4)}, s{sOff} offen sc1\ns_waitcnt vmcnt(0)\ns_branch {L}")
        a.vm.pop()
        a.label(D)
    def chk_issue_cleared(self, v):
        self.a(f"v_lshlrev_b32 v{v}, 2, v{vL}\nbuffer_load_dword v{v}, v{v}, {sr(SRD['dbg'],4)}, 0 offen sc1", ("chk", v))
    def chk_cleared(self, v):
        a = self.a; D = self.newlabel("L_ok")
        if a.has_vm(("chk", v)): a.wait_vm(("chk", v))
        a(f"v_cmp_gt_u32 vcc, 4, v{v}")
        a.fence()
        a(f"s_cbranch_vccz {D}")
        keep = list(a.vm); self.poll_cleared(); a.vm = keep
        a.label(D)
    def poll_cleared(self):
        a = self.a; L = self.newlabel("L_pollc"); D = self.newlabel("L_pcdone")
        a(f"s_mov_b32 s{sT2}, 0\nv_lshlrev_b32 v{vX0}, 2, v{vL}")
        a.fence()
        a.label(L)
        a(f"buffer_load_dword v{vX1}, v{vX0}, {sr(SRD['dbg'],4)}, 0 offen sc1", "poll")
        a("s_waitcnt vmcnt(0)"); a.vm = []
        a(f"v_cmp_gt_u32 vcc, 4, v{vX1}\ns_add_u32 s{sT2}, s{sT2}, 1\ns_nop 2\ns_cbranch_vccz {D}")
        a(f"s_cmp_lt_u32 s{sT2}, {self.cfg['spin']}\ns_cbranch_scc0 {D}\ns_sleep {self.cfg['nap']}\ns_branch {L}")
        a.label(D)
    def run_oproj(self, subs, oreg, ACC, gate, zero_first, keep_last, hooks=None):
        def pre(t):
            self.wait_tag((gate, t, 1))
            if hooks and t in hooks: hooks[t]()
            if gate == "oa" and self.cfg.get("oasel"): self.stamp(48 + t)
        def mf(t, F):
            return [lambda ks=ks, ct=ct: self.mfma(ACC + 16*ct, F + 8*ks + 4*ct, oreg(t) + 4*ks, zero=(zero_first and t == 0 and ks == 0))
                    for ks in range(2) for ct in range(2)]
        self.steps(subs, lambda i, F: self.t_reads(i, vT, F), mf, self.cfg["LAo"], keep_last=keep_last, pre=pre)
        return subs[-2] % 4
    def out_reduce(self, ACC, rs, TMP, sOutOff=None, add=None, sPart=None):
        a = self.a
        a(f"v_lshrrev_b32 v{vX1}, 5, v{vL}\nv_and_b32 v{vX0}, 31, v{vL}\nv_xor_b32 v{vX0}, v{vX0}, v{vX1}\nv_lshlrev_b32 v{vX0}, 4, v{vX0}")
        a(f"v_lshlrev_b32 v{vX1}, 9, v{vX1}\nv_add3_u32 v{vX0}, v{vX0}, v{vX1}, s{sRB}")
        for i in range(1, 8):
            a(f"v_xor_b32 v{vF+i}, {32*i}, v{vX0}")
        a(f"v_lshrrev_b32 v{vF+8}, 4, v{vL}\ns_lshl_b32 s{sT}, s{sW}, 2\nv_add_u32 v{vF+8}, s{sT}, v{vF+8}\nv_and_b32 v{vF+9}, 15, v{vL}")
        a(f"v_xor_b32 v{vF+10}, v{vF+8}, v{vF+9}\nv_lshlrev_b32 v{vF+10}, 4, v{vF+10}\nv_lshl_add_u32 v{vF+10}, v{vF+9}, 9, v{vF+10}\nv_add_u32 v{vF+11}, 0x10000, v{vF+10}")
        a(f"v_lshlrev_b32 v{vF+8}, 12, v{vF+8}\nv_lshl_add_u32 v{vF+8}, v{vF+9}, 3, v{vF+8}")
        for i in range(8):
            a(f"ds_write_b128 v{vF+i if i else vX0}, {vr(ACC+4*i,4)} offset:{rs*4096 + i*1024}")
        self.bar()
        for p in range(8):
            a(f"ds_read_b128 {vr(TMP+4*p,4)}, v{vF+10 + (p>>2)} offset:{(p&3)*16384 + rs*4096}")
        for p in range(0 if add is not None else 1, 8):
            a(f"s_waitcnt lgkmcnt({7-p})")
            for j in range(4):
                a(f"v_add_f32 v{TMP+j}, v{TMP+j}, v{(TMP+4*p+j) if p else (add+j)}")
        if sPart is not None:
            a(f"buffer_store_dwordx4 {vr(TMP,4)}, v{vL16}, {sr(SRD['ws'],4)}, s{sPart} offen sc1", "pstore")
            a("s_barrier")
            self.busy[rs] = self.busy[rs+1] = False
        else:
            self.pack(TMP + 4, TMP, 2)
            a(f"buffer_store_dwordx2 {vr(TMP+4,2)}, v{vF+8}, {sr(SRD['out'],4)}, s{sOutOff} offen", "out")
    def prologue(self):
        a = self.a
        if self.cfg.get("early0"): a("s_memrealtime s[94:95]")
        a("s_cmp_ge_u32 s2, 256\ns_cbranch_scc1 L_end")
        a(f"s_load_dwordx16 s[{KA}:{KA+15}], s[0:1], 0\ns_load_dwordx8 s[{KA+16}:{KA+23}], s[0:1], 64\ns_load_dwordx2 s[{KA+24}:{KA+25}], s[0:1], 96")
        a(f"v_lshrrev_b32 v1, 6, v0\nv_and_b32 v{vL}, 63, v0\nv_readfirstlane_b32 s{sW}, v1")
        for k in ORDER:
            a(f"s_mov_b32 s{SRD[k]+2}, {SIZE[k]:#x}\ns_mov_b32 s{SRD[k]+3}, 0x20000")
        a(f"s_lshl_b32 s{sRB}, s{sW}, 14\ns_and_b32 s{sX}, s2, 7\ns_bfe_u32 s{sJJ}, s2, 0x40003")
        a(f"v_lshlrev_b32 v{vL16}, 4, v{vL}")
        t0, t1, t2 = vF, vF+1, vF+2
        a(f"v_bfe_u32 v{t0}, v{vL}, 4, 1\nv_lshlrev_b32 v{t0}, 2, v{t0}\nv_lshrrev_b32 v{t1}, 5, v{vL}\nv_or_b32 v{t0}, v{t0}, v{t1}")
        a(f"v_and_b32 v{t1}, 7, v{vL}\nv_xor_b32 v{t0}, v{t0}, v{t1}\nv_lshlrev_b32 v{t0}, 4, v{t0}")
        a(f"v_xor_b32 v{t1}, 32, v{t0}\nv_lshrrev_b32 v{t2}, 3, v{vL}")
        for vs, lg in ((vD2048, 11), (vD8192, 13), (vD256, 8)):
            for i in range(4):
                a(f"v_lshl_add_u32 v{vs+i}, v{t2}, {lg}, v{t1 if i & 1 else t0}")
                if i: a(f"v_add_u32 v{vs+i}, {(8*i << lg) - 1024*i}, v{vs+i}")
    def copy_ptrs(self, names):
        for k in names:
            o = KA + 2*ORDER.index(k)
            self.a(f"s_mov_b32 s{SRD[k]}, s{o}\ns_mov_b32 s{SRD[k]+1}, s{o+1}")
    def read_addrs(self, need_q=True):
        a = self.a; t0, t1, t2, t3 = vF, vF+1, vF+2, vF+3
        a(f"v_bfe_u32 v{t0}, v{vL}, 1, 1\nv_lshlrev_b32 v{t0}, 2, v{t0}\nv_bfe_u32 v{t1}, v{vL}, 2, 2\nv_or_b32 v{t0}, v{t0}, v{t1}")
        a(f"v_lshrrev_b32 v{t1}, 5, v{vL}\nv_xor_b32 v{t0}, v{t0}, v{t1}\nv_lshlrev_b32 v{t0}, 4, v{t0}")
        a(f"v_and_b32 v{t1}, 31, v{vL}\nv_lshl_add_u32 v{t0}, v{t1}, 7, v{t0}\nv_add_u32 v{vN}, s{sRB}, v{t0}")
        for s in range(1, 4): a(f"v_xor_b32 v{vN+s}, {32*s}, v{vN}")
        for base, nat in ((vT, False), (vTq, True))[:2 if need_q else 1]:
            if nat:
                a(f"v_and_b32 v{t0}, 1, v{vL}\nv_bfe_u32 v{t1}, v{vL}, 1, 1")
            else:
                a(f"v_bfe_u32 v{t0}, v{vL}, 1, 1\nv_and_b32 v{t1}, 1, v{vL}")
            a(f"v_bfe_u32 v{t2}, v{vL}, 4, 1\nv_lshl_add_u32 v{t0}, v{t2}, 1, v{t0}")
            a(f"v_bfe_u32 v{t2}, v{vL}, 3, 1\nv_lshlrev_b32 v{t2}, 2, v{t2}\nv_xor_b32 v{t0}, v{t0}, v{t2}")
            a(f"v_lshrrev_b32 v{t2}, 5, v{vL}")
            if nat: a(f"v_lshlrev_b32 v{t3}, 1, v{t2}\nv_xor_b32 v{t0}, v{t0}, v{t3}")
            else:   a(f"v_xor_b32 v{t0}, v{t0}, v{t2}")
            a(f"v_lshlrev_b32 v{t0}, 4, v{t0}\nv_lshl_add_u32 v{t0}, v{t1}, 3, v{t0}")
            a(f"v_bfe_u32 v{t1}, v{vL}, 2, 2\nv_lshl_add_u32 v{t1}, v{t2}, {3 if nat else 2}, v{t1}")
            a(f"v_lshl_add_u32 v{t0}, v{t1}, 7, v{t0}\nv_add_u32 v{base}, s{sRB}, v{t0}")
            ux, ur = (16, 4*128) if nat else (32, 8*128)
            a(f"v_xor_b32 v{base+1}, {ux}, v{base}\nv_add_u32 v{base+1}, {ur}, v{base+1}")
            a(f"v_xor_b32 v{base+2}, 64, v{base}\nv_xor_b32 v{base+3}, 64, v{base+1}")
    def flag_off(self, dst, branch, sB, sH, base=WS_FLAG):
        a = self.a
        a(f"s_lshl_b32 s{dst}, s{sB}, 12\ns_lshl_b32 s{sT}, s{sH}, 7\ns_add_u32 s{dst}, s{dst}, s{sT}\ns_add_u32 s{dst}, s{dst}, {base + branch*32768}")
    def clear_flags(self, offs):
        a = self.a; L = self.newlabel("L_clr")
        a(f"s_cmp_lg_u32 s{sW}, 0\ns_cbranch_scc1 {L}")
        a(f"v_mov_b32 v{vX1}, 0")
        for s_, nl, code in offs:
            a(code or f"v_lshlrev_b32 v{vX0}, 2, v{vL}")
            a(f"s_mov_b64 exec, {(1 << nl) - 1:#x}\nbuffer_store_dword v{vX1}, v{vX0}, {sr(SRD['ws'],4)}, s{s_} offen sc1\ns_mov_b64 exec, -1")
            a.vm.pop()
        a.label(L)
    def signal_cleared(self):
        a = self.a; L = self.newlabel("L_sig")
        a(f"s_cmp_lg_u32 s{sW}, 0\ns_cbranch_scc1 {L}")
        a(f"v_mov_b32 v{vX1}, 1\ns_mov_b64 exec, 1\ns_and_b32 s{sT}, s2, 63\ns_lshl_b32 s{sT}, s{sT}, 2\nbuffer_atomic_add v{vX1}, off, {sr(SRD['dbg'],4)}, s{sT} sc1\ns_mov_b64 exec, -1")
        a.vm.pop()
        a.label(L)
    def role_common_B(self):
        pass
    def oproj_params(self, sBo, sCt, sO_, sF_, sOut, branch):
        a = self.a
        a(f"s_lshr_b32 s{sBo}, s{sJJ}, 1\ns_and_b32 s{sT}, s{sJJ}, 1\ns_lshl_b32 s{sCt}, s{sX}, 1\ns_add_u32 s{sCt}, s{sCt}, s{sT}")
        a(f"s_lshl_b32 s{sO_}, s{sBo}, 18\ns_lshl_b32 s{sT}, s{sW}, 15\ns_add_u32 s{sO_}, s{sO_}, s{sT}")
        a(f"s_lshl_b32 s{sF_}, s{sBo}, 12\ns_lshl_b32 s{sT}, s{sW}, 9\ns_add_u32 s{sF_}, s{sF_}, s{sT}\ns_add_u32 s{sF_}, s{sF_}, {WS_FLAG + branch*32768}")
        a(f"s_lshl_b32 s{sOut}, s{sBo}, 17\ns_lshl_b32 s{sT}, s{sCt}, 7\ns_add_u32 s{sOut}, s{sOut}, s{sT}")
        if branch: a(f"s_add_u32 s{sO_}, s{sO_}, {2 << 20}\ns_add_u32 s{sOut}, s{sOut}, 2048")
    def unit_ids(self):
        a = self.a
        a(f"s_and_b32 s{sT}, s{sJJ}, 3\ns_lshl_b32 s{sHB}, s{sX}, 2\ns_add_u32 s{sHB}, s{sHB}, s{sT}")
        a(f"s_and_b32 s{sT}, s{sJJ}, 2\ns_lshl_b32 s{sT}, s{sT}, 1\ns_lshr_b32 s{sBB}, s{sJJ}, 2\ns_add_u32 s{sBB}, s{sBB}, s{sT}")
    def load_q(self, dst, sQo):
        a = self.a
        a(f"s_add_u32 s{sT}, s{sQo}, 4096")
        for f in range(8):
            a(f"buffer_load_dwordx4 {vr(dst+4*f,4)}, v{vL16}, {sr(SRD['ws'],4)}, s{sT if f >= 4 else sQo} offen offset:{(f&3)*1024} sc1", ("q", f))
    def half_params(self, sBo, sH, sO_, sF_, late):
        a = self.a
        a(f"s_lshr_b32 s{sH}, s{sBo}, 2\ns_lshl_b32 s{sH}, s{sH}, 1")
        if late: a(f"s_xor_b32 s{sH}, s{sH}, 2")
        a(f"s_lshl_b32 s{sT}, s{sH}, 7\ns_add_u32 s{sF_}, s{sF_}, s{sT}\ns_lshl_b32 s{sT}, s{sH}, 13\ns_add_u32 s{sO_}, s{sO_}, s{sT}")
    def lanes2(self, T, lgrow):
        def f():
            self.a(f"v_lshrrev_b32 v{T}, 1, v{vL}\nv_lshlrev_b32 v{T}, {lgrow}, v{T}\nv_and_b32 v{T+1}, 1, v{vL}\nv_lshl_add_u32 v{T}, v{T+1}, 7, v{T}"); return T
        return f
    def lin(self, T, lg):
        def f():
            self.a(f"v_lshlrev_b32 v{T}, {lg}, v{vL}"); return T
        return f
    def part_off(self, sPo, sPf, sB, sCt, sKq, branch):
        a = self.a
        a(f"s_lshl_b32 s{sT}, s{sB}, 4\ns_add_u32 s{sT}, s{sT}, s{sCt}\ns_lshl_b32 s{sPf}, s{sT}, 7\ns_lshl_b32 s{sT}, s{sT}, 3\ns_add_u32 s{sT}, s{sT}, s{sKq}")
        a(f"s_lshl_b32 s{sPo}, s{sT}, 12\ns_add_u32 s{sPo}, s{sPo}, {WS_P + branch*(4 << 20)}\ns_lshl_b32 s{sT}, s{sKq}, 2\ns_add_u32 s{sPf}, s{sPf}, s{sT}\ns_add_u32 s{sPf}, s{sPf}, {WS_PFLAG + branch*16384}")
    def move4(self, op, reg, sOff, tag):
        for f in range(4):
            self.a(f"buffer_{op}_dwordx4 {vr(reg+4*f,4)}, v{vL16}, {sr(SRD['ws'],4)}, s{sOff} offen offset:{f*1024} sc1", tag)
    def unpack(self, dst, src, n):
        a = self.a
        a(f"s_mov_b32 s{sT2}, 0xffff0000")
        for k in range(n):
            a(f"v_lshlrev_b32 v{dst+2*k}, 16, v{src+k}\nv_and_b32 v{dst+2*k+1}, s{sT2}, v{src+k}")
    def fetch_q(self, sQo, nk):
        a = self.a
        a(f"s_lshl_b32 s{sT}, s{sW}, {10 + nk - 1}\ns_add_u32 s{sT2}, s{sT}, {QX}\ns_add_u32 s{sT}, s{sT}, s{sQo}\ns_mov_b32 s{sT3}, m0\ns_mov_b32 m0, s{sT2}")
        for k in range(nk):
            a(f"buffer_load_dwordx4 v{vL16}, {sr(SRD['ws'],4)}, s{sT} offen offset:{1024*k} sc1 lds", "qdma")
        a(f"s_mov_b32 m0, s{sT3}")
    def read_q(self, dst, nf):
        a = self.a
        if a.has_vm("qdma"): a.wait_vm("qdma")
        a(f"v_add_u32 v{vX0}, {QX}, v{vL16}\ns_barrier")
        for f in range(nf):
            if f == 12: a("s_waitcnt lgkmcnt(4)")
            a(f"ds_read_b128 {vr(dst+4*f,4)}, v{vX0} offset:{f*1024}")
    def role_S(self):
        a = self.a; c = self.cfg
        self.start_role()
        self.stamp_regs = list(range(24, 28)) + list(range(85, 87)) + [100, 101, 95] + list(range(8, 12)) + list(range(28, 32)) + list(range(20, 24)) + list(range(40, 44)); self.stamped = []
        P = sP
        self.unit_ids()
        a("s_waitcnt lgkmcnt(0)")
        self.copy_ptrs(ORDER)
        (sU1, sU2, sO1, sO2, sF1, sF2, sB2, sQo, sQf, sBo, sCt, sOC, sFC, sOut, sH2, sPo, sPf, p1, p2, pwo, sRot) = range(P, P + 21)
        T2, D2 = vTq, vTq + 2
        self.K = c["K0"]
        for names, touch in ((("xA", "xB"), c["touchX"]), (("wqA", "wqB"), c["touchWA"])):
            if not touch: continue
            a(f"s_cmp_lt_u32 s{sX}, 4")
            for k in range(3): a(f"s_cselect_b32 s{sG+k}, s{SRD[names[0]]+k}, s{SRD[names[1]]+k}")
            a(f"s_mov_b32 s{sG+3}, 0x20000")
            if names[0] == "xA":
                a(f"s_lshl_b32 s{sD2}, s{sJJ}, 15\ns_lshl_b32 s{sT}, s{sW}, 12\ns_add_u32 s{sD2}, s{sD2}, s{sT}")
                self.queue_touch("G", self.lin(T2, 6), lambda: None, D2)
            else:
                a(f"s_and_b32 s{sT}, s{sJJ}, 7\ns_lshl_b32 s{sT2}, s{sT}, 2\ns_and_b32 s{sT3}, s{sJJ}, 8\ns_lshl_b32 s{sT3}, s{sT3}, 1\ns_add_u32 s{sT2}, s{sT2}, s{sT3}\ns_and_b32 s{sT3}, s{sX}, 1\ns_lshl_b32 s{sT3}, s{sT3}, 1\ns_add_u32 s{sT2}, s{sT2}, s{sT3}")
                a(f"s_add_u32 s{sT2}, s{sT2}, s{sW}\ns_add_u32 s{sT2}, s{sT2}, 8\ns_and_b32 s{sT2}, s{sT2}, 31\ns_lshl_b32 s{sD2}, s{sT2}, 18\ns_and_b32 s{sT3}, s{sX}, 3\ns_lshl_b32 s{sT3}, s{sT3}, 3\ns_add_u32 s{sT}, s{sT}, s{sT3}\ns_lshl_b32 s{sT}, s{sT}, 8\ns_add_u32 s{sD2}, s{sD2}, s{sT}")
                self.queue_touch("G", self.lanes2(T2, 13), lambda: None, D2)
            self.pump(1)
        a(f"s_lshl_b32 s{sU1}, s{sBB}, 5\ns_add_u32 s{sU1}, s{sU1}, s{sHB}\ns_xor_b32 s{sU2}, s{sU1}, 128\ns_xor_b32 s{sB2}, s{sBB}, 4")
        sRB_ = None
        if c["rotB"]:
            sRB_ = 87
            a({1: f"s_lshr_b32 s87, s{sJJ}, 2", 2: f"s_and_b32 s87, s{sX}, 3", 3: f"s_lshr_b32 s87, s{sJJ}, 2\ns_add_u32 s87, s87, s{sX}", 4: f"s_and_b32 s87, s{sJJ}, 3"}[c["rotB"]])
        a1 = self.queue_attn("kB", "vB", sU1, sRB_, p1, c["fl_kvB"])
        sKV = 88
        for buf, pos in sorted((("kA", c["touchK"]), ("vA", c["touchV"])), key=lambda e: -(e[1] or 0)):
            if pos is None: continue
            q = list(self.q); n = 4*pos; self.q = deque(q[:n])
            self.queue_touch(buf, self.lin(T2, 7), lambda: a(f"s_mov_b32 s{sD2}, s{sKV}"), D2); self.q.extend(q[n:])
        self.fill()
        a(f"s_and_b32 s{sT}, s{sX}, 1\ns_lshl_b32 s{sT}, s{sT}, 2\ns_lshr_b32 s{sT2}, s{sJJ}, 2\ns_add_u32 s{sT}, s{sT}, s{sT2}\ns_lshl_b32 s{sT}, s{sT}, 2\ns_lshr_b32 s{sT2}, s{sX}, 1\ns_add_u32 s{sT}, s{sT}, s{sT2}\ns_lshl_b32 s{sKV}, s{sT}, 18")
        a(f"s_and_b32 s{sT}, s{sJJ}, 3\ns_lshl_b32 s{sT}, s{sT}, 16\ns_add_u32 s{sKV}, s{sKV}, s{sT}\ns_lshl_b32 s{sT}, s{sW}, 13\ns_add_u32 s{sKV}, s{sKV}, s{sT}")
        self.flag_off(sF1, 1, sBB, sHB); self.flag_off(sF2, 1, sB2, sHB)
        self.clear_flags([(sF1, 8, None), (sF2, 8, None)])
        self.stamp(0)
        self.read_addrs(need_q=False)
        self.flag_off(sQf, 1, sBB, sHB, WS_QFLAG)
        a(f"s_lshl_b32 s{sO1}, s{sU1}, 13\ns_add_u32 s{sQo}, s{sO1}, {WS_Q + (2 << 20)}\ns_add_u32 s{sO1}, s{sO1}, {WS_O + (2 << 20)}\ns_xor_b32 s{sO2}, s{sO1}, {1 << 20}")
        a(f"s_lshl_b32 s{sT}, s{sW}, 2\ns_add_u32 s{sF1}, s{sF1}, s{sT}\ns_add_u32 s{sF2}, s{sF2}, s{sT}")
        a2 = self.queue_attn("kB", "vB", sU2, sRB_, p2, c["fl_kvB"])
        self.oproj_params(sBo, sCt, sOC, sFC, sOut, 1)
        self.half_params(sBo, sH2, sOC, sFC, True)
        a(f"s_lshl_b32 s{sPf}, s2, 7\ns_lshl_b32 s{sT}, s{sW}, 2\ns_add_u32 s{sPf}, s{sPf}, s{sT}\ns_add_u32 s{sPf}, s{sPf}, {WS_PFLAG + 16384}")
        a(f"s_lshl_b32 s{sPo}, s2, 3\ns_add_u32 s{sPo}, s{sPo}, s{sW}\ns_lshl_b32 s{sPo}, s{sPo}, 10\ns_add_u32 s{sPo}, s{sPo}, {WS_P + (4 << 20)}")
        a(f"s_and_b32 s{sT}, s{sCt}, {c['rotO'] & 1}\ns_lshl_b32 s{sT}, s{sT}, 2\ns_add_u32 s{sRot}, s{sBo}, s{sT}")
        wB2 = self.queue_wo("woB", 8, sH2, sRot, pwo, sCt)
        oregC = lambda t: (vB1 + 32 + 8*t) if t < 4 else (vF + 8*(t-4))
        for t in range(8): self.queue_o(oregC, t, 8, sRot, sOC, "oc")
        CK = vD8192 + 1
        for t, i in enumerate(a1[0]):
            self.wait_sub(i); self.stamp(34 + t)
            if t == 0: self.signal_cleared()
            if t == c["K0n"]: self.K = c["K"]
            if t == 4: self.chk_issue_cleared(CK)
            if t == 6: self.chk_cleared(CK)
            if t == c["qchk"] and not c["vhold"]: self.chk_issue(CK, sQf, (2, 1, 1))
            for r in self.n_reads(i, vB2 + 16*t): r()
            a("s_waitcnt lgkmcnt(0)")
            self.free(i)
        self.stamp(16)
        held = {}
        if c["vhold"]:
            self.pump(c["vh1"]); self.chk_issue(CK, sQf, (2, 1, 1)); self.pump(c["vh2"])
            if a.has_vm(("chk", CK)): a.wait_vm(("chk", CK))
            Ls, Lj = self.newlabel("L_late"), self.newlabel("L_join")
            a(f"v_cmp_ne_u32 vcc, 1, v{CK}"); a.fence(); a(f"s_cbranch_vccnz {Ls}")
            snap = (deque(self.q), list(self.busy), list(a.vm), set(self.done_issue))
            main = a.lines; a.lines = []
            a.label(Ls); self.pump(16); self.chk_wait(nap=c["napq"]); self.fetch_q(sQo, 1); a(f"s_waitcnt vmcnt(0)\ns_branch {Lj}")
            self.cold.extend(a.lines); a.lines = main
            self.q, self.busy, a.vm, self.done_issue = snap
            self.fetch_q(sQo, 1); self.pump(16)
            if a.has_vm("qdma"): a.wait_vm("qdma")
            a.fence(); a.label(Lj)
            held = {0: vB2 + 32, 1: vB2 + 96, 2: vB2 + 112}
        else:
            self.pump(c["prepoll"])
            self.chk_wait(nap=c["napq"])
            self.fetch_q(sQo, 1)
        self.stamp(17)
        self.read_q(vF, 8)
        for t in range(8):
            ti, dh = t >> 1, t & 1
            for s_ in range(4):
                if t < 2: a(f"s_waitcnt lgkmcnt({7 - 4*dh - s_})")
                self.mfma(vB1 + 16*ti, vB2 + 16*t + 4*s_, vF + 16*dh + 4*s_, zero=(dh == 0 and s_ == 0))
            if t >= 1: self.pump(1, wait=False)
        for t, r in held.items():
            self.landed(("sub", a1[1][t])); self.tr_reads(a1[1][t], vT, r); a("s_waitcnt lgkmcnt(0)"); self.free(a1[1][t])
            self.pump(c["vh3"], wait=False)
        def chkq2():
            a(f"s_xor_b32 s{sQf}, s{sQf}, 16384\ns_xor_b32 s{sQo}, s{sQo}, {1 << 20}")
            self.chk_issue(CK, sQf, (2, 1, 1))
        def loadq2():
            self.chk_wait(); self.fetch_q(sQo, 1)
        self.attn_rest(1, a1[1], vB1, vB2 + 64, sO1, sF1, (7, 8, 9), after_softmax=chkq2, after_first_barrier=loadq2, held=held)
        self.stamp(10)
        self.read_q(vB1, 8); a("s_waitcnt lgkmcnt(0)")
        self.K = c["Kk2"] or c["K"]
        self.qk(1, a2[0])
        self.K = c["Kv2"] or c["K"]
        W = vB2; ACC = vB1
        wreg = lambda t: vB2 + 16*((t + 4) % 8)
        def grab(t):
            self.tr_reads(wB2[t], vT, wreg(t)); a("s_waitcnt lgkmcnt(0)"); self.free(wB2[t])
        def early():
            self.pump(c["earlyP"], wait=False)
            for t in range(c["earlyW"]):
                self.landed(("sub", wB2[t])); grab(t); self.pump(4, wait=False)
        self.attn_rest(1, a2[1], vB2, vB1, sO2, sF2, (11, 12, 13), urgent=True, before_ack=early)
        self.stamp(14)
        self.K = c["Khit"]
        for t, i in enumerate(wB2):
            if t < c["earlyW"]: continue
            self.wait_sub(i)
            if t == 2: self.chk_issue(CK, sPf, (1, 1, 1))
            if t == c["pbt"]:
                self.chk_wait(nap=c["napq"])
                a(f"buffer_load_dwordx4 {vr(vM,4)}, v{vL16}, {sr(SRD['ws'],4)}, s{sPo} offen sc1", "pb")
            grab(t)
        self.chk_issue(CK, sFC, (8, 2, 1))
        self.stamp(15)
        self.chk_wait(nap=c["naptail"])
        self.stamp(18)
        self.gates.add("oc"); self.K = c["Ktail"]
        for t in range(8):
            for ks in range(2):
                self.wait_tag(("oc", t, ks))
                for ct in range(2):
                    self.mfma(ACC + 16*ct, wreg(t) + 8*ks + 4*ct, oregC(t) + 4*ks, zero=(t == 0 and ks == 0))
        self.out_reduce(ACC, 0, vB2, sOut, add=vM)
        self.stamp(1)
        a("s_endpgm")
        a.reset_keep_t()
    def role_G(self):
        a = self.a; c = self.cfg
        self.start_role()
        self.stamp_regs = list(range(32, 40)) + [100, 101, 95] + list(range(84, 89)); self.stamped = []
        P = sP
        (sBr, sHq, sBh, sBA, sHA, sRotK, sUA, sOa, sFa, sQo, sQf, sCq, pg, pg1, pg2, paa, sA, sB_, sC, sE) = range(P, P + 20)
        a("s_waitcnt lgkmcnt(0)")
        self.copy_ptrs(ORDER)
        a(f"s_lshr_b32 s{sBr}, s{sX}, 2\ns_and_b32 s{sT}, s{sJJ}, 7\ns_and_b32 s{sHq}, s{sX}, 3\ns_lshl_b32 s{sHq}, s{sHq}, 3\ns_add_u32 s{sHq}, s{sHq}, s{sT}\ns_lshr_b32 s{sBh}, s{sJJ}, 3")
        a(f"s_lshl_b32 s{pg2}, s{sT}, 1\ns_lshl_b32 s{sT}, s{sBh}, 3\ns_add_u32 s{pg2}, s{pg2}, s{sT}\ns_and_b32 s{sT}, s{sX}, 1\ns_add_u32 s{pg2}, s{pg2}, s{sT}")
        a(f"s_lshl_b32 s{sT}, s{sBh}, 2\ns_add_u32 s{sT}, s{sT}, s{sW}\ns_lshl_b32 s{sT}, s{sT}, 16")
        a(f"s_bfe_u32 s{sT2}, s{sW}, 0x10001\ns_lshl_b32 s{sT2}, s{sT2}, 18\ns_and_b32 s{sT3}, s{sW}, 1\ns_lshl_b32 s{sT3}, s{sT3}, 7\ns_add_u32 s{sT2}, s{sT2}, s{sT3}\ns_lshl_b32 s{sT3}, s{sHq}, 8\ns_add_u32 s{sT2}, s{sT2}, s{sT3}")
        a(f"s_cmp_lt_u32 s{sW}, 4\ns_cselect_b32 s{pg}, s{sT}, s{sT2}\ns_cselect_b32 s{pg1}, 7, 19\ns_cselect_b64 vcc, -1, 0")
        for k in range(4): a(f"v_cndmask_b32 v{vGa+k}, v{vD8192+k}, v{vD2048+k}, vcc")
        qs = self.queue_cg(16, pg, lambda: self.pick("xA", "wqA", sBr, "xB", "wqB"), c["fl_w"], nfirst=c["ntQ"])
        self.K = 16
        for k in range(c["KG0"] // 4):
            if k and c["barfill"]: a("s_barrier")
            self.pump(4, wait=False)
        a(f"s_and_b32 s{sT3}, s{sX}, 1\ns_lshl_b32 s{sBA}, s{sT3}, 2\ns_lshr_b32 s{sT}, s{sJJ}, 2\ns_add_u32 s{sBA}, s{sBA}, s{sT}")
        a(f"s_and_b32 s{sRotK}, s{sJJ}, 3\ns_lshr_b32 s{sT2}, s{sX}, 1\ns_lshl_b32 s{sHA}, s{sT2}, 3\ns_lshl_b32 s{sT}, s{sRotK}, 1\ns_add_u32 s{sHA}, s{sHA}, s{sT}")
        a(f"s_lshl_b32 s{sUA}, s{sBA}, 2\ns_add_u32 s{sUA}, s{sUA}, s{sT2}\ns_and_b32 s{sCq}, s{sJJ}, 7")
        self.flag_off(sFa, 0, sBA, sHA)
        a(f"s_lshl_b32 s{sA}, s{sBr}, 3\ns_lshl_b32 s{sT}, s{sBh}, 2\ns_add_u32 s{sA}, s{sA}, s{sT}")
        self.flag_off(sQf, 0, sA, sHq, WS_QFLAG)
        a(f"s_lshl_b32 s{sA}, s{sBh}, 13\ns_lshl_b32 s{sT}, s{sCq}, 8\ns_add_u32 s{sA}, s{sA}, s{sT}\ns_lshl_b32 s{sT}, s{sX}, 2\ns_add_u32 s{sA}, s{sA}, s{sT}\ns_add_u32 s{sA}, s{sA}, {WS_PFLAG}")
        a(f"s_and_b32 s{sB_}, s2, 127\ns_lshl_b32 s{sB_}, s{sB_}, 7\ns_add_u32 s{sB_}, s{sB_}, {WS_PFLAG + 16384}")
        self.clear_flags([(sFa, 16, f"v_lshrrev_b32 v{vX0}, 3, v{vL}\nv_lshlrev_b32 v{vX0}, 7, v{vX0}\nv_and_b32 v{vF}, 7, v{vL}\nv_lshl_add_u32 v{vX0}, v{vF}, 2, v{vX0}"),
                          (sQf, 8, f"v_lshrrev_b32 v{vX0}, 1, v{vL}\nv_lshlrev_b32 v{vX0}, 12, v{vX0}\nv_and_b32 v{vF}, 1, v{vL}\nv_lshl_add_u32 v{vX0}, v{vF}, 2, v{vX0}"),
                          (sA, 8, f"v_bfe_u32 v{vF}, v{vL}, 1, 2\nv_lshlrev_b32 v{vX0}, 11, v{vF}\nv_and_b32 v{vF}, 1, v{vL}\nv_lshl_add_u32 v{vX0}, v{vF}, 7, v{vX0}"),
                          (sB_, 8, None)])
        self.stamp(0)
        self.read_addrs()
        self.cg_addr(False, vTq)
        a(f"s_lshl_b32 s{sOa}, s{sBA}, 5\ns_add_u32 s{sOa}, s{sOa}, s{sHA}\ns_lshl_b32 s{sOa}, s{sOa}, 13")
        a(f"s_lshl_b32 s{sT}, s{sW}, 2\ns_add_u32 s{sFa}, s{sFa}, s{sT}")
        a(f"s_and_b32 s{sT}, s{sW}, 3\ns_lshl_b32 s{sT2}, s{sT}, 12\ns_add_u32 s{sQf}, s{sQf}, s{sT2}\ns_lshr_b32 s{sT3}, s{sW}, 2\ns_lshl_b32 s{sT2}, s{sT3}, 2\ns_add_u32 s{sQf}, s{sQf}, s{sT2}")
        a(f"s_lshl_b32 s{sQo}, s{sBr}, 3\ns_lshl_b32 s{sT2}, s{sBh}, 2\ns_add_u32 s{sQo}, s{sQo}, s{sT2}\ns_add_u32 s{sQo}, s{sQo}, s{sT}\ns_lshl_b32 s{sQo}, s{sQo}, 5\ns_add_u32 s{sQo}, s{sQo}, s{sHq}\ns_lshl_b32 s{sQo}, s{sQo}, 1\ns_add_u32 s{sQo}, s{sQo}, s{sT3}\ns_lshl_b32 s{sQo}, s{sQo}, 12\ns_add_u32 s{sQo}, s{sQo}, {WS_Q}")
        a(f"s_mov_b32 s{sBr}, s{sBh}")
        self.queue_ld(lambda: None, ("gate", "ka"), "ka")
        aa = self.queue_attn("kA", "vA", sUA, sRotK, paa, c["fl_kvA"])
        CK = vD8192 + 1
        ACC = vB1
        self.run_cg(qs, False, ACC, c["LAq"], stamp0=32 if c.get("qasel") else None,
                    hooks={0: self.signal_cleared, 9: lambda: self.chk_issue_cleared(CK), 13: lambda: self.chk_cleared(CK)})
        self.stamp(20)
        a(f"s_mov_b32 s{sT3}, {f2u(SCALE):#x}")
        for f in range(4):
            for j in range(8): a(f"v_mul_f32 v{ACC+8*f+j}, s{sT3}, v{ACC+8*f+j}")
            self.pack(ACC + 32 + 4*f, ACC + 8*f, 4)
            a(f"buffer_store_dwordx4 {vr(ACC+32+4*f,4)}, v{vL16}, {sr(SRD['ws'],4)}, s{sQo} offen offset:{f*1024} sc1", "qstore")
        self.gates.add("ka")
        self.pump(c["preA0"], wait=False)
        a.wait_vm("qstore"); self.set_flag(sQf)
        self.stamp(22)
        self.K = c["Khit"]
        self.pump(c["preA"])
        self.flag_off(sQf, 0, sBA, sHA, WS_QFLAG)
        self.chk_issue(CK, sQf, (2, 2, 1)); self.pump(c["preA2"]); self.chk_wait(nap=c["napq"])
        self.stamp(7)
        a(f"s_add_u32 s{sQo}, s{sOa}, {WS_Q}")
        self.fetch_q(sQo, 2)
        self.pump(c["preA3"], wait=False)
        sPo, sPf, sFl, sFb, sBo, sCt, sPo2, sPf2, sOut = sQo, sQf, sHq, sBh, sA, sB_, sC, sE, sBA
        def og_first(branch):
            def f():
                self.pick("ws", "woB" if branch else "woA")
                a(f"s_lshl_b32 s{sT3}, s{sX}, 2")
                if branch: a(f"s_lshl_b32 s{sT}, s{sBr}, 1\ns_add_u32 s{sT3}, s{sT3}, s{sT}")
                a(f"s_lshl_b32 s{sT}, s{sBr}, 2\ns_add_u32 s{sT}, s{sT}, s{sW}\ns_lshl_b32 s{sT}, s{sT}, 5\ns_add_u32 s{sT}, s{sT}, s{sT3}\ns_lshl_b32 s{sT}, s{sT}, 13\ns_add_u32 s{sT}, s{sT}, {WS_O + branch*(2 << 20)}")
                a(f"s_lshl_b32 s{sT3}, s{sT3}, 18\ns_bfe_u32 s{sT2}, s{sW}, 0x10001\ns_lshl_b32 s{sT2}, s{sT2}, 16\ns_add_u32 s{sT3}, s{sT3}, s{sT2}\ns_and_b32 s{sT2}, s{sW}, 1\ns_lshl_b32 s{sT2}, s{sT2}, 7\ns_add_u32 s{sT3}, s{sT3}, s{sT2}\ns_lshl_b32 s{sT2}, s{sCq}, 8\ns_add_u32 s{sT3}, s{sT3}, s{sT2}")
                a(f"s_lshl_b32 s{pg2}, s{sBr}, 2\ns_add_u32 s{pg2}, s{pg2}, s{sCq}\ns_cmp_lt_u32 s{sW}, 4\ns_cselect_b32 s{pg}, s{sT}, s{sT3}\ns_cselect_b32 s{pg1}, 12, 17\ns_cselect_b64 vcc, -1, 0")
                for k in range(4): a(f"v_cndmask_b32 v{vGa+k}, v{vD2048+k}, v{vL16}, vcc")
            return f
        sBo1, sCt1, sO1, sF1, sH1, sRot, pw, sPb, sPbf = sA, sB_, sC, sE, sBA, sHA, sUA, 6, 7
        self.oproj_params(sBo1, sCt1, sO1, sF1, sPb, 1)
        self.half_params(sBo1, sH1, sO1, sF1, False)
        a(f"s_and_b32 s{sT}, s{sCt1}, {c['rotO'] >> 1}\ns_lshl_b32 s{sT}, s{sT}, 2\ns_add_u32 s{sRot}, s{sBo1}, s{sT}")
        a(f"s_and_b32 s{sPb}, s2, 127\ns_lshl_b32 s{sPbf}, s{sPb}, 7\ns_lshl_b32 s{sT}, s{sW}, 2\ns_add_u32 s{sPbf}, s{sPbf}, s{sT}\ns_add_u32 s{sPbf}, s{sPbf}, {WS_PFLAG + 16384}")
        a(f"s_lshl_b32 s{sPb}, s{sPb}, 3\ns_add_u32 s{sPb}, s{sPb}, s{sW}\ns_lshl_b32 s{sPb}, s{sPb}, 10\ns_add_u32 s{sPb}, s{sPb}, {WS_P + (4 << 20)}")
        oregB = lambda t: vB2 + 8*t
        T2, D2 = vTq, vTq + 2
        if c["touchOB"]:
            self.queue_touch("ws", self.lin(T2, 7), lambda: a(f"s_and_b32 s{sD2}, s{sCt1}, 1\ns_lshl_b32 s{sD2}, s{sD2}, 13\ns_add_u32 s{sD2}, s{sD2}, s{sO1}"), D2, gate="tob")
        wB1 = self.queue_wo("woB", 8, sH1, sRot, pw, sCt1, {c["aheadB"]-1: lambda: [self.queue_o(oregB, t, 8, sRot, sO1, "ob") for t in range(8)]})
        oa = self.queue_cg(8, pg, og_first(0), "sc1", gate="oa", nfirst=c["ntO"])
        a(f"s_lshl_b32 s{sFl}, s{sBr}, 14\ns_lshl_b32 s{sT}, s{sX}, 9\ns_add_u32 s{sFl}, s{sFl}, s{sT}\ns_add_u32 s{sFl}, s{sFl}, {WS_FLAG}")
        self.read_q(vB1, 16); a("s_waitcnt lgkmcnt(0)")
        self.stamp(5)
        self.qk(2, aa[0])
        def afb():
            if c["touchOB"]:
                self.chk_wait(); self.gates.add("tob"); self.pump(1, wait=False)
        self.attn_rest(2, aa[1], vB2, vB1, sOa, sFa, (2, 3, 4), keep=4, after_v=lambda: self.chk_issue(CK, sF1, (8, 2, 1)), after_first_barrier=afb, urgent=c["urgA"])
        self.stamp(6)
        if not c["touchOB"]: self.chk_wait()
        self.gates.add("ob")
        self.pump(c["ob0"], wait=False)
        self.stamp(14)
        rs = self.run_oproj(wB1, oregB, ACC, "ob", True, 2, hooks={0: self.flush_flag, 5: lambda: self.chk_issue(CK, sFl, (8, 4, 4))})
        self.stamp(13)
        self.chk_wait(); self.gates.add("oa")
        self.out_reduce(ACC, rs, vB2, sPart=sPb)
        self.pend_flag = ("pstore", sPbf, 1, 0)
        self.cg_addr(True, vT)
        self.K = 16; self.pump(c["og0"], wait=False)
        a(f"s_lshl_b32 s{sBo}, s{sBr}, 2\ns_and_b32 s{sT}, s{sW}, 3\ns_add_u32 s{sBo}, s{sBo}, s{sT}\ns_lshl_b32 s{sCt}, s{sCq}, 1\ns_lshr_b32 s{sT}, s{sW}, 2\ns_add_u32 s{sCt}, s{sCt}, s{sT}")
        self.part_off(sPo, sPf, sBo, sCt, sX, 0)
        ACC2 = vB1 + 32
        self.run_cg(oa, True, ACC2, c["LAo"], hooks={0: self.flush_flag})
        self.pack(vF + 16, ACC2, 16)
        self.move4("store", vF + 16, sPo, "pst")
        self.stamp(15)
        a(f"s_lshr_b32 s{sBo}, s{sJJ}, 1\ns_and_b32 s{sT}, s{sJJ}, 1\ns_lshl_b32 s{sCt}, s{sX}, 1\ns_add_u32 s{sCt}, s{sCt}, s{sT}")
        a(f"s_lshl_b32 s{sOut}, s{sBo}, 17\ns_lshl_b32 s{sT}, s{sCt}, 7\ns_add_u32 s{sOut}, s{sOut}, s{sT}")
        self.part_off(sPo2, sPf2, sBo, sCt, sW, 0)
        a.wait_vm("pst"); self.set_flag(sPf)
        self.chk_issue(CK, sPf2, (1, 1, 1)); self.chk_wait(nap=c["napq"])
        self.stamp(12)
        self.move4("load", vB1 + 32, sPo2, "pa")
        a.wait_vm("pa")
        self.unpack(ACC, vB1 + 32, 16)
        self.out_reduce(ACC, 0, vB2, sOut)
        self.stamp(1)
        a("s_endpgm")
        a.reset_keep_t()
    def build(self):
        a = self.a
        self.prologue()
        a("s_cmp_ge_u32 s2, 128\ns_cbranch_scc1 L_roleG")
        sv = (a.t, dict(a.valu_w), dict(a.valu_sw))
        self.cold = []
        self.role_S()
        a.lines.extend(self.cold)
        a.label("L_roleG")
        a.nop(2)
        self.role_G()
        a.label("L_end")
        a("s_endpgm")
        body = a.text()
        return (HDR + f"; @launch grid=(256,1,1) block=(512,1,1) lds=163840\n"
                + '.amdgcn_target "amdgcn-amd-amdhsa--gfx950"\n.text\n'
                + f".globl {NAME}_kernel\n.p2align 8\n.type {NAME}_kernel,@function\n{NAME}_kernel:\n" + body
                + f""".section .rodata,"a"
.p2align 6
.amdhsa_kernel {NAME}_kernel
  .amdhsa_next_free_vgpr 256
  .amdhsa_next_free_sgpr 102
  .amdhsa_accum_offset 256
  .amdhsa_group_segment_fixed_size 0
  .amdhsa_kernarg_size 104
  .amdhsa_user_sgpr_count 2
  .amdhsa_user_sgpr_kernarg_segment_ptr 1
  .amdhsa_system_sgpr_workgroup_id_x 1
.end_amdhsa_kernel
""")

DEFAULT = dict(smwait=False, smpump1=8, rotB=0, Kk2=0, Kv2=0, earlyP=0, vhold=1, vh1=4, vh2=4, vh3=2, qchk=7, ntQ=0, ntO=0, ntKV=0, ntW=0, fl_t='', preA2=0, preA3=0, earlyW=0, ob0=0, touchOB=0, barfill=1, pbt=6, og0=12, oaI=1, rotO=3, touchX=1, nap=8, naptail=2, napq=4, rotQ=3, cgspread=5, holdS=0, gateKA=1, preA0=4, KG0=16, preA=12, urgA=True, gateW=None, aheadB=4, gateWA=1, K0=4, K0n=3, Khit=6, prepoll=0, touchWA=1, touchWB=1, touchO=1, pipe1=False, LAq=8, LAa=6, LAb=6, LAo=8, touchK=8, touchV=None, touchW=1, flagt=2, redpump=2, K=4, Ktail=6, smpump=8, fl_x="", fl_w="", fl_wo="", fl_kvA="", fl_kvB="nt", oproj=True, stamps=False, spin=20000)
def make(**kw):
    c = dict(DEFAULT); c.update(kw)
    return Gen(c).build()
if __name__ == "__main__":
    out = sys.argv[1] if len(sys.argv) > 1 else "cdna_kernels/" + NAME + ".s"
    kw = eval("dict(" + (sys.argv[2] if len(sys.argv) > 2 else "") + ")")
    open(out, "w").write(make(**kw))
```
